```python
import torch

def _softmax(x, axis=-1):
    return torch.softmax(x, dim=axis)
def _gelu(x):
    return torch.nn.functional.gelu(x, approximate="tanh")
def _silu(x):
    return torch.nn.functional.silu(x)
def _sigmoid(x):
    return torch.sigmoid(x)
def _layernorm(x, axis=-1, eps=1e-5):
    m = x.mean(dim=axis, keepdim=True)
    v = x.var(dim=axis, keepdim=True, unbiased=False)
    return (x - m) / torch.sqrt(v + eps)
def _scatter_add(tgt, idx, src, axis=0):
    return tgt.clone().index_add_(axis, idx, src)
def _segment_sum(src, seg, n):
    out = torch.zeros((n,) + src.shape[1:], dtype=src.dtype)
    return out.index_add_(0, seg, src)
def _pad(x, pw):
    flat = tuple(v for pair in reversed(pw) for v in pair)
    return torch.nn.functional.pad(x, flat)

kernel_name = 'interleave_layers__sliding_block_cached__mixer_channel_mlp__decode'

def setup_inputs():

    _w = (lambda a: (lambda t: t.to(torch.bfloat16) if t.is_floating_point() else t)(torch.as_tensor(a)))
    def _A_setup():
        B, Sq, D = 8, 1, 640
        Hq, Hkv, Sk, Dh = 32, 32, 4096, 128
        assert Hq % Hkv == 0, (Hq, Hkv)
        return {
            "x": _w((lambda *s: torch.randn(*s, dtype=torch.bfloat16) * 0.05)(B, Sq, D)),
            "k_cache": _w((lambda *s: torch.randn(*s, dtype=torch.bfloat16) * 3.2)(B, Hkv, Sk, Dh)),
            "v_cache": _w((lambda *s: torch.randn(*s, dtype=torch.bfloat16) * 0.4)(B, Hkv, Sk, Dh)),
            "wq": _w((lambda *s: torch.randn(*s, dtype=torch.bfloat16) * 3.2)(D, Hq * Dh) * (D ** -0.5)),
            "wo": _w((lambda *s: torch.randn(*s, dtype=torch.bfloat16) * 0.4)(Hq * Dh, D) * ((Hq * Dh) ** -0.5)),
        }
    _A_in = _A_setup()

    def _B_setup():
        B, S, D, F = 8, 1, 640, 1728
        return {
            "x": _w((lambda *s: torch.randn(*s, dtype=torch.bfloat16) * 0.05)(B, S, D)),
            "w1": _w((lambda *s: torch.randn(*s, dtype=torch.bfloat16) * 1.6)(D, F) * (D ** -0.5)),
            "b1": _w((lambda *s: torch.randn(*s, dtype=torch.bfloat16) * 1.6)(F)),
            "w2": _w((lambda *s: torch.randn(*s, dtype=torch.bfloat16) * 0.1)(F, D) * (F ** -0.5)),
            "b2": _w((lambda *s: torch.randn(*s, dtype=torch.bfloat16) * 0.1)(D)),
        }
    _B_in = _B_setup()

    return {
        "A_x": _A_in["x"],
        "A_k_cache": _A_in["k_cache"],
        "A_v_cache": _A_in["v_cache"],
        "A_wq": _A_in["wq"],
        "A_wo": _A_in["wo"],
        "B_x": _B_in["x"],
        "B_w1": _B_in["w1"],
        "B_b1": _B_in["b1"],
        "B_w2": _B_in["w2"],
        "B_b2": _B_in["b2"],
    }

def reference(A_x, A_k_cache, A_v_cache, A_wq, A_wo, B_x, B_w1, B_b1, B_w2, B_b2):
    def _A_ref(x, k_cache, v_cache, wq, wo):
        B, Sq, D = x.shape
        Hq, Dh = 32, 128
        Hkv, Sk = k_cache.shape[1], k_cache.shape[2]
        W = min(4096, max(256, Sk // 4))
        rep = Hq // Hkv
        q = (lambda x, *d: x.permute(*d))((x @ wq).reshape(B, Sq, Hq, Dh), 0, 2, 1, 3)
        k = (lambda x, n, axis: torch.repeat_interleave(x, n, dim=axis))(k_cache[:, :, Sk - W:, :], rep, axis=1)
        v = (lambda x, n, axis: torch.repeat_interleave(x, n, dim=axis))(v_cache[:, :, Sk - W:, :], rep, axis=1)
        scores = torch.einsum("bhqd,bhkd->bhqk", q, k) * (Dh ** -0.5)
        p = _softmax(scores, axis=-1)
        o = torch.einsum("bhqk,bhkd->bhqd", p, v)
        return (lambda x, *d: x.permute(*d))(o, 0, 2, 1, 3).reshape(B, Sq, Hq * Dh) @ wo

    def _B_ref(x, w1, b1, w2, b2):
        y = _layernorm(x, axis=-1)
        h = _gelu(torch.einsum("bsd,df->bsf", y, w1) + b1)
        return torch.einsum("bsf,fd->bsd", h, w2) + b2

    x = A_x
    x = x + _A_ref(_layernorm(x, axis=-1), A_k_cache, A_v_cache, A_wq, A_wo)
    x = x + _B_ref(_layernorm(x, axis=-1), B_w1, B_b1, B_w2, B_b2)
    x = x + _A_ref(_layernorm(x, axis=-1), A_k_cache, A_v_cache, A_wq, A_wo)
    x = x + _B_ref(_layernorm(x, axis=-1), B_w1, B_b1, B_w2, B_b2)
    return x
```

```python
import sys, argparse
NAME = 'interleave_layers__sliding_block_cached__mixer_channel_mlp__decode'

HEADER = open('cdna_kernels/' + NAME + '.s.ref').read().split('; Override launch')[0]

LSTRIDE = 0xA0000
MB_Q = 0x00000
MB_O = 0x10000
MB_P1 = 0x20000
MB_P2 = 0x48000
MB_X1 = 0x70000
MB_X2 = 0x84000
MB_H = 0x98000
WS_BYTES = 0x1000000
TS_OFF = 0x800000

L_STAGE = 0
L_RES = 10368
L_B2 = L_RES + 1024
L_B1 = L_B2 + 128
L_XCH = L_B1 + 128
L_K0 = 12288
L_K1 = 86016
L_STG0 = 90112
L_STG1 = 131072
LDS_BYTES = 163840

VK = 36
VV = 88
VW = 216
VK18 = 252

S_K, S_V, S_WS, S_DBG, S_OUT, S_T0, S_T1 = 16, 20, 24, 28, 32, 36, 40
sX, sS, sH, sB, sWAVE = 44, 45, 46, 47, 48
sRT, sRU = 49, 50
sFAST, sLOFF, sSPIN = 51, 52, 53
sT = 54
sNCH = 55
sA, sBb, sC, sD = 56, 57, 58, 59
sM64 = 60
sM64b = 62
sEX = 64
sBLK = 66
sKL0, sKL1 = 74, 75
sCNT = 76
sTS = 78
P_X, P_WQ, P_WO, P_W1, P_B1, P_W2, P_B2 = 4, 6, 8, 10, 12, 14, 100

SENT = 0xFFFFFFFF
SPIN_MAX = 400000


class G:
    def __init__(self, ts=False, win=12, opts=None):
        self.L = []
        self.ts = ts
        self.win = win
        self.nlab = 0
        self.nts = 0
        self.o = opts or {}

    def A(self, s):
        self.L.append('  ' + s)

    def lab(self, name):
        self.L.append(name + ':')

    def newlab(self, p='L'):
        self.nlab += 1
        return f'{p}_{self.nlab}'

    def stamp(self, k):
        if self.ts and (self.o.get('cmode') is None or k == 0):
            assert k < 11
            self.A(f's_memrealtime s[{sTS+2*k}:{sTS+2*k+1}]')

    def lane(self, v):
        self.A(f'v_mbcnt_lo_u32_b32 v{v}, -1, 0')
        self.A(f'v_mbcnt_hi_u32_b32 v{v}, -1, v{v}')

    @staticmethod
    def kplace():
        pl = {}
        n = 0
        r = 0
        for i in range(8):
            nl = 3 if i < 3 else 2
            for j in range(4):
                if j < nl:
                    pl[(i, j)] = ('L', n)
                    n += 1
                else:
                    pl[(i, j)] = ('R', VK + 4 * r)
                    r += 1
        assert n == 19 and r == 13
        return pl

    def spin_check(self, lab_retry, lab_done):
        self.A(f's_add_u32 s{sSPIN}, s{sSPIN}, 1')
        self.A(f's_cmp_lt_u32 s{sSPIN}, {SPIN_MAX}')
        self.A(f's_cbranch_scc1 {lab_retry}')

    def poll(self, loads, regs, exec_masked=False):
        A = self.A
        lr = self.newlab('P')
        ld = self.newlab('PD')
        self.lab(lr)
        for l in loads:
            A(l)
        A('s_waitcnt vmcnt(0)')
        t = self.vtmp
        regs = list(regs)
        if len(regs) == 1:
            A(f'v_cmp_eq_u32 vcc, -1, v{regs[0]}')
        else:
            if len(regs) == 2:
                A(f'v_max_u32 v{t}, v{regs[0]}, v{regs[1]}')
                rest = []
            else:
                A(f'v_max3_u32 v{t}, v{regs[0]}, v{regs[1]}, v{regs[2]}')
                rest = regs[3:]
            while rest:
                if len(rest) >= 2:
                    A(f'v_max3_u32 v{t}, v{t}, v{rest[0]}, v{rest[1]}')
                    rest = rest[2:]
                else:
                    A(f'v_max_u32 v{t}, v{t}, v{rest[0]}')
                    rest = rest[1:]
            A(f'v_cmp_eq_u32 vcc, -1, v{t}')
        A('s_cmp_eq_u64 vcc, 0')
        A(f's_cbranch_scc1 {ld}')
        self.spin_check(lr, ld)
        self.lab(ld)

    vtmp = 35

    def store_local(self, ins):
        A = self.A
        l1 = self.newlab('SL')
        l2 = self.newlab('SE')
        A(f's_cmp_eq_u32 s{sFAST}, 0')
        A(f's_cbranch_scc1 {l1}')
        A(ins)
        A(f's_branch {l2}')
        self.lab(l1)
        A(ins + ' sc1')
        self.lab(l2)

    def wave_reduce(self, items):
        A = self.A
        steps = ['row_shr:1', 'row_shr:2', 'row_shr:4', 'row_shr:8', 'row_bcast:15 row_mask:0xa', 'row_bcast:31 row_mask:0xc']
        for st in steps:
            pad = 2 - (len(items) - 1)
            if pad > 0:
                A(f's_nop {pad-1}')
            for (r, op) in items:
                m = st if 'row_mask' in st else st + ' row_mask:0xf'
                A(f'{op}_dpp v{r}, v{r}, v{r} {m} bank_mask:0xf')
        A('s_nop 1')

    def layernorm(self, pk, f, t):
        A = self.A
        for i in range(5):
            A(f'v_lshlrev_b32 v{f+2*i}, 16, v{pk+i}')
            A(f'v_and_b32 v{f+2*i+1}, 0xffff0000, v{pk+i}')
        A('s_nop 0')
        A(f'v_readfirstlane_b32 s{sA}, v{f}')
        s1, s2, d0 = t, t + 2, t + 4
        A('s_nop 1')
        A(f'v_mov_b32 v{d0+2}, s{sA}')
        A(f'v_mov_b32 v{d0+3}, s{sA}')
        for i in range(5):
            A(f'v_pk_add_f32 v[{d0}:{d0+1}], v[{f+2*i}:{f+2*i+1}], v[{d0+2}:{d0+3}] neg_lo:[0,1] neg_hi:[0,1]')
            if i == 0:
                A(f'v_pk_mul_f32 v[{s2}:{s2+1}], v[{d0}:{d0+1}], v[{d0}:{d0+1}]')
                A(f'v_mov_b32 v{s1}, v{d0}')
                A(f'v_mov_b32 v{s1+1}, v{d0+1}')
            else:
                A(f'v_pk_fma_f32 v[{s2}:{s2+1}], v[{d0}:{d0+1}], v[{d0}:{d0+1}], v[{s2}:{s2+1}]')
                A(f'v_pk_add_f32 v[{s1}:{s1+1}], v[{d0}:{d0+1}], v[{s1}:{s1+1}]')
        A(f'v_add_f32 v{s1}, v{s1}, v{s1+1}')
        A(f'v_add_f32 v{s2}, v{s2}, v{s2+1}')
        self.wave_reduce([(s1, 'v_add_f32'), (s2, 'v_add_f32')])
        A(f'v_readlane_b32 s{sBb}, v{s1}, 63')
        A(f'v_readlane_b32 s{sC}, v{s2}, 63')
        inv = 0x3ACCCCCD
        A(f'v_mov_b32 v{d0}, 0x{inv:08x}')
        A('s_nop 0')
        A(f'v_mul_f32 v{s1}, s{sBb}, v{d0}')
        A(f'v_mul_f32 v{s2}, s{sC}, v{d0}')
        A(f'v_fma_f32 v{s2}, -v{s1}, v{s1}, v{s2}')
        A(f'v_add_f32 v{s1}, s{sA}, v{s1}')
        A(f'v_max_f32 v{s2}, 0, v{s2}')
        A(f'v_cvt_pk_bf16_f32 v{d0}, v{s1}, v{s2}')
        A(f'v_lshlrev_b32 v{s1}, 16, v{d0}')
        A(f'v_and_b32 v{s2}, 0xffff0000, v{d0}')
        A(f'v_add_f32 v{s2}, 0x3727c5ac, v{s2}')
        A(f'v_cvt_pk_bf16_f32 v{s2}, v{s2}, v{s2}')
        A(f'v_and_b32 v{s2}, 0xffff0000, v{s2}')
        A(f'v_sqrt_f32 v{s2}, v{s2}')
        A(f'v_mov_b32 v{s1+1}, v{s1}')
        A(f'v_cvt_pk_bf16_f32 v{s2}, v{s2}, v{s2}')
        A(f'v_and_b32 v{s2}, 0xffff0000, v{s2}')
        A(f'v_rcp_f32 v{s2}, v{s2}')
        for i in range(5):
            A(f'v_pk_add_f32 v[{f+2*i}:{f+2*i+1}], v[{f+2*i}:{f+2*i+1}], v[{s1}:{s1+1}] neg_lo:[0,1] neg_hi:[0,1]')
        A(f'v_mov_b32 v{s2+1}, v{s2}')
        for i in range(5):
            A(f'v_cvt_pk_bf16_f32 v{pk+i}, v{f+2*i}, v{f+2*i+1}')
        for i in range(5):
            A(f'v_lshlrev_b32 v{f+2*i}, 16, v{pk+i}')
            A(f'v_and_b32 v{f+2*i+1}, 0xffff0000, v{pk+i}')
        for i in range(5):
            A(f'v_pk_mul_f32 v[{f+2*i}:{f+2*i+1}], v[{f+2*i}:{f+2*i+1}], v[{s2}:{s2+1}]')
        for i in range(5):
            A(f'v_cvt_pk_bf16_f32 v{pk+i}, v{f+2*i}, v{f+2*i+1}')

    def ln_stage_write(self, pk, va):
        A = self.A
        A(f's_mul_i32 s{sA}, s{sWAVE}, 1296')
        A(f'v_lshlrev_b32 v{va}, 2, v{va}')
        A(f'v_add_u32 v{va}, s{sA}, v{va}')
        for i in range(5):
            A(f'ds_write_b32 v{va}, v{pk+i} offset:{L_STAGE + 256*i}')
        A('s_waitcnt lgkmcnt(0)')

    def gemm(self, S, Kh, RS):
        A = self.A
        self.lane(28)
        A('v_and_b32 v29, 15, v28')
        A('v_lshrrev_b32 v30, 4, v28')
        A('v_and_b32 v31, 7, v29')
        A('v_lshrrev_b32 v32, 3, v29')
        A(f'v_mul_u32_u24 v31, {RS}, v31')
        A(f'v_mul_u32_u24 v32, {Kh*2}, v32')
        A('v_lshl_add_u32 v31, v30, 4, v31')
        A('v_add_u32 v31, v31, v32')
        NT = 5
        T = [4 + 4 * k for k in range(NT)]
        for j in range(min(NT, S)):
            A(f'ds_read_b128 v[{T[j]}:{T[j]+3}], v31 offset:{L_STAGE + 64*j}')
        for j in range(S):
            issued = min(S, j + NT)
            A(f's_waitcnt lgkmcnt({issued - j - 1})')
            c = '0' if j == 0 else 'v[0:3]'
            A(f'v_mfma_f32_16x16x32_bf16 v[0:3], v[{VW+4*j}:{VW+4*j+3}], v[{T[j%NT]}:{T[j%NT]+3}], {c}')
            if j + NT < S:
                A(f'ds_read_b128 v[{T[j%NT]}:{T[j%NT]+3}], v31 offset:{L_STAGE + 64*(j+NT)}')
        A('s_nop 7')
        A('s_nop 1')
        for r in range(4):
            A(f'v_mov_b32_dpp v{4+r}, v{r} row_ror:8 row_mask:0xf bank_mask:0xf')
        A('s_nop 0')
        for r in range(4):
            A(f'v_permlane32_swap_b32 v{4+r}, v{8+r}')
        A('s_nop 1')
        for r in range(4):
            A(f'v_add_f32 v{r}, v{r}, v{8+r}')

    def mask16(self):
        A = self.A
        A(f's_mov_b64 s[{sEX}:{sEX+1}], exec')
        A('s_mov_b32 exec_lo, 0x00ff00ff')
        A('s_mov_b32 exec_hi, 0')

    def unmask(self):
        self.A('s_mov_b64 exec, -1')

    def q_gemm_and_store(self, first):
        A = self.A
        self.gemm(10, 320, 1296)
        A('v_cvt_pk_bf16_f32 v4, v0, v1')
        A('v_cvt_pk_bf16_f32 v5, v2, v3')
        A('v_min_u32 v4, 0xfffffffe, v4')
        A('v_min_u32 v5, 0xfffffffe, v5')
        A(f's_lshl_b32 s{sA}, s{sX}, 6')
        A(f's_lshl_b32 s{sBb}, s{sRU}, 2')
        A(f's_add_u32 s{sA}, s{sA}, s{sBb}')
        A(f's_add_u32 s{sA}, s{sA}, s{sT}')
        A(f's_lshl_b32 s{sA}, s{sA}, 7')
        A(f's_add_u32 s{sA}, s{sA}, s{sLOFF}')
        A('v_lshlrev_b32 v6, 4, v29')
        A('v_lshl_add_u32 v6, v30, 3, v6')

    def q_loads(self, va):
        A = self.A
        self.lane(va)
        A(f'v_lshrrev_b32 v{va}, 4, v{va}')
        A(f'v_lshlrev_b32 v{va}, 7, v{va}')
        A(f's_lshl_b32 s{sA}, s{sH}, 11')
        A(f's_lshl_b32 s{sBb}, s{sB}, 4')
        A(f's_add_u32 s{sA}, s{sA}, s{sBb}')
        A(f's_add_u32 s{sD}, s{sA}, s{sLOFF}')
        return [f'buffer_load_dwordx4 v[{4*j}:{4*j+3}], v{va}, s[{S_WS}:{S_WS+3}], s{sD} offen offset:{MB_Q + 512*j} sc1' for j in range(4)]

    def qk_softmax(self, layer):
        A = self.A
        pl = self.kplace()
        T = [16, 20]
        D = [24, 28]
        C0, C1, VA = 32, 33, 34
        self.lane(VA)
        A(f'v_lshlrev_b32 v{VA}, 4, v{VA}')
        A(f'v_add_u32 v35, s{sKL1}, v{VA}')
        A(f'v_add_u32 v{VA}, s{sKL0}, v{VA}')
        lseq = [(i, j) for i in range(8) for j in range(4) if pl[(i, j)][0] == 'L']

        def issue(idx):
            if idx >= len(lseq):
                return False
            n = pl[lseq[idx]][1]
            t = T[idx % 2]
            if n == 18:
                lb = self.newlab('K18')
                A(f's_cmp_ge_u32 s{sWAVE}, 4')
                A(f's_cbranch_scc1 {lb}')
                A(f'ds_read_b128 v[{t}:{t+3}], v35 offset:{(n-9)*1024}')
                self.lab(lb)
            elif n < 9:
                A(f'ds_read_b128 v[{t}:{t+3}], v{VA} offset:{n*1024}')
            else:
                A(f'ds_read_b128 v[{t}:{t+3}], v35 offset:{(n-9)*1024}')
            return True
        issue(0)
        issue(1)
        li = 0
        A(f's_mov_b32 s{sM64}, 0x00010001')
        A(f's_mov_b32 s{sM64+1}, 0x00010001')

        def compact(i):
            d = D[i % 2]
            A(f's_lshl_b64 s[{sM64b}:{sM64b+1}], s[{sM64}:{sM64+1}], 1')
            A(f'v_cndmask_b32 v{C0}, v{C0}, v{d}, s[{sM64}:{sM64+1}]')
            A(f'v_cndmask_b32 v{C1}, v{C1}, v{d+1}, s[{sM64}:{sM64+1}]')
            A(f'v_cndmask_b32 v{C0}, v{C0}, v{d+2}, s[{sM64b}:{sM64b+1}]')
            A(f'v_cndmask_b32 v{C1}, v{C1}, v{d+3}, s[{sM64b}:{sM64b+1}]')
            A(f's_lshl_b64 s[{sM64}:{sM64+1}], s[{sM64}:{sM64+1}], 2')
        for i in range(8):
            d = D[i % 2]
            order = [j for j in range(4) if pl[(i, j)][0] == 'R'] + [j for j in range(4) if pl[(i, j)][0] == 'L']
            for k, j in enumerate(order):
                c = '0' if k == 0 else f'v[{d}:{d+3}]'
                kind, val = pl[(i, j)]
                if kind == 'R':
                    A(f'v_mfma_f32_16x16x32_bf16 v[{d}:{d+3}], v[{val}:{val+3}], v[{4*j}:{4*j+3}], {c}')
                else:
                    t = T[li % 2]
                    last = (li + 1 >= len(lseq))
                    nxt_is18 = (li + 1 < len(lseq)) and pl[lseq[li+1]][1] == 18
                    if val == 18:
                        A('s_waitcnt lgkmcnt(0)')
                        l1 = self.newlab('K18a')
                        l2 = self.newlab('K18b')
                        A(f's_cmp_ge_u32 s{sWAVE}, 4')
                        A(f's_cbranch_scc1 {l1}')
                        A(f'v_mfma_f32_16x16x32_bf16 v[{d}:{d+3}], v[{t}:{t+3}], v[{4*j}:{4*j+3}], {c}')
                        A(f's_branch {l2}')
                        self.lab(l1)
                        A(f'v_mfma_f32_16x16x32_bf16 v[{d}:{d+3}], v[{VK18}:{VK18+3}], v[{4*j}:{4*j+3}], {c}')
                        self.lab(l2)
                    else:
                        A(f's_waitcnt lgkmcnt({0 if (last or nxt_is18) else 1})')
                        A(f'v_mfma_f32_16x16x32_bf16 v[{d}:{d+3}], v[{t}:{t+3}], v[{4*j}:{4*j+3}], {c}')
                    issue(li + 2)
                    li += 1
                if k == 2 and i > 0:
                    A('s_nop 3')
                    compact(i - 1)
        A('s_nop 7')
        A('s_nop 1')
        compact(7)
        a0, a1, t0, m = 16, 17, 18, 19
        A(f'v_cvt_pk_bf16_f32 v{t0}, v{C0}, v{C1}')
        A(f'v_lshlrev_b32 v{a0}, 16, v{t0}')
        A(f'v_and_b32 v{a1}, 0xffff0000, v{t0}')
        A(f'v_mul_f32 v{a0}, 0x3db504f3, v{a0}')
        A(f'v_mul_f32 v{a1}, 0x3db504f3, v{a1}')
        A(f'v_cvt_pk_bf16_f32 v{t0}, v{a0}, v{a1}')
        A(f'v_lshlrev_b32 v{a0}, 16, v{t0}')
        A(f'v_and_b32 v{a1}, 0xffff0000, v{t0}')
        A(f'v_mov_b32 v{t0}, 0xff7fffff')
        A(f'v_max3_f32 v{m}, v{a0}, v{a1}, v{t0}')
        self.wave_reduce([(m, 'v_max_f32')])
        A(f'v_readlane_b32 s{sA}, v{m}, 63')
        A('s_nop 1')
        A(f'v_subrev_f32 v{a0}, s{sA}, v{a0}')
        A(f'v_subrev_f32 v{a1}, s{sA}, v{a1}')
        A(f'v_mul_f32 v{a0}, 0x3fb8aa3b, v{a0}')
        A(f'v_mul_f32 v{a1}, 0x3fb8aa3b, v{a1}')
        A(f'v_exp_f32 v{a0}, v{a0}')
        A(f'v_exp_f32 v{a1}, v{a1}')
        A('s_nop 0')
        A(f'v_add_f32 v{m}, v{a0}, v{a1}')
        self.wave_reduce([(m, 'v_add_f32')])
        A(f'v_readlane_b32 s{sBb}, v{m}, 63')
        A(f's_lshl_b32 s{sC}, s{sWAVE}, 3')
        A(f'v_mov_b32 v20, s{sA}')
        A(f'v_mov_b32 v21, s{sBb}')
        A(f'v_mov_b32 v22, s{sC}')
        A('s_mov_b64 exec, 1')
        A(f'ds_write_b64 v22, v[20:21] offset:{L_XCH + 64*layer}')
        A('s_mov_b64 exec, -1')
        self.lane(22)
        A('v_and_b32 v23, 7, v22')
        A('v_lshlrev_b32 v23, 3, v23')
        A('s_waitcnt lgkmcnt(0)')
        A('s_barrier')
        A(f'ds_read_b64 v[20:21], v23 offset:{L_XCH + 64*layer}')
        A('v_and_b32 v22, 15, v22')
        A('v_and_b32 v23, 1, v22')
        A('v_lshlrev_b32 v23, 4, v23')
        A('v_mov_b32 v24, 0xffff')
        A('v_lshlrev_b32 v23, v23, v24')
        A('v_lshrrev_b32 v22, 1, v22')
        for jj in range(4):
            A(f'v_cmp_eq_u32 vcc, {jj}, v22')
            A('s_nop 1')
            A(f'v_cndmask_b32 v{28+jj}, 0, v23, vcc')
        A('s_waitcnt lgkmcnt(0)')
        A('v_mov_b32 v22, v20')
        for k in (1, 2, 4):
            A('s_nop 1')
            A(f'v_max_f32_dpp v22, v22, v22 row_ror:{k} row_mask:0xf bank_mask:0xf')
        A('v_sub_f32 v20, v20, v22')
        A(f'v_sub_f32 v23, s{sA}, v22')
        A('v_mul_f32 v20, 0x3fb8aa3b, v20')
        A('v_mul_f32 v23, 0x3fb8aa3b, v23')
        A('v_exp_f32 v20, v20')
        A('v_exp_f32 v23, v23')
        A('s_nop 0')
        A('v_mul_f32 v21, v21, v20')
        for k in (1, 2, 4):
            A('s_nop 1')
            A(f'v_add_f32_dpp v21, v21, v21 row_ror:{k} row_mask:0xf bank_mask:0xf')
        A('v_rcp_f32 v21, v21')
        A(f'v_mul_f32 v{a0}, v{a0}, v23')
        A(f'v_mul_f32 v{a1}, v{a1}, v23')
        A(f'v_mul_f32 v{a0}, v{a0}, v21')
        A(f'v_mul_f32 v{a1}, v{a1}, v21')
        A(f'v_cvt_pk_bf16_f32 v32, v{a0}, v{a0}')
        A(f'v_cvt_pk_bf16_f32 v33, v{a1}, v{a1}')
        A('s_nop 1')

    def pv_build(self, k):
        i, r = k // 4, k % 4
        b = 4 + 4 * (k % 2)
        for jj in range(4):
            self.A(f'v_and_b32_dpp v{b+jj}, v{32 + (r & 1)}, v{28+jj} row_newbcast:{2*i + (r >> 1)} row_mask:0xf bank_mask:0xf')

    def pv_mfma(self, k):
        b = 4 + 4 * (k % 2)
        c = '0' if k == 0 else 'v[0:3]'
        self.A(f'v_mfma_f32_16x16x32_bf16 v[0:3], v[{VV+4*k}:{VV+4*k+3}], v[{b}:{b+3}], {c}')

    def o_finish(self):
        A = self.A
        self.lane(4)
        A('v_and_b32 v5, 15, v4')
        A('v_lshrrev_b32 v6, 4, v4')
        A('v_lshlrev_b32 v6, 7, v6')
        A('v_lshl_add_u32 v6, v5, 2, v6')
        A(f's_lshl_b32 s{sA}, s{sWAVE}, 9')
        A(f'v_add_u32 v6, s{sA}, v6')
        A('s_mov_b32 exec_lo, 0x00ff00ff')
        A('s_mov_b32 exec_hi, 0x00ff00ff')
        A('s_nop 4')
        for r in range(4):
            A(f'ds_write_b32 v6, v{r} offset:{L_STAGE + 32*r}')
        A('s_mov_b64 exec, -1')
        A('s_waitcnt lgkmcnt(0)')
        A('s_barrier')
        ld = self.newlab('OF')
        A(f's_cmp_lg_u32 s{sWAVE}, 0')
        A(f's_cbranch_scc1 {ld}')
        A('v_lshlrev_b32 v5, 3, v4')
        for w in range(8):
            A(f'ds_read_b64 v[{8+2*w}:{9+2*w}], v5 offset:{L_STAGE + 512*w}')
        A(f's_lshl_b32 s{sA}, s{sX}, 13')
        A(f's_lshl_b32 s{sBb}, s{sB}, 10')
        A(f's_add_u32 s{sA}, s{sA}, s{sBb}')
        A(f's_and_b32 s{sBb}, s{sH}, 3')
        A(f's_lshl_b32 s{sBb}, s{sBb}, 8')
        A(f's_add_u32 s{sA}, s{sA}, s{sBb}')
        A(f's_add_u32 s{sA}, s{sA}, s{sLOFF}')
        A(f's_add_u32 s{sA}, s{sA}, {MB_O}')
        A('v_lshlrev_b32 v4, 2, v4')
        for w in range(1, 8):
            A(f's_waitcnt lgkmcnt({7-w})')
            A(f'v_pk_add_f32 v[8:9], v[8:9], v[{8+2*w}:{9+2*w}]')
        A('v_cvt_pk_bf16_f32 v8, v8, v9')
        A('v_min_u32 v8, 0xfffffffe, v8')
        self.store_local(f'buffer_store_dword v8, v4, s[{S_WS}:{S_WS+3}], s{sA} offen')
        self.lab(ld)

    def build(self):
        A = self.A
        L = self.L
        L.append(HEADER.rstrip('\n'))
        L.append(f'; @launch grid=(256,1,1) block=(512,1,1) lds={LDS_BYTES}')
        L.append('.amdgcn_target "amdgcn-amd-amdhsa--gfx950"')
        L.append('.text')
        L.append(f'.globl {NAME}_kernel')
        L.append('.p2align 8')
        L.append(f'.type {NAME}_kernel,@function')
        L.append(f'{NAME}_kernel:')
        A('s_cmp_ge_u32 s2, 256')
        A('s_cbranch_scc1 L_end')
        if self.ts:
            for k in range(1, 11):
                A(f's_mov_b64 s[{sTS+2*k}:{sTS+2*k+1}], 0')
        self.stamp(0)
        A(f's_load_dwordx2 s[{P_X}:{P_X+1}], s[0:1], 0')
        A(f's_load_dwordx4 s[{S_T0}:{S_T0+3}], s[0:1], 8')
        A(f's_load_dwordx4 s[{S_T1}:{S_T1+3}], s[0:1], 24')
        A(f's_load_dwordx4 s[68:71], s[0:1], 48')
        A(f's_load_dwordx4 s[72:75], s[0:1], 64')
        A(f's_load_dwordx4 s[60:63], s[0:1], 80')
        A(f's_load_dwordx2 s[64:65], s[0:1], 96')
        A(f's_and_b32 s{sX}, s2, 7')
        A(f's_lshr_b32 s{sS}, s2, 3')
        A(f's_and_b32 s{sH}, s{sS}, 3')
        A(f's_lshl_b32 s{sA}, s{sX}, 2')
        A(f's_add_u32 s{sH}, s{sH}, s{sA}')
        A(f's_lshr_b32 s{sB}, s{sS}, 2')
        A(f's_lshl_b32 s{sA}, s{sB}, 5')
        A(f's_add_u32 s{sA}, s{sA}, s{sH}')
        A(f's_lshl_b32 s{sA}, s{sA}, 20')
        A(f's_add_u32 s{sA}, s{sA}, 0xC0000')
        A('v_lshrrev_b32 v1, 6, v0')
        A('v_and_b32 v2, 63, v0')
        A(f'v_readfirstlane_b32 s{sWAVE}, v1')
        A(f's_mov_b32 s{sLOFF}, 0')
        A(f's_mov_b32 s{sSPIN}, 0')
        A(f's_mov_b32 s{sFAST}, 0')
        A('s_waitcnt lgkmcnt(0)')
        A(f's_add_u32 s{S_K}, s{S_T0}, s{sA}')
        A(f's_addc_u32 s{S_K+1}, s{S_T0+1}, 0')
        A(f's_mov_b32 s{S_K+2}, 0x40000')
        A(f's_mov_b32 s{S_K+3}, 0x20000')
        A(f's_add_u32 s{S_V}, s{S_T0+2}, s{sA}')
        A(f's_addc_u32 s{S_V+1}, s{S_T0+3}, 0')
        A(f's_mov_b32 s{S_V+2}, 0x40000')
        A(f's_mov_b32 s{S_V+3}, 0x20000')
        A(f's_mov_b64 s[{S_WS}:{S_WS+1}], s[64:65]')
        A(f's_mov_b32 s{S_WS+2}, {WS_BYTES}')
        A(f's_mov_b32 s{S_WS+3}, 0x20000')
        A(f's_mov_b64 s[{S_DBG}:{S_DBG+1}], s[62:63]')
        A(f's_mov_b32 s{S_DBG+2}, 256')
        A(f's_mov_b32 s{S_DBG+3}, 0x20000')
        A(f's_mov_b64 s[{S_OUT}:{S_OUT+1}], s[60:61]')
        A(f's_mov_b32 s{S_OUT+2}, 10240')
        A(f's_mov_b32 s{S_OUT+3}, 0x20000')
        A(f's_mov_b64 s[{P_WQ}:{P_WQ+1}], s[{S_T1}:{S_T1+1}]')
        A(f's_mov_b64 s[{P_WO}:{P_WO+1}], s[{S_T1+2}:{S_T1+3}]')
        A(f's_mov_b64 s[{P_W1}:{P_W1+1}], s[68:69]')
        A(f's_mov_b64 s[{P_B1}:{P_B1+1}], s[70:71]')
        A(f's_mov_b64 s[{P_W2}:{P_W2+1}], s[72:73]')
        A(f's_mov_b64 s[0:1], s[74:75]')
        A(f's_and_b32 s{sT}, s{sWAVE}, 3')
        for i in range(8):
            A(f's_mov_b32 s{sBLK+i}, {i*4096}')
        A(f's_mul_i32 s{sKL0}, s{sWAVE}, 9216')
        A(f's_add_u32 s{sKL0}, s{sKL0}, {L_K0}')
        A(f's_mul_i32 s{sKL1}, s{sWAVE}, 10240')
        A(f's_mul_i32 s{sA}, s{sWAVE}, 9216')
        A(f's_add_u32 s{sA}, s{sA}, 4096')
        A(f's_cmp_ge_u32 s{sWAVE}, 4')
        A(f's_cselect_b32 s{sKL1}, s{sA}, s{sKL1}')
        A(f's_add_u32 s{sKL1}, s{sKL1}, {L_K1}')
        A(f's_cmp_eq_u32 s{sX}, 7')
        A(f's_cselect_b32 s{sNCH}, 20, 28')

        lb = self.newlab('CLR')
        A(f's_cmp_lg_u32 s{sWAVE}, 7')
        A(f's_cbranch_scc1 {lb}')
        for r in range(4):
            A(f'v_mov_b32 v{4+r}, -1')
        A('s_mul_i32 s3, s2, 5120')
        A('v_lshlrev_b32 v3, 4, v2')
        for k in range(4):
            A(f'buffer_store_dwordx4 v[4:7], v3, s[{S_WS}:{S_WS+3}], s3 offen offset:{1024*k} sc1')
        A('s_add_u32 s3, s3, 4096')
        A(f'buffer_store_dwordx4 v[4:7], v3, s[{S_WS}:{S_WS+3}], s3 offen sc1')
        A(f's_getreg_b32 s{sA}, hwreg(HW_REG_XCC_ID)')
        A(f's_and_b32 s{sA}, s{sA}, 15')
        A(f's_or_b32 s{sA}, s{sA}, 0x80')
        A(f'v_mov_b32 v8, s{sA}')
        A('v_mov_b32 v9, s2')
        A('s_waitcnt vmcnt(0)')
        A('s_mov_b64 exec, 1')
        A(f'buffer_store_byte v8, v9, s[{S_DBG}:{S_DBG+3}], 0 offen sc1')
        A('s_mov_b64 exec, -1')
        self.lab(lb)

        A('v_lshrrev_b32 v3, 2, v2')
        A(f's_lshl_b32 s{sA}, s{sWAVE}, 4')
        A(f'v_add_u32 v3, s{sA}, v3')
        A('v_and_b32 v4, 3, v2')
        A('v_lshlrev_b32 v4, 4, v4')
        A(f's_mov_b32 s{S_T0+3}, 0x20000')

        def dma(ptr, size, stride, row0_code, colb_code, ninstr, stg):
            A(f's_mov_b64 s[{S_T0}:{S_T0+1}], s[{ptr}:{ptr+1}]')
            A(f's_mov_b32 s{S_T0+2}, {size}')
            row0_code()
            A(f'v_mul_u32_u24 v5, {stride}, v3')
            A(f'v_add3_u32 v5, v5, v4, s{sC}')
            A(f's_lshl_b32 s{sD}, s{sWAVE}, 10')
            for k in range(ninstr):
                A(f's_add_u32 m0, s{sD}, {stg + 8192*k}')
                A(f's_mov_b32 s{sC}, {k*128*stride}')
                A(f'buffer_load_dwordx4 v5, s[{S_T0}:{S_T0+3}], s{sC} offen nt lds')

        def q_off():
            A(f's_lshl_b32 s{sC}, s{sX}, 10')
            A(f's_lshl_b32 s{sD}, s{sBb}, 6')
            A(f's_add_u32 s{sC}, s{sC}, s{sD}')

        def m1_off():
            A(f's_mul_i32 s{sC}, s{sX}, 7')
            A(f's_add_u32 s{sC}, s{sC}, s{sBb}')
            A(f's_lshl_b32 s{sC}, s{sC}, 6')

        def wo_off():
            A(f's_mul_i32 s{sC}, s{sX}, {512*1280}')
            A(f's_lshl_b32 s{sD}, s{sBb}, 6')
            A(f's_add_u32 s{sC}, s{sC}, s{sD}')

        def m2_off():
            A(f's_mul_i32 s{sC}, s{sX}, {224*1280}')
            A(f's_lshl_b32 s{sD}, s{sBb}, 6')
            A(f's_add_u32 s{sC}, s{sC}, s{sD}')

        def setrole(rho, typ):
            A(f's_cmp_{"lt" if rho == 0 else "ge"}_u32 s{sWAVE}, 4')
            A(f's_cselect_b32 s{sRT}, {typ}, s{sRT}')
            A(f's_cselect_b32 s{sRU}, s{sBb}, s{sRU}')
        A(f's_mov_b32 s{sRT}, 0')
        A(f's_mov_b32 s{sRU}, 0')
        l_m1, l_wo, l_e0 = self.newlab('R0m1'), self.newlab('R0wo'), self.newlab('R0e')
        A(f's_cmp_ge_u32 s{sS}, 16')
        A(f's_cbranch_scc1 {l_m1}')
        A(f's_mov_b32 s{sBb}, s{sS}')
        setrole(0, 1)
        dma(P_WQ, 640 * 8192, 8192, q_off, None, 5, L_STG0)
        A(f's_branch {l_e0}')
        self.lab(l_m1)
        A(f's_cmp_ge_u32 s{sS}, 23')
        A(f's_cbranch_scc1 {l_wo}')
        A(f's_sub_u32 s{sBb}, s{sS}, 16')
        A(f's_lshl_b32 s{sA}, s{sBb}, 2')
        A(f's_cmp_ge_u32 s{sA}, s{sNCH}')
        A(f's_cbranch_scc1 {l_e0}')
        setrole(0, 3)
        dma(P_W1, 640 * 3456, 3456, m1_off, None, 5, L_STG0)
        A(f's_branch {l_e0}')
        self.lab(l_wo)
        A(f's_lshl_b32 s{sBb}, s{sS}, 1')
        A(f's_sub_u32 s{sBb}, s{sBb}, 43')
        setrole(0, 2)
        dma(P_WO, 4096 * 1280, 1280, wo_off, None, 4, L_STG0)
        self.lab(l_e0)
        l_wo1, l_e1 = self.newlab('R1wo'), self.newlab('R1e')
        A(f's_cmp_ge_u32 s{sS}, 20')
        A(f's_cbranch_scc1 {l_wo1}')
        A(f's_mov_b32 s{sBb}, s{sS}')
        setrole(1, 4)
        dma(P_W2, 1728 * 1280, 1280, m2_off, None, 2, L_STG1)
        A(f's_branch {l_e1}')
        self.lab(l_wo1)
        A(f's_cmp_eq_u32 s{sS}, 31')
        A(f's_cbranch_scc1 {l_e1}')
        A(f's_sub_u32 s{sBb}, s{sS}, 20')
        A(f's_lshl_b32 s{sA}, s{sS}, 1')
        A(f's_sub_u32 s{sA}, s{sA}, 42')
        A(f's_cmp_ge_u32 s{sS}, 23')
        A(f's_cselect_b32 s{sBb}, s{sA}, s{sBb}')
        setrole(1, 2)
        dma(P_WO, 4096 * 1280, 1280, wo_off, None, 4, L_STG1)
        self.lab(l_e1)

        A(f's_mov_b64 s[{S_T0}:{S_T0+1}], s[{P_X}:{P_X+1}]')
        A(f's_mov_b32 s{S_T0+2}, 10240')
        lb = self.newlab('XL')
        A(f's_cmp_ge_u32 s{sS}, 16')
        A(f's_cbranch_scc1 {lb}')
        A(f's_mul_i32 s{sA}, s{sWAVE}, 1280')
        A('v_lshlrev_b32 v5, 2, v2')
        for i in range(5):
            A(f'buffer_load_dword v{10+i}, v5, s[{S_T0}:{S_T0+3}], s{sA} offen offset:{256*i}')
        self.lab(lb)
        lb = self.newlab('RL')
        A(f's_cmp_lt_u32 s{sS}, 12')
        A(f's_cbranch_scc1 {lb}')
        A(f's_cmp_ge_u32 s{sWAVE}, 4')
        A(f's_cbranch_scc1 {lb}')
        A('v_lshrrev_b32 v5, 3, v2')
        A('v_and_b32 v6, 7, v2')
        A(f's_sub_u32 s{sA}, s{sS}, 12')
        A(f's_lshl_b32 s{sA}, s{sA}, 2')
        A(f's_add_u32 s{sA}, s{sA}, s{sT}')
        A(f's_lshl_b32 s{sA}, s{sA}, 4')
        A('v_lshlrev_b32 v6, 1, v6')
        A('v_mul_u32_u24 v5, 1280, v5')
        A('v_add_u32 v5, v5, v6')
        A(f'buffer_load_ushort v15, v5, s[{S_T0}:{S_T0+3}], s{sA} offen')
        A(f's_mov_b64 s[{S_T1}:{S_T1+1}], s[0:1]')
        A(f's_mov_b32 s{S_T1+2}, 1280')
        A(f's_mov_b32 s{S_T1+3}, 0x20000')
        A(f'buffer_load_ushort v16, v6, s[{S_T1}:{S_T1+3}], s{sA} offen')
        self.lab(lb)
        lb = self.newlab('BL')
        A(f's_cmp_lg_u32 s{sRT}, 3')
        A(f's_cbranch_scc1 {lb}')
        A(f's_mov_b64 s[{S_T1}:{S_T1+1}], s[{P_B1}:{P_B1+1}]')
        A(f's_mov_b32 s{S_T1+2}, 3456')
        A(f's_mov_b32 s{S_T1+3}, 0x20000')
        A(f's_mul_i32 s{sA}, s{sX}, 7')
        A(f's_add_u32 s{sA}, s{sA}, s{sRU}')
        A(f's_lshl_b32 s{sA}, s{sA}, 6')
        A('v_and_b32 v6, 31, v2')
        A('v_lshlrev_b32 v6, 1, v6')
        A(f'buffer_load_ushort v17, v6, s[{S_T1}:{S_T1+3}], s{sA} offen')
        self.lab(lb)

        A('v_and_b32 v3, 15, v2')
        A('v_lshrrev_b32 v4, 4, v2')
        A('v_lshlrev_b32 v32, 8, v3')
        A('v_lshl_add_u32 v32, v4, 4, v32')
        A('v_lshl_add_u32 v32, v1, 15, v32')
        A('v_lshlrev_b32 v33, 10, v4')
        A('v_lshl_add_u32 v33, v3, 4, v33')
        A('v_lshl_add_u32 v33, v1, 15, v33')
        pl = self.kplace()
        kall = [(i, j) for i in range(8) for j in range(4)]
        kA = [q for q in kall if pl[q][0] == 'R' or pl[q][1] < 9]
        kB = [q for q in kall if pl[q][0] == 'L' and pl[q][1] >= 9]
        assert len(kA) == 22 and len(kB) == 10

        def kload(q, va=32):
            i, j = q
            kind, val = pl[q]
            if kind == 'R':
                A(f'buffer_load_dwordx4 v[{val}:{val+3}], v{va}, s[{S_K}:{S_K+3}], s{sBLK+i} offen offset:{64*j} nt')
                return
            base, off = (sKL0, val * 1024) if val < 9 else (sKL1, (val - 9) * 1024)
            if val == 18:
                l1, l2 = self.newlab('KLa'), self.newlab('KLb')
                A(f's_cmp_ge_u32 s{sWAVE}, 4')
                A(f's_cbranch_scc1 {l1}')
                A(f's_add_u32 m0, s{base}, {off - 64*j}')
                A('s_nop 0')
                A(f'buffer_load_dwordx4 v{va}, s[{S_K}:{S_K+3}], s{sBLK+i} offen offset:{64*j} nt lds')
                A(f's_branch {l2}')
                self.lab(l1)
                A(f'buffer_load_dwordx4 v[{VK18}:{VK18+3}], v{va}, s[{S_K}:{S_K+3}], s{sBLK+i} offen offset:{64*j} nt')
                self.lab(l2)
                return
            if off - 64 * j >= 0:
                A(f's_add_u32 m0, s{base}, {off - 64*j}')
            else:
                A(f's_sub_u32 m0, s{base}, {64*j - off}')
            A('s_nop 0')
            A(f'buffer_load_dwordx4 v{va}, s[{S_K}:{S_K+3}], s{sBLK+i} offen offset:{64*j} nt lds')

        def vload(k, va=33):
            i, r = k // 4, k % 4
            A(f'buffer_load_dwordx4 v[{VV+4*k}:{VV+4*k+3}], v{va}, s[{S_V}:{S_V+3}], s{sBLK+i} offen offset:{256*r} nt')

        W = self.win
        seq = [('K', q) for q in kA + kB] + [('V', k) for k in range(32)]
        n = 0

        def issue_next(vaK=32, vaV=33):
            nonlocal n
            if n >= W:
                A(f's_waitcnt vmcnt({W-1})')
            kind, q = seq[n]
            if kind == 'K':
                kload(q, vaK)
            else:
                vload(q, vaV)
            n += 1
        for _ in range(8):
            issue_next()
        A('s_waitcnt vmcnt(8)')
        A('s_barrier')
        self.stamp(1)
        lb_tr = self.newlab('TR')
        A(f's_cmp_eq_u32 s{sRT}, 0')
        A(f's_cbranch_scc1 {lb_tr}')
        A(f's_mov_b32 s{sA}, 320')
        A(f's_cmp_eq_u32 s{sRT}, 2')
        A(f's_cselect_b32 s{sA}, 256, s{sA}')
        A(f's_cmp_eq_u32 s{sRT}, 4')
        A(f's_cselect_b32 s{sA}, 112, s{sA}')
        A('v_and_b32 v3, 3, v2')
        A('v_bfe_u32 v4, v2, 2, 2')
        A('v_lshrrev_b32 v5, 4, v2')
        A('v_lshrrev_b32 v6, 1, v3')
        A(f'v_mul_u32_u24 v6, s{sA}, v6')
        A('v_lshl_add_u32 v6, v5, 3, v6')
        A('v_add_u32 v6, v6, v4')
        A('v_and_b32 v3, 1, v3')
        A('v_lshlrev_b32 v3, 3, v3')
        A('v_lshl_add_u32 v6, v6, 6, v3')
        A(f's_lshl_b32 s{sA}, s{sT}, 4')
        A(f's_mov_b32 s{sBb}, {L_STG0}')
        A(f's_cmp_ge_u32 s{sWAVE}, 4')
        A(f's_cselect_b32 s{sBb}, {L_STG1}, s{sBb}')
        A(f's_add_u32 s{sA}, s{sA}, s{sBb}')
        A(f'v_add_u32 v6, s{sA}, v6')
        for j in range(10):
            if j == 4:
                A(f's_cmp_eq_u32 s{sRT}, 4')
                A(f's_cbranch_scc1 {lb_tr}')
            if j == 8:
                A(f's_cmp_eq_u32 s{sRT}, 2')
                A(f's_cbranch_scc1 {lb_tr}')
            A(f'ds_read_b64_tr_b16 v[{VW+4*j}:{VW+4*j+1}], v6 offset:{2048*j}')
            A(f'ds_read_b64_tr_b16 v[{VW+4*j+2}:{VW+4*j+3}], v6 offset:{2048*j+256}')
        self.lab(lb_tr)
        lb = self.newlab('PS')
        A(f's_cmp_lt_u32 s{sS}, 12')
        A(f's_cbranch_scc1 {lb}')
        A(f's_cmp_ge_u32 s{sWAVE}, 4')
        A(f's_cbranch_scc1 {lb}')
        A('v_lshlrev_b32 v15, 16, v15')
        A('v_lshlrev_b32 v16, 16, v16')
        A(f's_lshl_b32 s{sA}, s{sT}, 8')
        A('v_lshlrev_b32 v3, 2, v2')
        A(f'v_add_u32 v3, s{sA}, v3')
        A(f'ds_write_b32 v3, v15 offset:{L_RES}')
        A('v_and_b32 v3, 7, v2')
        A('v_lshlrev_b32 v3, 2, v3')
        A(f's_lshl_b32 s{sA}, s{sT}, 5')
        A(f'v_add_u32 v3, s{sA}, v3')
        A(f'ds_write_b32 v3, v16 offset:{L_B2}')
        self.lab(lb)
        lb = self.newlab('PB')
        A(f's_cmp_lg_u32 s{sRT}, 3')
        A(f's_cbranch_scc1 {lb}')
        A('v_lshlrev_b32 v17, 16, v17')
        A('v_and_b32 v3, 31, v2')
        A('v_lshlrev_b32 v3, 2, v3')
        A(f'ds_write_b32 v3, v17 offset:{L_B1}')
        self.lab(lb)
        lb = self.newlab('LN0')
        A(f's_cmp_ge_u32 s{sS}, 16')
        A(f's_cbranch_scc1 {lb}')
        self.layernorm(10, 16, 26)
        self.lane(2)
        self.ln_stage_write(10, 2)
        self.lab(lb)
        A('s_waitcnt lgkmcnt(0)')
        A('s_barrier')
        self.stamp(2)
        self.stream_addr(34, 35)
        for _ in range(4):
            issue_next(34, 35)
        lb = self.newlab('Q0')
        A(f's_cmp_lg_u32 s{sRT}, 1')
        A(f's_cbranch_scc1 {lb}')
        self.q_gemm_and_store(True)
        self.vt = 33
        lr = self.newlab('TB')
        A('v_lshlrev_b32 v7, 2, v28')
        self.lab(lr)
        A(f'buffer_load_dword v8, v7, s[{S_DBG}:{S_DBG+3}], 0 offen sc1')
        A('s_waitcnt vmcnt(0)')
        A('v_and_b32 v8, 0x80808080, v8')
        A('v_cmp_ne_u32 vcc, 0x80808080, v8')
        ld = self.newlab('TBD')
        A('s_cmp_eq_u64 vcc, 0')
        A(f's_cbranch_scc1 {ld}')
        self.spin_check(lr, ld)
        self.lab(ld)
        self.mask16()
        A(f'buffer_store_dwordx2 v[4:5], v6, s[{S_WS}:{S_WS+3}], s{sA} offen offset:{MB_Q} sc1')
        self.unmask()
        self.lab(lb)
        self.stamp(3)
        while n < 36:
            issue_next(34, 35)
        qls = self.q_loads(31)
        for l in qls:
            A(l)
        self.lane(30)
        A('v_lshlrev_b32 v30, 2, v30')
        A(f'buffer_load_dword v16, v30, s[{S_DBG}:{S_DBG+3}], 0 offen sc1')
        W_save = W
        for _ in range(8):
            kind, q = seq[n]
            A(f's_waitcnt vmcnt({W + 4})')
            vload(q, 35)
            n += 1
        A('s_waitcnt vmcnt(8)')
        lr, ld = self.newlab('QP'), self.newlab('QPD')
        lchk = self.newlab('QC')
        A(f's_branch {lchk}')
        self.lab(lr)
        for l in qls:
            A(l)
        A(f'buffer_load_dword v16, v30, s[{S_DBG}:{S_DBG+3}], 0 offen sc1')
        A('s_waitcnt vmcnt(0)')
        self.lab(lchk)
        A('v_max3_u32 v17, v0, v1, v2')
        for k in range(3, 15, 2):
            A(f'v_max3_u32 v17, v17, v{k}, v{k+1}')
        A('v_max_u32 v17, v17, v15')
        A('v_cmp_eq_u32 vcc, -1, v17')
        A('v_and_b32 v18, 0x80808080, v16')
        A('v_mov_b32 v19, 0x80808080')
        A(f'v_cmp_ne_u32 s[{sM64}:{sM64+1}], v19, v18')
        A(f's_or_b64 vcc, vcc, s[{sM64}:{sM64+1}]')
        A('s_cmp_eq_u64 vcc, 0')
        A(f's_cbranch_scc1 {ld}')
        self.spin_check(lr, ld)
        self.lab(ld)
        A(f'v_readlane_b32 s{sA}, v16, 0')
        A(f'v_readlane_b32 s{sBb}, v16, 1')
        A('s_nop 1')
        A(f'v_cmp_eq_u32 vcc, s{sA}, v16')
        A(f'v_cmp_eq_u32 s[{sM64}:{sM64+1}], s{sBb}, v16')
        A(f's_mov_b32 s{sM64b}, 0x55555555')
        A(f's_mov_b32 s{sM64b+1}, 0x55555555')
        A(f's_and_b64 vcc, vcc, s[{sM64b}:{sM64b+1}]')
        A(f's_andn2_b64 s[{sM64}:{sM64+1}], s[{sM64}:{sM64+1}], s[{sM64b}:{sM64b+1}]')
        A(f's_or_b64 vcc, vcc, s[{sM64}:{sM64+1}]')
        A('s_cmp_eq_u64 vcc, -1')
        A(f's_cselect_b32 s{sFAST}, 1, 0')
        if self.o.get('slow'):
            A(f's_mov_b32 s{sFAST}, 0')
        self.stamp(4)
        self.qk_softmax(0)
        self.stamp(5)
        self.stream_addr(34, 35)
        self.pv_build(0)
        k = 0
        while n < 64:
            A(f's_waitcnt vmcnt({W-1})')
            vload(seq[n][1], 35)
            n += 1
            landed = n - 1 - W - 32
            while k <= landed:
                if k + 1 < 32:
                    self.pv_build(k + 1)
                else:
                    A('s_nop 1')
                self.pv_mfma(k)
                k += 1
        while k < 32:
            A(f's_waitcnt vmcnt({31 - k})')
            if k + 1 < 32:
                self.pv_build(k + 1)
            else:
                A('s_nop 1')
            self.pv_mfma(k)
            k += 1
        A('s_nop 3')
        self.stamp(6)
        self.o_finish()

        self.lab('L_chain')
        self.cstamp(10)
        self.chain()
        self.lab('L_fin')
        if self.ts:
            self.stamp(10)
            A('s_waitcnt lgkmcnt(0)')
            lb = self.newlab('TSK')
            A(f's_cmp_lg_u32 s{sWAVE}, {self.o.get("tswave", 0)}')
            A(f's_cbranch_scc1 {lb}')
            A('s_lshl_b32 s3, s2, 7')
            A(f's_add_u32 s3, s3, {TS_OFF}')
            A('v_mov_b32 v1, 0')
            A('s_mov_b64 exec, 1')
            for k in range(11):
                A(f'v_mov_b32 v2, s{sTS+2*k}')
                A(f'v_mov_b32 v3, s{sTS+2*k+1}')
                A(f'buffer_store_dwordx2 v[2:3], v1, s[{S_WS}:{S_WS+3}], s3 offen offset:{8*k}')
                A('s_nop 1')
            A('s_mov_b64 exec, -1')
            self.lab(lb)
        self.lab('L_end')
        A('s_endpgm')
        L.append('.section .rodata,"a"')
        L.append('.p2align 6')
        L.append(f'.amdhsa_kernel {NAME}_kernel')
        for d in ['next_free_vgpr 256', 'next_free_sgpr 102', 'accum_offset 256', 'group_segment_fixed_size 0',
                  'kernarg_size 104', 'user_sgpr_count 2', 'user_sgpr_kernarg_segment_ptr 1',
                  'system_sgpr_workgroup_id_x 1', 'float_denorm_mode_32 3']:
            L.append('  .amdhsa_' + d)
        L.append('.end_amdhsa_kernel')
        return '\n'.join(x for x in L if x is not None) + '\n'

    def stream_addr(self, vk, vv, tmp=27):
        A = self.A
        self.lane(vk)
        A(f'v_lshrrev_b32 v{vv}, 4, v{vk}')
        A(f'v_and_b32 v{vk}, 15, v{vk}')
        A(f's_lshl_b32 s{sA}, s{sWAVE}, 15')
        A(f'v_lshlrev_b32 v{vv}, 4, v{vv}')
        A(f'v_lshlrev_b32 v{vk}, 4, v{vk}')
        A(f'v_lshl_add_u32 v{tmp}, v{vk}, 4, v{vv}')
        A(f'v_lshl_add_u32 v{vv}, v{vv}, 6, v{vk}')
        A(f'v_add_u32 v{vk}, s{sA}, v{tmp}')
        A(f'v_add_u32 v{vv}, s{sA}, v{vv}')

    def partial_store(self, mb):
        A = self.A
        for r in range(4):
            A(f'v_min_u32 v{r}, 0xfffffffe, v{r}')
        A(f's_mul_i32 s{sA}, s{sX}, 20480')
        A(f's_lshl_b32 s{sBb}, s{sRU}, 2')
        A(f's_add_u32 s{sBb}, s{sBb}, s{sT}')
        A(f's_lshl_b32 s{sBb}, s{sBb}, 8')
        A(f's_add_u32 s{sA}, s{sA}, s{sBb}')
        A(f's_add_u32 s{sA}, s{sA}, s{sLOFF}')
        A(f's_add_u32 s{sA}, s{sA}, {mb}')
        A('v_lshlrev_b32 v6, 5, v29')
        A('v_lshl_add_u32 v6, v30, 4, v6')
        self.mask16()
        A(f'buffer_store_dwordx4 v[0:3], v6, s[{S_WS}:{S_WS+3}], s{sA} offen sc1')
        self.unmask()

    def reducer(self, which):
        A = self.A
        lb = self.newlab('RD')
        A(f's_cmp_lt_u32 s{sS}, 12')
        A(f's_cbranch_scc1 {lb}')
        A(f's_cmp_ge_u32 s{sWAVE}, 4')
        A(f's_cbranch_scc1 {lb}')
        self.lane(10)
        A('v_lshlrev_b32 v11, 2, v10')
        A(f's_lshl_b32 s{sA}, s{sT}, 8')
        A(f'v_add_u32 v12, s{sA}, v11')
        A(f'ds_read_b32 v13, v12 offset:{L_RES}')
        if which == 2:
            A('v_and_b32 v14, 7, v10')
            A('v_lshlrev_b32 v14, 2, v14')
            A(f's_lshl_b32 s{sA}, s{sT}, 5')
            A(f'v_add_u32 v14, s{sA}, v14')
            A(f'ds_read_b32 v14, v14 offset:{L_B2}')
        A(f's_sub_u32 s{sC}, s{sS}, 12')
        A(f's_lshl_b32 s{sC}, s{sC}, 2')
        A(f's_add_u32 s{sC}, s{sC}, s{sT}')
        A(f's_lshl_b32 s{sA}, s{sC}, 8')
        A(f's_add_u32 s{sA}, s{sA}, s{sLOFF}')
        A(f's_add_u32 s{sA}, s{sA}, {MB_P1 if which == 1 else MB_P2}')
        A(f'v_add_u32 v15, s{sA}, v11')
        final_lab = None
        if which == 2:
            lf = self.newlab('RF')
            A(f's_cmp_eq_u32 s{sLOFF}, 0')
            A(f's_cbranch_scc1 {lf}')
            A(f's_lshl_b32 s{sA}, s{sX}, 3')
            A(f's_lshl_b64 exec, 0xff, s{sA}')
            self.lab(lf)
        for xs in range(8):
            A(f's_mov_b32 s{sBLK+xs}, {xs*20480}')
        loads = [f'buffer_load_dword v{xs}, v15, s[{S_WS}:{S_WS+3}], s{sBLK+xs} offen sc1' for xs in range(8)]
        self.poll(loads, range(8))
        A('v_add_f32 v0, v0, v1')
        A('v_add_f32 v2, v2, v3')
        A('v_add_f32 v4, v4, v5')
        A('v_add_f32 v6, v6, v7')
        A('v_add_f32 v0, v0, v2')
        A('v_add_f32 v4, v4, v6')
        A('v_add_f32 v0, v0, v4')
        A('v_cvt_pk_bf16_f32 v0, v0, v0')
        A('v_and_b32 v0, 0xffff0000, v0')
        A('s_waitcnt lgkmcnt(0)')
        if which == 2:
            A('v_add_f32 v0, v0, v14')
            A('v_cvt_pk_bf16_f32 v0, v0, v0')
            A('v_and_b32 v0, 0xffff0000, v0')
        A('v_add_f32 v0, v0, v13')
        A('v_cvt_pk_bf16_f32 v0, v0, v0')
        A('v_and_b32 v1, 0xffff0000, v0')
        A(f'ds_write_b32 v12, v1 offset:{L_RES}')
        A('s_nop 0')
        A('v_mov_b32_dpp v2, v1 quad_perm:[1,1,3,3] row_mask:0xf bank_mask:0xf')
        A('v_lshrrev_b32 v1, 16, v1')
        A('v_or_b32 v1, v1, v2')
        A('v_lshlrev_b32 v3, 1, v10')
        A(f's_mov_b32 s{sM64}, 0x55555555')
        A(f's_mov_b32 s{sM64+1}, 0x55555555')
        A(f's_and_b64 exec, exec, s[{sM64}:{sM64+1}]')
        if which == 2:
            lf, le = self.newlab('RO'), self.newlab('ROE')
            A(f's_cmp_eq_u32 s{sLOFF}, 0')
            A(f's_cbranch_scc1 {lf}')
            A(f's_mul_i32 s{sA}, s{sX}, 1280')
            A(f's_lshl_b32 s{sBb}, s{sC}, 4')
            A(f's_add_u32 s{sA}, s{sA}, s{sBb}')
            A('v_and_b32 v3, 15, v3')
            A(f'buffer_store_dword v1, v3, s[{S_OUT}:{S_OUT+3}], s{sA} offen')
            A(f's_branch {le}')
            self.lab(lf)
        A('v_min_u32 v1, 0xfffffffe, v1')
        A(f's_mul_i32 s{sA}, s{sX}, 10240')
        A(f's_lshl_b32 s{sBb}, s{sC}, 7')
        A(f's_add_u32 s{sA}, s{sA}, s{sBb}')
        A(f's_add_u32 s{sA}, s{sA}, s{sLOFF}')
        A(f's_add_u32 s{sA}, s{sA}, {MB_X1 if which == 1 else MB_X2}')
        self.store_local(f'buffer_store_dword v1, v3, s[{S_WS}:{S_WS+3}], s{sA} offen')
        if which == 2:
            self.lab(le)
        A('s_mov_b64 exec, -1')
        self.lab(lb)

    def ln_gather(self, mb, nln):
        A = self.A
        self.lane(34)
        A('v_lshrrev_b32 v33, 2, v34')
        A('v_lshlrev_b32 v33, 7, v33')
        A('v_and_b32 v32, 3, v34')
        A('v_lshl_add_u32 v33, v32, 2, v33')
        A(f's_mul_i32 s{sD}, s{sX}, 10240')
        A(f's_lshl_b32 s{sBb}, s{sWAVE}, 4')
        A(f's_add_u32 s{sD}, s{sD}, s{sBb}')
        A(f's_add_u32 s{sD}, s{sD}, s{sLOFF}')
        A(f's_add_u32 s{sD}, s{sD}, {mb}')
        A(f's_add_u32 s{sCNT}, s{sD}, 4096')
        A(f's_add_u32 s{sCNT+1}, s{sD}, 8192')
        so = [sD, sD, sCNT, sCNT, sCNT + 1]
        io = [0, 2048, 0, 2048, 0]
        loads = [f'buffer_load_dword v{i}, v33, s[{S_WS}:{S_WS+3}], s{so[i]} offen offset:{io[i]} sc1' for i in range(5)]
        self.poll(loads, range(5))
        if nln == 2:
            self.cstamp(4)
        else:
            self.cstamp(9)
        for _ in range(nln):
            self.layernorm(0, 6, 16)
        self.ln_stage_write(0, 34)

    def chain(self):
        A = self.A
        lb = self.newlab('WO')
        A(f's_cmp_lt_u32 s{sS}, 20')
        A(f's_cbranch_scc1 {lb}')
        self.lane(34)
        A('v_lshlrev_b32 v34, 4, v34')
        A(f's_lshl_b32 s{sA}, s{sX}, 13')
        A(f's_lshl_b32 s{sBb}, s{sWAVE}, 10')
        A(f's_add_u32 s{sA}, s{sA}, s{sBb}')
        A(f's_add_u32 s{sA}, s{sA}, s{sLOFF}')
        A(f's_add_u32 s{sD}, s{sA}, {MB_O}')
        self.poll([f'buffer_load_dwordx4 v[0:3], v34, s[{S_WS}:{S_WS+3}], s{sD} offen sc1'], range(4))
        self.cstamp(1)
        A(f's_mul_i32 s{sA}, s{sWAVE}, 1040')
        A(f'v_add_u32 v34, s{sA}, v34')
        A('s_barrier')
        A(f'ds_write_b128 v34, v[0:3] offset:{L_STAGE}')
        A('s_waitcnt lgkmcnt(0)')
        A('s_barrier')
        A(f's_cmp_lg_u32 s{sRT}, 2')
        A(f's_cbranch_scc1 {lb}')
        self.gemm(8, 256, 1040)
        self.partial_store(MB_P1)
        self.lab(lb)
        self.cstamp(2)
        self.reducer(1)
        self.cstamp(3)
        lb = self.newlab('M1')
        A(f's_cmp_lt_u32 s{sS}, 16')
        A(f's_cbranch_scc1 {lb}')
        A(f's_cmp_ge_u32 s{sS}, 23')
        A(f's_cbranch_scc1 {lb}')
        A(f's_sub_u32 s{sA}, s{sS}, 16')
        A(f's_lshl_b32 s{sA}, s{sA}, 2')
        A(f's_cmp_ge_u32 s{sA}, s{sNCH}')
        A(f's_cbranch_scc1 {lb}')
        self.ln_gather(MB_X1, 2)
        A('s_barrier')
        A(f's_cmp_lg_u32 s{sRT}, 3')
        A(f's_cbranch_scc1 {lb}')
        self.lane(24)
        A('v_lshrrev_b32 v24, 4, v24')
        A('v_and_b32 v24, 1, v24')
        A('v_lshlrev_b32 v24, 4, v24')
        A(f's_lshl_b32 s{sA}, s{sT}, 5')
        A(f'v_add_u32 v24, s{sA}, v24')
        A(f'ds_read_b128 v[24:27], v24 offset:{L_B1}')
        A('s_waitcnt lgkmcnt(0)')
        self.gemm(10, 320, 1296)
        A('v_cvt_pk_bf16_f32 v4, v0, v1')
        A('v_cvt_pk_bf16_f32 v5, v2, v3')
        A('v_lshlrev_b32 v0, 16, v4')
        A('v_and_b32 v1, 0xffff0000, v4')
        A('v_lshlrev_b32 v2, 16, v5')
        A('v_and_b32 v3, 0xffff0000, v5')
        for r in range(4):
            A(f'v_add_f32 v{r}, v{r}, v{24+r}')
        A('v_cvt_pk_bf16_f32 v4, v0, v1')
        A('v_cvt_pk_bf16_f32 v5, v2, v3')
        A('v_lshlrev_b32 v0, 16, v4')
        A('v_and_b32 v1, 0xffff0000, v4')
        A('v_lshlrev_b32 v2, 16, v5')
        A('v_and_b32 v3, 0xffff0000, v5')
        import struct, math
        c1 = 2.0 * math.sqrt(2.0 / math.pi) * math.log2(math.e)
        c2 = c1 * 0.044715
        f2u = lambda f: struct.unpack('<I', struct.pack('<f', f))[0]
        A(f'v_mov_b32 v12, 0x{f2u(c2):08x}')
        A(f'v_mov_b32 v13, 0x{f2u(c1):08x}')
        for r in range(4):
            A(f'v_mul_f32 v{4+r}, v{r}, v{r}')
        for r in range(4):
            A(f'v_fma_f32 v{4+r}, v{4+r}, v12, v13')
        for r in range(4):
            A(f'v_mul_f32 v{4+r}, v{4+r}, v{r}')
        for r in range(4):
            A(f'v_exp_f32 v{4+r}, -v{4+r}')
        A('s_nop 0')
        for r in range(4):
            A(f'v_add_f32 v{4+r}, 1.0, v{4+r}')
        for r in range(4):
            A(f'v_rcp_f32 v{4+r}, v{4+r}')
        A('s_nop 0')
        for r in range(4):
            A(f'v_mul_f32 v{r}, v{r}, v{4+r}')
        A('v_cvt_pk_bf16_f32 v4, v0, v1')
        A('v_cvt_pk_bf16_f32 v5, v2, v3')
        A('v_min_u32 v4, 0xfffffffe, v4')
        A('v_min_u32 v5, 0xfffffffe, v5')
        A(f's_lshl_b32 s{sA}, s{sX}, 12')
        A(f's_lshl_b32 s{sBb}, s{sRU}, 2')
        A(f's_add_u32 s{sBb}, s{sBb}, s{sT}')
        A(f's_lshl_b32 s{sBb}, s{sBb}, 7')
        A(f's_add_u32 s{sA}, s{sA}, s{sBb}')
        A(f's_add_u32 s{sA}, s{sA}, s{sLOFF}')
        A(f's_add_u32 s{sA}, s{sA}, {MB_H}')
        A('v_lshlrev_b32 v6, 4, v29')
        A('v_lshl_add_u32 v6, v30, 3, v6')
        self.mask16()
        self.store_local(f'buffer_store_dwordx2 v[4:5], v6, s[{S_WS}:{S_WS+3}], s{sA} offen')
        self.unmask()
        self.lab(lb)
        self.cstamp(5)
        lb = self.newlab('M2')
        lb2 = self.newlab('M2b')
        A(f's_cmp_ge_u32 s{sS}, 20')
        A(f's_cbranch_scc1 {lb}')
        A(f's_cmp_lt_u32 s{sWAVE}, 4')
        A(f's_cbranch_scc1 {lb2}')
        self.lane(34)
        A('v_and_b32 v33, 7, v34')
        A('v_lshrrev_b32 v34, 3, v34')
        A(f's_lshl_b32 s{sA}, s{sT}, 3')
        A(f'v_add_u32 v34, s{sA}, v34')
        A('v_and_b32 v32, 15, v34')
        A('v_lshrrev_b32 v31, 4, v34')
        A('v_mad_u32_u24 v31, v31, 14, v32')
        A('v_cmp_gt_u32 vcc, 14, v32')
        A(f'v_cmp_gt_u32 s[{sM64}:{sM64+1}], s{sNCH}, v31')
        A(f's_and_b64 s[{sM64b}:{sM64b+1}], vcc, s[{sM64}:{sM64+1}]')
        A('v_lshlrev_b32 v31, 7, v31')
        A('v_lshl_add_u32 v31, v33, 4, v31')
        A('v_mul_u32_u24 v33, 528, v33')
        A('v_lshl_add_u32 v34, v34, 4, v33')
        for r in range(4):
            A(f'v_mov_b32 v{r}, 0')
        A(f's_lshl_b32 s{sA}, s{sX}, 12')
        A(f's_add_u32 s{sA}, s{sA}, s{sLOFF}')
        A(f's_add_u32 s{sD}, s{sA}, {MB_H}')
        A(f's_mov_b64 exec, s[{sM64b}:{sM64b+1}]')
        lz = self.newlab('M2z')
        A(f's_cbranch_execz {lz}')
        self.poll([f'buffer_load_dwordx4 v[0:3], v31, s[{S_WS}:{S_WS+3}], s{sD} offen sc1'], range(4))
        self.lab(lz)
        A('s_mov_b64 exec, -1')
        self.cstamp(6)
        A('s_barrier')
        A(f'ds_write_b128 v34, v[0:3] offset:{L_STAGE}')
        A('s_waitcnt lgkmcnt(0)')
        lb3 = self.newlab('M2c')
        A(f's_branch {lb3}')
        self.lab(lb2)
        A('s_barrier')
        self.lab(lb3)
        A('s_barrier')
        A(f's_cmp_lg_u32 s{sRT}, 4')
        A(f's_cbranch_scc1 {lb}')
        self.gemm(4, 128, 528)
        self.partial_store(MB_P2)
        self.lab(lb)
        self.cstamp(7)
        self.reducer(2)
        self.cstamp(8)
        A(f's_cmp_lg_u32 s{sLOFF}, 0')
        A('s_cbranch_scc1 L_fin')
        self.stamp(7)
        lb = self.newlab('Q1')
        A(f's_cmp_ge_u32 s{sS}, 16')
        A(f's_cbranch_scc1 {lb}')
        self.ln_gather(MB_X2, 1)
        A('s_barrier')
        A(f's_cmp_lg_u32 s{sRT}, 1')
        A(f's_cbranch_scc1 {lb}')
        A(f's_mov_b32 s{sLOFF}, {LSTRIDE}')
        self.q_gemm_and_store(False)
        self.mask16()
        self.store_local(f'buffer_store_dwordx2 v[4:5], v6, s[{S_WS}:{S_WS+3}], s{sA} offen offset:{MB_Q}')
        self.unmask()
        self.lab(lb)
        A(f's_mov_b32 s{sLOFF}, {LSTRIDE}')
        qls = self.q_loads(31)
        self.poll(qls, range(16))
        self.stamp(8)
        self.qk_softmax(1)
        self.pv_build(0)
        for k in range(32):
            if k + 1 < 32:
                self.pv_build(k + 1)
            else:
                A('s_nop 1')
            self.pv_mfma(k)
        A('s_nop 3')
        self.stamp(9)
        self.o_finish()
        A('s_branch L_chain')

    def cstamp(self, k):
        cm = self.o.get('cmode')
        if self.ts and cm is not None:
            lb = self.newlab('CS')
            self.A(f's_cmp_lg_u32 s{sLOFF}, {cm * LSTRIDE}')
            self.A(f's_cbranch_scc1 {lb}')
            self.A(f's_memrealtime s[{sTS+2*k}:{sTS+2*k+1}]')
            self.lab(lb)


if __name__ == '__main__':
    ap = argparse.ArgumentParser()
    ap.add_argument('-o', default='cdna_kernels/' + NAME + '.s')
    ap.add_argument('--ts', action='store_true')
    ap.add_argument('--win', type=int, default=12)
    ap.add_argument('--slow', action='store_true')
    ap.add_argument('--tswave', type=int, default=0)
    ap.add_argument('--cmode', type=int, default=None)
    a = ap.parse_args()
    g = G(ts=a.ts, win=a.win, opts=dict(slow=a.slow, tswave=a.tswave, cmode=a.cmode))
    open(a.o, 'w').write(g.build())
```

```python
import sys, argparse, struct, math
NAME = 'interleave_layers__sliding_block_cached__mixer_channel_mlp__decode'
HEADER = open('cdna_kernels/' + NAME + '.s.ref').read().split('; Override launch')[0]

LSTRIDE = 0xF0000
MB_P1 = 0x00000
MB_P2 = 0x50000
MB_Q = 0xA0000
MB_O = 0xB0000
MB_X1 = 0xC0000
MB_X2 = 0xD4000
MB_H = 0xE8000
WIN_BYTES = 0x200000
TS_OFF = 0x800000

L_STAGE = 0
L_OP = 10368
L_B1 = 14464
L_XCH = 14720
L_QB = 14848
L_V = 16384
L_STG = 81920
LDS_BYTES = 163840

VK = 32
VV = 160
VW = 216
VRES, VB2 = 248, 249

S_K, S_V, S_WS, S_DBG, S_OUT, S_T0, S_T1 = 16, 20, 24, 28, 32, 36, 40
sX, sS, sH, sB, sWAVE = 44, 45, 46, 47, 48
sRT, sRU = 49, 50
sFAST, sLOFF, sSPIN = 51, 52, 53
sRHO = 54
sNM1 = 55
sA, sBb, sC, sD = 56, 57, 58, 59
sM64, sM64b = 60, 62
sGX = 64
sMW = 65
sBLK = 66
sKLA, sKLB = 74, 75
sE, sF = 76, 77
sLIGHT = 100
sTS = 78
P_X, P_WQ, P_WO, P_W1, P_B1, P_W2 = 4, 6, 8, 10, 12, 14
sONE, sLO, sHI = 4, 5, 6
SPIN_MAX = 400000
f2u = lambda f: struct.unpack('<I', struct.pack('<f', f))[0]


class G:
    vtmp = 31

    def __init__(self, **o):
        self.L = []
        self.o = o
        self.ts = o.get('ts')
        self.nlab = 0

    def A(self, s):
        self.L.append('  ' + s)

    def lab(self, name):
        self.L.append(name + ':')

    def nl(self, p='L'):
        self.nlab += 1
        return f'{p}_{self.nlab}'

    def stamp(self, k):
        if self.ts and (self.o.get('cmode') is None or k == 0):
            self.A(f's_memrealtime s[{sTS+2*k}:{sTS+2*k+1}]')

    def lstamp(self, k0, k1):
        if self.ts and self.o.get('cmode') is None:
            l1, l2 = self.nl('LS'), self.nl('LS')
            self.A(f's_cmp_lg_u32 s{sLOFF}, 0')
            self.A(f's_cbranch_scc1 {l1}')
            self.stamp(k0)
            self.A(f's_branch {l2}')
            self.lab(l1)
            self.stamp(k1)
            self.lab(l2)

    def astamp(self, k):
        if self.o.get('amode'):
            self.cstamp(k, True)

    def cstamp(self, k, am=False):
        cm = self.o.get('cmode')
        if self.ts and cm is not None and bool(self.o.get('amode')) == am:
            lb = self.nl('CS')
            self.A(f's_cmp_lg_u32 s{sLOFF}, {cm * LSTRIDE}')
            self.A(f's_cbranch_scc1 {lb}')
            self.A(f's_memrealtime s[{sTS+2*k}:{sTS+2*k+1}]')
            self.lab(lb)

    def lane(self, v):
        self.A(f'v_mbcnt_lo_u32_b32 v{v}, -1, 0')
        self.A(f'v_mbcnt_hi_u32_b32 v{v}, -1, v{v}')

    @staticmethod
    def kplace():
        pl = {}
        n = r = 0
        for i in range(8):
            nl = 3 if i < 2 else 2
            for j in range(4):
                if j < nl:
                    pl[(i, j)] = ('L', n)
                    n += 1
                else:
                    pl[(i, j)] = ('R', VK + 4 * r)
                    r += 1
        assert n == 18 and r == 14
        return pl

    def spin_check(self, lab_retry):
        self.A(f's_add_u32 s{sSPIN}, s{sSPIN}, 1')
        self.A(f's_cmp_lt_u32 s{sSPIN}, {SPIN_MAX}')
        self.A(f's_cbranch_scc1 {lab_retry}')

    def sent_test(self, regs, t):
        A = self.A
        regs = list(regs)
        if len(regs) == 1:
            A(f'v_cmp_eq_u32 vcc, -1, v{regs[0]}')
            return
        if len(regs) == 2:
            A(f'v_max_u32 v{t}, v{regs[0]}, v{regs[1]}')
            rest = []
        else:
            A(f'v_max3_u32 v{t}, v{regs[0]}, v{regs[1]}, v{regs[2]}')
            rest = regs[3:]
        while rest:
            if len(rest) >= 2:
                A(f'v_max3_u32 v{t}, v{t}, v{rest[0]}, v{rest[1]}')
                rest = rest[2:]
            else:
                A(f'v_max_u32 v{t}, v{t}, v{rest[0]}')
                rest = rest[1:]
        A(f'v_cmp_eq_u32 vcc, -1, v{t}')

    def poll(self, loads, regs):
        A = self.A
        lr, ld = self.nl('P'), self.nl('PD')
        self.lab(lr)
        for l in loads:
            A(l)
        A('s_waitcnt vmcnt(0)')
        self.sent_test(regs, self.vtmp)
        A('s_cmp_eq_u64 vcc, 0')
        A(f's_cbranch_scc1 {ld}')
        self.spin_check(lr)
        self.lab(ld)

    def store_local(self, ins):
        A = self.A
        l1, l2 = self.nl('SL'), self.nl('SE')
        A(f's_cmp_eq_u32 s{sFAST}, 0')
        A(f's_cbranch_scc1 {l1}')
        A(ins)
        A(f's_branch {l2}')
        self.lab(l1)
        A(ins + ' sc1')
        self.lab(l2)

    def wave_reduce(self, items):
        A = self.A
        steps = ['row_shr:1', 'row_shr:2', 'row_shr:4', 'row_shr:8', 'row_bcast:15 row_mask:0xa', 'row_bcast:31 row_mask:0xc']
        for st in steps:
            pad = 2 - (len(items) - 1)
            if pad > 0:
                A(f's_nop {pad-1}')
            for (r, op) in items:
                m = st if 'row_mask' in st else st + ' row_mask:0xf'
                A(f'{op}_dpp v{r}, v{r}, v{r} {m} bank_mask:0xf')
        A('s_nop 1')

    def mask16(self):
        self.A('s_mov_b32 exec_lo, 0x00ff00ff')
        self.A('s_mov_b32 exec_hi, 0')

    def unmask(self):
        self.A('s_mov_b64 exec, -1')

    def layernorm(self, pk, f, t, shifted=True):
        A = self.A
        s1, s2, d0 = t, t + 2, t + 4
        if shifted:
            A(f'v_readfirstlane_b32 s{sA}, v{pk}')
            A(f's_lshl_b32 s{sA}, s{sA}, 16')
            A(f's_xor_b32 s{sBb}, s{sA}, 0x80000000')
            A(f'v_mov_b32 v{d0}, s{sBb}')
            for i in range(5):
                A(f'v_dot2_f32_bf16 v{f+2*i}, v{pk+i}, s{sLO}, v{d0}')
                A(f'v_dot2_f32_bf16 v{f+2*i+1}, v{pk+i}, s{sHI}, v{d0}')
            A(f'v_pk_add_f32 v[{s1}:{s1+1}], v[{f}:{f+1}], v[{f+2}:{f+3}]')
            A(f'v_pk_mul_f32 v[{s2}:{s2+1}], v[{f}:{f+1}], v[{f}:{f+1}]')
            for i in range(1, 5):
                if i >= 2:
                    A(f'v_pk_add_f32 v[{s1}:{s1+1}], v[{f+2*i}:{f+2*i+1}], v[{s1}:{s1+1}]')
                A(f'v_pk_fma_f32 v[{s2}:{s2+1}], v[{f+2*i}:{f+2*i+1}], v[{f+2*i}:{f+2*i+1}], v[{s2}:{s2+1}]')
            A(f'v_add_f32 v{s1}, v{s1}, v{s1+1}')
            A(f'v_add_f32 v{s2}, v{s2}, v{s2+1}')
        else:
            for i in range(5):
                c1 = '0' if i == 0 else f'v{s1}'
                c2 = '0' if i == 0 else f'v{s2}'
                A(f'v_dot2_f32_bf16 v{s1}, v{pk+i}, s{sONE}, {c1}')
                A(f'v_dot2_f32_bf16 v{s2}, v{pk+i}, v{pk+i}, {c2}')
            A('s_nop 1')
        self.wave_reduce([(s1, 'v_add_f32'), (s2, 'v_add_f32')])
        A(f'v_readlane_b32 s{sBb}, v{s1}, 63')
        A(f'v_readlane_b32 s{sC}, v{s2}, 63')
        A(f'v_mov_b32 v{d0}, 0x3acccccd')
        A('s_nop 0')
        A(f'v_mul_f32 v{s1}, s{sBb}, v{d0}')
        A(f'v_mul_f32 v{s2}, s{sC}, v{d0}')
        A(f'v_fma_f32 v{s2}, -v{s1}, v{s1}, v{s2}')
        if shifted:
            A(f'v_add_f32 v{s1}, s{sA}, v{s1}')
        A(f'v_max_f32 v{s2}, 0, v{s2}')
        A(f'v_cvt_pk_bf16_f32 v{d0}, v{s1}, v{s2}')
        A(f'v_and_b32 v{s2}, 0xffff0000, v{d0}')
        A(f'v_add_f32 v{s2}, 0x3727c5ac, v{s2}')
        A(f'v_lshlrev_b32 v{s1}, 16, v{d0}')
        A(f'v_cvt_pk_bf16_f32 v{s2}, v{s2}, v{s2}')
        A(f'v_and_b32 v{s2}, 0xffff0000, v{s2}')
        A(f'v_sqrt_f32 v{s2}, v{s2}')
        if shifted:
            A(f'v_sub_f32 v{s1}, s{sA}, v{s1}')
        else:
            A(f'v_sub_f32 v{s1}, 0, v{s1}')
        A(f'v_cvt_pk_bf16_f32 v{s2}, v{s2}, v{s2}')
        A(f'v_and_b32 v{s2}, 0xffff0000, v{s2}')
        A(f'v_rcp_f32 v{s2}, v{s2}')
        if shifted:
            for i in range(5):
                A(f'v_pk_add_f32 v[{f+2*i}:{f+2*i+1}], v[{f+2*i}:{f+2*i+1}], v[{s1}:{s1+1}] op_sel_hi:[1,0]')
        else:
            for i in range(5):
                A(f'v_dot2_f32_bf16 v{f+2*i}, v{pk+i}, s{sLO}, v{s1}')
                A(f'v_dot2_f32_bf16 v{f+2*i+1}, v{pk+i}, s{sHI}, v{s1}')
        for i in range(5):
            A(f'v_cvt_pk_bf16_f32 v{pk+i}, v{f+2*i}, v{f+2*i+1}')
        for i in range(5):
            A(f'v_lshlrev_b32 v{f+2*i}, 16, v{pk+i}')
            A(f'v_and_b32 v{f+2*i+1}, 0xffff0000, v{pk+i}')
        for i in range(5):
            A(f'v_pk_mul_f32 v[{f+2*i}:{f+2*i+1}], v[{f+2*i}:{f+2*i+1}], v[{s2}:{s2+1}] op_sel_hi:[1,0]')
        for i in range(5):
            A(f'v_cvt_pk_bf16_f32 v{pk+i}, v{f+2*i}, v{f+2*i+1}')

    def ln_stage_write(self, pk, va4):
        A = self.A
        A(f's_mul_i32 s{sA}, s{sWAVE}, 1296')
        A(f'v_add_u32 v{va4}, s{sA}, v{va4}')
        for i in range(5):
            A(f'ds_write_b32 v{va4}, v{pk+i} offset:{L_STAGE + 256*i}')
        A('s_waitcnt lgkmcnt(0)')

    def gemm_pre(self, Kh, RS):
        A = self.A
        self.lane(24)
        A('v_and_b32 v25, 15, v24')
        A('v_lshrrev_b32 v26, 4, v24')
        A('v_and_b32 v27, 7, v25')
        A('v_lshrrev_b32 v28, 3, v25')
        A(f'v_mul_u32_u24 v27, {RS}, v27')
        A(f'v_mul_u32_u24 v28, {Kh*2}, v28')
        A('v_lshl_add_u32 v27, v26, 4, v27')
        A('v_add_u32 v27, v27, v28')

    def gemm(self, S, NT=5):
        A = self.A
        T = [4 + 4 * k for k in range(NT)]
        for j in range(min(NT, S)):
            A(f'ds_read_b128 v[{T[j]}:{T[j]+3}], v27 offset:{L_STAGE + 64*j}')
        for j in range(S):
            issued = min(S, j + NT)
            A(f's_waitcnt lgkmcnt({issued - j - 1})')
            c = '0' if j == 0 else 'v[0:3]'
            A(f'v_mfma_f32_16x16x32_bf16 v[0:3], v[{VW+4*j}:{VW+4*j+3}], v[{T[j%NT]}:{T[j%NT]+3}], {c}')
            if j + NT < S:
                A(f'ds_read_b128 v[{T[j%NT]}:{T[j%NT]+3}], v27 offset:{L_STAGE + 64*(j+NT)}')
        self.combine()

    def combine(self):
        A = self.A
        A('s_nop 7')
        A('s_nop 0')
        for r in range(4):
            A(f'v_mov_b32_dpp v{4+r}, v{r} row_ror:8 row_mask:0xf bank_mask:0xf')
        A('s_nop 0')
        for r in range(4):
            A(f'v_permlane32_swap_b32 v{4+r}, v{8+r}')
        A('s_nop 0')
        for r in range(4):
            A(f'v_add_f32 v{r}, v{r}, v{8+r}')

    def p_addr_pre(self, mb):
        A = self.A
        A(f's_mul_i32 s{sA}, s{sX}, 20480')
        A(f's_lshl_b32 s{sBb}, s{sRU}, 3')
        A(f's_add_u32 s{sBb}, s{sBb}, s{sWAVE}')
        A(f's_lshl_b32 s{sBb}, s{sBb}, 8')
        A(f's_add_u32 s{sA}, s{sA}, s{sBb}')
        A(f's_lshr_b32 s{sBb}, s{sA}, 13')
        A(f's_lshl_b32 s{sBb}, s{sBb}, 14')
        A(f's_and_b32 s{sA}, s{sA}, 8191')
        A(f's_add_u32 s{sA}, s{sA}, s{sBb}')
        A(f's_add_u32 s{sA}, s{sA}, s{sLOFF}')
        A(f's_add_u32 s{sA}, s{sA}, {mb}')
        A(f's_add_u32 s{sF}, s{sA}, s{sRHO}')
        A(f's_xor_b32 s{sE}, s{sF}, 8192')
        A('v_lshlrev_b32 v29, 5, v25')
        A('v_lshl_add_u32 v29, v26, 4, v29')

    def p_store(self):
        A = self.A
        for r in range(4):
            A(f'v_min_u32 v{r}, 0xfffffffe, v{r}')
        self.mask16()
        A(f'buffer_store_dwordx4 v[0:3], v29, s[{S_WS}:{S_WS+3}], s{sE} offen sc1')
        A(f'buffer_store_dwordx4 v[0:3], v29, s[{S_WS}:{S_WS+3}], s{sF} offen sc1')
        self.unmask()

    def q_addr_pre(self, loff):
        A = self.A
        A(f's_lshl_b32 s{sA}, s{sX}, 6')
        A(f's_lshl_b32 s{sBb}, s{sRU}, 3')
        A(f's_add_u32 s{sA}, s{sA}, s{sBb}')
        A(f's_add_u32 s{sA}, s{sA}, s{sWAVE}')
        A(f's_lshl_b32 s{sA}, s{sA}, 7')
        A(f's_add_u32 s{sE}, s{sA}, {MB_Q + loff}')
        A('v_lshlrev_b32 v29, 4, v25')
        A('v_lshl_add_u32 v29, v26, 3, v29')

    def pack4(self):
        A = self.A
        A('v_cvt_pk_bf16_f32 v4, v0, v1')
        A('v_cvt_pk_bf16_f32 v5, v2, v3')
        A('v_min_u32 v4, 0xfffffffe, v4')
        A('v_min_u32 v5, 0xfffffffe, v5')

    def q_loads(self, va):
        A = self.A
        self.lane(va)
        A(f'v_lshrrev_b32 v{va}, 4, v{va}')
        A(f'v_lshlrev_b32 v{va}, 7, v{va}')
        A(f's_lshl_b32 s{sA}, s{sH}, 11')
        A(f's_lshl_b32 s{sBb}, s{sB}, 4')
        A(f's_add_u32 s{sA}, s{sA}, s{sBb}')
        A(f's_add_u32 s{sA}, s{sA}, s{sLOFF}')
        A(f's_add_u32 s{sD}, s{sA}, {MB_Q}')
        return [f'buffer_load_dwordx4 v[{4*j}:{4*j+3}], v{va}, s[{S_WS}:{S_WS+3}], s{sD} offen offset:{512*j} sc1' for j in range(4)]

    def qk_part1(self):
        A = self.A
        D = [16, 20]
        C0, C1 = 28, 29
        A('s_waitcnt lgkmcnt(0)')
        A(f's_mov_b32 s{sM64}, 0x00010001')
        A(f's_mov_b32 s{sM64+1}, 0x00010001')

        def compact(i):
            d = D[i % 2]
            A(f's_lshl_b64 s[{sM64b}:{sM64b+1}], s[{sM64}:{sM64+1}], 1')
            A(f'v_cndmask_b32 v{C0}, v{C0}, v{d}, s[{sM64}:{sM64+1}]')
            A(f'v_cndmask_b32 v{C1}, v{C1}, v{d+1}, s[{sM64}:{sM64+1}]')
            A(f'v_cndmask_b32 v{C0}, v{C0}, v{d+2}, s[{sM64b}:{sM64b+1}]')
            A(f'v_cndmask_b32 v{C1}, v{C1}, v{d+3}, s[{sM64b}:{sM64b+1}]')
            A(f's_lshl_b64 s[{sM64}:{sM64+1}], s[{sM64}:{sM64+1}], 2')
        for i in range(8):
            d = D[i % 2]
            for j in range(4):
                c = '0' if j == 0 else f'v[{d}:{d+3}]'
                k = VK + 16 * i + 4 * j
                A(f'v_mfma_f32_16x16x32_bf16 v[{d}:{d+3}], v[{k}:{k+3}], v[{4*j}:{4*j+3}], {c}')
                if j == 2 and i > 0:
                    A('s_nop 3')
                    compact(i - 1)
        A('s_nop 7')
        compact(7)
        self.astamp(2)
        a0, a1, t0, m = 16, 17, 18, 19
        A(f'v_cvt_pk_bf16_f32 v{t0}, v{C0}, v{C1}')
        A(f'v_lshlrev_b32 v{a0}, 16, v{t0}')
        A(f'v_and_b32 v{a1}, 0xffff0000, v{t0}')
        A(f'v_mul_f32 v{a0}, 0x3db504f3, v{a0}')
        A(f'v_mul_f32 v{a1}, 0x3db504f3, v{a1}')
        A(f'v_cvt_pk_bf16_f32 v{t0}, v{a0}, v{a1}')
        A(f'v_lshlrev_b32 v{a0}, 16, v{t0}')
        A(f'v_and_b32 v{a1}, 0xffff0000, v{t0}')
        A(f'v_mov_b32 v{t0}, 0xff7fffff')
        A(f'v_max3_f32 v{m}, v{a0}, v{a1}, v{t0}')
        self.wave_reduce([(m, 'v_max_f32')])
        A(f'v_readlane_b32 s{sMW}, v{m}, 63')
        A('s_nop 1')
        A(f'v_subrev_f32 v{a0}, s{sMW}, v{a0}')
        A(f'v_subrev_f32 v{a1}, s{sMW}, v{a1}')
        A(f'v_mul_f32 v{a0}, 0x3fb8aa3b, v{a0}')
        A(f'v_mul_f32 v{a1}, 0x3fb8aa3b, v{a1}')
        A(f'v_exp_f32 v{a0}, v{a0}')
        A(f'v_exp_f32 v{a1}, v{a1}')
        A('s_nop 0')
        A(f'v_add_f32 v{m}, v{a0}, v{a1}')
        self.wave_reduce([(m, 'v_add_f32')])
        A(f'v_readlane_b32 s{sBb}, v{m}, 63')
        A(f's_lshl_b32 s{sC}, s{sWAVE}, 3')
        A(f'v_mov_b32 v20, s{sMW}')
        A(f'v_mov_b32 v21, s{sBb}')
        A(f'v_mov_b32 v22, s{sC}')
        A('s_mov_b64 exec, 1')
        A(f'ds_write_b64 v22, v[20:21] offset:{L_XCH}')
        A('s_mov_b64 exec, -1')

    def softmax_part2(self):
        A = self.A
        a0, a1 = 16, 17
        self.lane(22)
        A('v_and_b32 v23, 7, v22')
        A('v_lshlrev_b32 v23, 3, v23')
        A('v_and_b32 v22, 15, v22')
        A('v_and_b32 v18, 1, v22')
        A('v_lshlrev_b32 v18, 4, v18')
        A('v_mov_b32 v19, 0xffff')
        A('v_lshlrev_b32 v18, v18, v19')
        A('v_lshrrev_b32 v22, 1, v22')
        for jj in range(2):
            A(f'v_cmp_eq_u32 vcc, {jj}, v22')
            A('s_nop 1')
            A(f'v_cndmask_b32 v{14+jj}, 0, v18, vcc')
        A('s_waitcnt lgkmcnt(0)')
        A('s_barrier')
        self.astamp(4)
        A(f'ds_read_b64 v[20:21], v23 offset:{L_XCH}')
        A('s_waitcnt lgkmcnt(0)')
        A('v_mov_b32 v22, v20')
        for k in (1, 2, 4):
            A('s_nop 1')
            A(f'v_max_f32_dpp v22, v22, v22 row_ror:{k} row_mask:0xf bank_mask:0xf')
        A('v_sub_f32 v20, v20, v22')
        A(f'v_sub_f32 v23, s{sMW}, v22')
        A('v_mul_f32 v20, 0x3fb8aa3b, v20')
        A('v_mul_f32 v23, 0x3fb8aa3b, v23')
        A('v_exp_f32 v20, v20')
        A('v_exp_f32 v23, v23')
        A('s_nop 0')
        A('v_mul_f32 v21, v21, v20')
        A(f'v_mul_f32 v{a0}, v{a0}, v23')
        A(f'v_mul_f32 v{a1}, v{a1}, v23')
        for k in (1, 2, 4):
            if k > 1:
                A('s_nop 1')
            A(f'v_add_f32_dpp v21, v21, v21 row_ror:{k} row_mask:0xf bank_mask:0xf')
        A('v_rcp_f32 v21, v21')
        A('s_nop 0')
        A(f'v_mul_f32 v{a0}, v{a0}, v21')
        A(f'v_mul_f32 v{a1}, v{a1}, v21')
        A(f'v_cvt_pk_bf16_f32 v12, v{a0}, v{a0}')
        A(f'v_cvt_pk_bf16_f32 v13, v{a1}, v{a1}')
        A('s_nop 1')

    def pv_build(self, oc):
        A = self.A
        A(f'v_and_b32_dpp v8, v12, v14 row_newbcast:{oc} row_mask:0xf bank_mask:0xf')
        A(f'v_and_b32_dpp v9, v12, v15 row_newbcast:{oc} row_mask:0xf bank_mask:0xf')
        A(f'v_and_b32_dpp v10, v13, v14 row_newbcast:{oc} row_mask:0xf bank_mask:0xf')
        A(f'v_and_b32_dpp v11, v13, v15 row_newbcast:{oc} row_mask:0xf bank_mask:0xf')

    def pv(self):
        A = self.A
        T = [16, 20, 24]
        self.lane(31)
        A('v_and_b32 v29, 15, v31')
        A('v_lshrrev_b32 v30, 4, v31')
        A('v_lshlrev_b32 v28, 3, v29')
        A('v_lshl_add_u32 v28, v30, 9, v28')
        A(f'v_add_u32 v28, s{sKLA}, v28')
        A('v_lshlrev_b32 v30, 6, v30')
        A('v_lshl_add_u32 v29, v29, 2, v30')
        A(f's_lshl_b32 s{sA}, s{sWAVE}, 9')
        A(f'v_add_u32 v29, s{sA}, v29')
        A(f's_lshl_b32 s{sA}, s{sX}, 13')
        A(f's_lshl_b32 s{sBb}, s{sB}, 10')
        A(f's_add_u32 s{sA}, s{sA}, s{sBb}')
        A(f's_and_b32 s{sBb}, s{sH}, 3')
        A(f's_lshl_b32 s{sBb}, s{sBb}, 8')
        A(f's_add_u32 s{sA}, s{sA}, s{sBb}')
        A(f's_add_u32 s{sA}, s{sA}, s{sLOFF}')
        A(f's_add_u32 s{sE}, s{sA}, {MB_O}')
        A('v_lshlrev_b32 v30, 3, v31')
        A('v_lshlrev_b32 v31, 2, v31')
        A('s_waitcnt vmcnt(28)')
        order = self.o.get('pvorder') or [0, 1, 9, 2, 3, 10, 4, 5, 11, 6, 7, 12, 8, 13, 14, 15]
        lq = [(oc, dh) for oc in order if oc < 9 for dh in range(2)]
        issued = 0

        def issue():
            nonlocal issued
            if issued >= len(lq):
                return
            oc, dh = lq[issued]
            t = T[issued % 3]
            if self.o.get('rd2'):
                A(f'ds_read2_b64 v[{t}:{t+3}], v28 offset0:{16*dh} offset1:{16*dh+32}')
                if dh == 1:
                    A('v_add_u32 v28, 2048, v28')
            else:
                A(f'ds_read_b64 v[{t}:{t+1}], v28 offset:{oc*2048 + dh*128}')
                A(f'ds_read_b64 v[{t+2}:{t+3}], v28 offset:{oc*2048 + dh*128 + 256}')
            issued += 1
        for _ in range(3):
            issue()
        first = [True, True]
        li = 0
        for oc in order:
            self.pv_build(oc)
            for dh in range(2):
                d = 4 * dh
                c = '0' if first[dh] else f'v[{d}:{d+3}]'
                first[dh] = False
                if oc < 9:
                    A(f's_waitcnt lgkmcnt({(1 if self.o.get("rd2") else 2) * (issued - li - 1)})')
                    if dh == 0:
                        A('s_nop 0')
                    t = T[li % 3]
                    A(f'v_mfma_f32_16x16x32_bf16 v[{d}:{d+3}], v[{t}:{t+3}], v[8:11], {c}')
                    li += 1
                    issue()
                else:
                    q = 2 * oc + dh
                    r = VV + 4 * (q - 18)
                    if dh == 0:
                        A(f's_waitcnt vmcnt({2 * (31 - q - 1)})')
                        A('s_nop 0')
                    A(f'v_mfma_f32_16x16x32_bf16 v[{d}:{d+3}], v[{r}:{r+3}], v[8:11], {c}')

    def o_finish(self):
        A = self.A
        A('s_mov_b32 exec_lo, 0x000f000f')
        A('s_mov_b32 exec_hi, 0x000f000f')
        A('s_nop 5')
        for dh in range(2):
            for r in range(4):
                A(f'ds_write_b32 v29, v{4*dh+r} offset:{L_OP + 256*dh + 16*r}')
        A('s_mov_b64 exec, -1')
        A('s_waitcnt lgkmcnt(0)')
        A('s_barrier')
        ld = self.nl('OF')
        A(f's_cmp_lg_u32 s{sWAVE}, 0')
        A(f's_cbranch_scc1 {ld}')
        for w in range(8):
            A(f'ds_read_b64 v[{2*w}:{2*w+1}], v30 offset:{L_OP + 512*w}')
        for w in range(1, 8):
            A(f's_waitcnt lgkmcnt({7-w})')
            A(f'v_pk_add_f32 v[0:1], v[0:1], v[{2*w}:{2*w+1}]')
        A('v_cvt_pk_bf16_f32 v0, v0, v1')
        A('v_min_u32 v0, 0xfffffffe, v0')
        self.store_local(f'buffer_store_dword v0, v31, s[{S_WS}:{S_WS+3}], s{sE} offen')
        self.lab(ld)

    def table_wait(self):
        A = self.A
        if self.o.get('notable'):
            return
        A(f's_load_dwordx8 s[8:15], s[{S_DBG}:{S_DBG+1}], 0')
        A('s_waitcnt lgkmcnt(0)')
        lr, ld, lc = self.nl('TB'), self.nl('TBD'), self.nl('TBC')
        A(f's_branch {lc}')
        self.lab(lr)
        A('s_sleep 40')
        A(f's_load_dwordx8 s[8:15], s[{S_DBG}:{S_DBG+1}], 0 glc')
        A('s_waitcnt lgkmcnt(0)')
        self.lab(lc)
        A(f's_and_b32 s{sA}, s8, s9')
        for k in range(10, 16):
            A(f's_and_b32 s{sA}, s{sA}, s{k}')
        A(f's_bitcmp1_b32 s{sA}, 30')
        A(f's_cbranch_scc1 {ld}')
        self.spin_check(lr)
        self.lab(ld)

    def table_decode(self):
        A = self.A
        o = self.o
        A(f's_load_dword s7, s[{S_DBG}:{S_DBG+1}], 128')
        A(f's_mov_b32 s{sFAST}, 0')
        for k in range(8, 16):
            A(f's_bfe_u32 s{sA}, s{k}, {(8 << 16) | 17}')
            A(f's_bfe_u32 s{sBb}, s{k}, {(11 << 16) | 6}')
            A(f's_mul_i32 s{sA}, s{sA}, s{sA}')
            A(f's_lshl_b32 s{sBb}, s{sBb}, 5')
            A(f's_xor_b32 s{sA}, s{sA}, s{sBb}')
            A(f's_or_b32 s{sFAST}, s{sFAST}, s{sA}')
        A(f's_cmp_eq_u32 s{sFAST}, 0')
        A(f's_cselect_b32 s{sFAST}, 1, 0')
        if o.get('slow'):
            A(f's_mov_b32 s{sFAST}, 0')
        A('s_waitcnt lgkmcnt(0)')
        A(f's_and_b32 s{sE}, s7, 0xffff')
        A(f's_lshl_b32 s{sE}, s{sE}, 1')
        A('s_lshr_b32 s7, s7, 16')
        A(f's_cmp_ge_u32 s{sE}, s7')
        A(f's_cselect_b32 s{sE}, 0, 1')
        if o.get('forcepar') is not None:
            A(f's_mov_b32 s{sE}, {o["forcepar"]}')
        A(f's_getreg_b32 s{sA}, hwreg(HW_REG_XCC_ID)')
        A(f's_bfe_u32 s{sA}, s{sA}, {(1 << 16) | 2}')
        A(f's_xor_b32 s{sE}, s{sE}, s{sA}')
        A(f's_lshl_b32 s{sRHO}, s{sE}, 13')

    def probe(self):
        A = self.A
        o = self.o
        A('s_and_b32 s3, s2, 63')
        A('s_lshl_b32 s3, s3, 7')
        A(f's_lshr_b32 s{sA}, s2, 6')
        A(f's_lshl_b32 s{sA}, s{sA}, 14')
        A(f's_add_u32 s3, s3, s{sA}')
        A('s_add_u32 s3, s3, 0x1E0000')
        A(f's_add_u32 s{sM64}, s{S_WS}, s3')
        A(f's_addc_u32 s{sM64+1}, s{S_WS+1}, 0')
        A(f's_load_dword s{sA}, s[{sM64}:{sM64+1}], 0 glc')
        A(f's_load_dword s{sBb}, s[{sM64}:{sM64+1}], 0x2000 glc')
        A('s_waitcnt lgkmcnt(0)')
        A(f's_mov_b32 s{sE}, 0')
        for rep in range(o.get('nprobe', 2)):
            A(f's_memtime s[{sM64b}:{sM64b+1}]')
            A('s_waitcnt lgkmcnt(0)')
            A(f's_load_dword s{sA}, s[{sM64}:{sM64+1}], 0 glc')
            A('s_waitcnt lgkmcnt(0)')
            A(f's_memtime s[{sC}:{sC+1}]')
            A('s_waitcnt lgkmcnt(0)')
            A(f's_load_dword s{sA}, s[{sM64}:{sM64+1}], 0x2000 glc')
            A('s_waitcnt lgkmcnt(0)')
            A(f's_memtime s[{sA}:{sA+1}]')
            A('s_waitcnt lgkmcnt(0)')
            A(f's_lshl_b32 s{sC}, s{sC}, 1')
            A(f's_sub_u32 s{sC}, s{sC}, s{sM64b}')
            A(f's_sub_u32 s{sC}, s{sC}, s{sA}')
            A(f's_add_u32 s{sE}, s{sE}, s{sC}')
        A(f's_lshr_b32 s{sE}, s{sE}, 31')
        A(f's_getreg_b32 s{sA}, hwreg(HW_REG_XCC_ID)')
        A(f's_and_b32 s{sA}, s{sA}, 7')
        A(f's_lshr_b32 s{sF}, s{sA}, 2')
        A(f's_xor_b32 s{sE}, s{sE}, s{sF}')
        A(f's_or_b32 s{sE}, s{sE}, 0x10000')
        A(f'v_mov_b32 v8, s{sE}')
        A('v_mov_b32 v9, 128')
        A('s_mov_b64 exec, 1')
        A(f'buffer_atomic_add v8, v9, s[{S_DBG}:{S_DBG+3}], 0 offen sc1')
        A('s_mov_b64 exec, -1')

    def flag(self):
        A = self.A
        A(f's_lshl_b32 s{sBb}, s{sX}, 2')
        A('v_mov_b32 v8, s7')
        A(f'v_mov_b32 v9, s{sBb}')
        A('s_mov_b64 exec, 1')
        A(f'buffer_atomic_add v8, v9, s[{S_DBG}:{S_DBG+3}], 0 offen sc1')
        A('s_mov_b64 exec, -1')

    def stream_addr(self, vk, vl, vr, tmp):
        A = self.A
        self.lane(tmp)
        A(f's_lshl_b32 s{sA}, s{sWAVE}, 15')
        A(f'v_and_b32 v{vk}, 15, v{tmp}')
        A(f'v_lshrrev_b32 v{vr}, 4, v{tmp}')
        A(f'v_lshlrev_b32 v{vl}, 4, v{vk}')
        A(f'v_lshlrev_b32 v{vk}, 8, v{vk}')
        A(f'v_lshl_add_u32 v{vk}, v{vr}, 4, v{vk}')
        A(f'v_add_u32 v{vk}, s{sA}, v{vk}')
        A(f'v_lshlrev_b32 v{vr}, 10, v{vr}')
        A(f'v_lshrrev_b32 v{tmp}, 1, v{vl}')
        A(f'v_add3_u32 v{vr}, v{vr}, v{tmp}, s{sA}')
        self.lane(tmp)
        A(f'v_add_u32 v{vl}, s{sA}, v{vl}')
        A(f'v_bfe_u32 v{tmp}, v{tmp}, 4, 1')
        A(f'v_lshl_add_u32 v{vl}, v{tmp}, 8, v{vl}')
        self.lane(tmp)
        A(f'v_lshrrev_b32 v{tmp}, 5, v{tmp}')
        A(f'v_lshl_add_u32 v{vl}, v{tmp}, 10, v{vl}')

    def build(self):
        A = self.A
        L = self.L
        o = self.o
        L.append(HEADER.rstrip('\n'))
        L.append(f'; @launch grid=(256,1,1) block=(512,1,1) lds={LDS_BYTES}')
        L.append('.amdgcn_target "amdgcn-amd-amdhsa--gfx950"')
        L.append('.text')
        L.append(f'.globl {NAME}_kernel')
        L.append('.p2align 8')
        L.append(f'.type {NAME}_kernel,@function')
        L.append(f'{NAME}_kernel:')
        A('s_cmp_ge_u32 s2, 256')
        A('s_cbranch_scc1 L_end')
        if self.ts:
            for k in range(1, 11):
                A(f's_mov_b64 s[{sTS+2*k}:{sTS+2*k+1}], 0')
        self.stamp(0)
        A(f's_load_dwordx2 s[{P_X}:{P_X+1}], s[0:1], 0')
        A(f's_load_dwordx4 s[{S_T0}:{S_T0+3}], s[0:1], 8')
        A(f's_load_dwordx4 s[{S_T1}:{S_T1+3}], s[0:1], 24')
        A('s_load_dwordx4 s[68:71], s[0:1], 48')
        A('s_load_dwordx4 s[72:75], s[0:1], 64')
        A('s_load_dwordx4 s[60:63], s[0:1], 80')
        A('s_load_dwordx2 s[64:65], s[0:1], 96')
        A(f's_and_b32 s{sX}, s2, 7')
        A(f's_lshr_b32 s{sS}, s2, 3')
        A(f's_and_b32 s{sH}, s{sS}, 3')
        A(f's_lshl_b32 s{sA}, s{sX}, 2')
        A(f's_add_u32 s{sH}, s{sH}, s{sA}')
        A(f's_lshr_b32 s{sB}, s{sS}, 2')
        A(f's_lshl_b32 s{sA}, s{sB}, 5')
        A(f's_add_u32 s{sA}, s{sA}, s{sH}')
        A(f's_lshl_b32 s{sA}, s{sA}, 20')
        A(f's_add_u32 s{sA}, s{sA}, 0xC0000')
        A('v_lshrrev_b32 v1, 6, v0')
        A('v_and_b32 v2, 63, v0')
        A(f'v_readfirstlane_b32 s{sWAVE}, v1')
        A(f's_mov_b32 s{sLOFF}, 0')
        A(f's_mov_b32 s{sSPIN}, 0')
        A('s_waitcnt lgkmcnt(0)')
        A(f's_add_u32 s{S_K}, s{S_T0}, s{sA}')
        A(f's_addc_u32 s{S_K+1}, s{S_T0+1}, 0')
        A(f's_mov_b32 s{S_K+2}, 0x40000')
        A(f's_mov_b32 s{S_K+3}, 0x20000')
        A(f's_add_u32 s{S_V}, s{S_T0+2}, s{sA}')
        A(f's_addc_u32 s{S_V+1}, s{S_T0+3}, 0')
        A(f's_mov_b32 s{S_V+2}, 0x40000')
        A(f's_mov_b32 s{S_V+3}, 0x20000')
        A(f's_add_u32 s{S_WS}, s64, 0x1fffff')
        A(f's_addc_u32 s{S_WS+1}, s65, 0')
        A(f's_and_b32 s{S_WS}, s{S_WS}, 0xffe00000')
        A(f's_mov_b32 s{S_WS+2}, {0x1000000 if self.ts else WIN_BYTES}')
        A(f's_mov_b32 s{S_WS+3}, 0x20000')
        A(f's_mov_b64 s[{S_DBG}:{S_DBG+1}], s[62:63]')
        A(f's_mov_b32 s{S_DBG+2}, 256')
        A(f's_mov_b32 s{S_DBG+3}, 0x20000')
        A(f's_mov_b64 s[{S_OUT}:{S_OUT+1}], s[60:61]')
        A(f's_mov_b32 s{S_OUT+2}, 10240')
        A(f's_mov_b32 s{S_OUT+3}, 0x20000')
        A(f's_mov_b64 s[{P_WQ}:{P_WQ+1}], s[{S_T1}:{S_T1+1}]')
        A(f's_mov_b64 s[{P_WO}:{P_WO+1}], s[{S_T1+2}:{S_T1+3}]')
        A(f's_mov_b64 s[{P_W1}:{P_W1+1}], s[68:69]')
        A(f's_mov_b64 s[{P_B1}:{P_B1+1}], s[70:71]')
        A(f's_mov_b64 s[{P_W2}:{P_W2+1}], s[72:73]')
        A('s_mov_b64 s[0:1], s[74:75]')
        for i in range(8):
            A(f's_mov_b32 s{sBLK+i}, {i*4096}')
        A(f's_mul_i32 s{sKLA}, s{sWAVE}, 18432')
        A(f's_add_u32 s{sKLA}, s{sKLA}, {L_V}')
        A(f's_cmp_lt_u32 s{sX}, 3')
        A(f's_cselect_b32 s{sNM1}, 4, 3')
        A(f's_lshl_b32 s{sGX}, s{sX}, 2')
        A(f's_mul_i32 s{sA}, s{sX}, 3')
        A(f's_add_u32 s{sA}, s{sA}, 3')
        A(f's_min_u32 s{sGX}, s{sGX}, s{sA}')
        A(f's_mov_b32 s{sRT}, 1')
        A(f's_mov_b32 s{sRU}, s{sS}')
        for lo, typ in ((8, 2), (18, 4), (28, 3)):
            A(f's_sub_u32 s{sA}, s{sS}, {lo}')
            A(f's_cmp_ge_u32 s{sS}, {lo}')
            A(f's_cselect_b32 s{sRT}, {typ}, s{sRT}')
            A(f's_cselect_b32 s{sRU}, s{sA}, s{sRU}')
        lb = self.nl('RN')
        A(f's_cmp_lg_u32 s{sRT}, 3')
        A(f's_cbranch_scc1 {lb}')
        A(f's_cmp_ge_u32 s{sRU}, s{sNM1}')
        A(f's_cselect_b32 s{sRT}, 0, s{sRT}')
        self.lab(lb)
        A(f's_mov_b32 s{S_T0+3}, 0x20000')
        A(f's_mov_b32 s{S_T1+3}, 0x20000')
        A(f's_and_b32 s{sA}, s{sRT}, 3')
        A(f's_cmp_eq_u32 s{sA}, 0')
        A(f's_cselect_b32 s{sLIGHT}, 1, 0')

        l_w7, l_small = self.nl('W7'), self.nl('SM')
        A(f's_cmp_eq_u32 s{sWAVE}, 7')
        A(f's_cbranch_scc1 {l_w7}')
        A('v_lshrrev_b32 v3, 3, v2')
        A(f's_lshl_b32 s{sA}, s{sWAVE}, 3')
        A(f'v_add_u32 v3, s{sA}, v3')
        A('v_and_b32 v4, 7, v2')
        A('v_bfe_u32 v6, v2, 4, 1')
        A('v_xor_b32 v4, v4, v6')
        A(f's_and_b32 s{sA}, s{sWAVE}, 1')
        A(f's_lshl_b32 s{sA}, s{sA}, 1')
        A(f'v_xor_b32 v4, s{sA}, v4')
        A('v_lshlrev_b32 v4, 4, v4')

        def dma(ptr, size, stride, offcode, ninstr, khi):
            A(f's_mov_b64 s[{S_T0}:{S_T0+1}], s[{ptr}:{ptr+1}]')
            A(f's_mov_b32 s{S_T0+2}, {size}')
            offcode()
            A(f'v_mul_u32_u24 v5, {stride}, v3')
            A(f'v_add3_u32 v5, v5, v4, s{sC}')
            A(f's_lshl_b32 s{sD}, s{sWAVE}, 10')
            nmax = ninstr if isinstance(ninstr, int) else 32
            kmax = (nmax + 6) // 7
            for k in range(kmax):
                if isinstance(ninstr, int):
                    if 7 * k + 6 >= ninstr:
                        A(f's_cmp_ge_u32 s{sWAVE}, {ninstr - 7*k}')
                        A(f's_cbranch_scc1 {l_small}')
                elif 7 * k + 6 >= 24:
                    A(f's_add_u32 s{sA}, s{sWAVE}, {7*k}')
                    A(f's_cmp_ge_u32 s{sA}, s{ninstr[0]}')
                    A(f's_cbranch_scc1 {l_small}')
                A(f's_add_u32 s{sA}, s{sWAVE}, {7*k}')
                A(f's_cmp_ge_u32 s{sA}, {khi if isinstance(khi, int) else "s%d" % khi[0]}')
                A(f's_cselect_b32 s{sA}, {64 + 32*(k & 1)}, {32*(k & 1)}')
                A(f'v_xor_b32 v6, s{sA}, v5')
                A(f's_add_u32 m0, s{sD}, {L_STG + 7168*k}')
                A(f's_mov_b32 s{sC}, {k*56*stride}')
                A(f'buffer_load_dwordx4 v6, s[{S_T0}:{S_T0+3}], s{sC} offen nt lds')
            A(f's_branch {l_small}')

        def q_off():
            A(f's_lshl_b32 s{sC}, s{sX}, 10')
            A(f's_lshl_b32 s{sD}, s{sRU}, 7')
            A(f's_add_u32 s{sC}, s{sC}, s{sD}')

        def m1_off():
            A(f's_add_u32 s{sC}, s{sGX}, s{sRU}')
            A(f's_lshl_b32 s{sC}, s{sC}, 7')

        def wo_off():
            A(f's_mul_i32 s{sC}, s{sX}, {512*1280}')
            A(f's_lshl_b32 s{sD}, s{sRU}, 7')
            A(f's_add_u32 s{sC}, s{sC}, s{sD}')

        def m2_off():
            A(f's_mul_i32 s{sC}, s{sGX}, {64*1280}')
            A(f's_lshl_b32 s{sD}, s{sRU}, 7')
            A(f's_add_u32 s{sC}, s{sC}, s{sD}')
            A(f's_lshl_b32 s{sE}, s{sNM1}, 3')
            A(f's_lshl_b32 s{sF}, s{sNM1}, 2')
        l2, l3, l4 = self.nl('D2'), self.nl('D3'), self.nl('D4')
        if o.get('nowt'):
            A(f's_branch {l_small}')
        A(f's_cmp_eq_u32 s{sRT}, 0')
        A(f's_cbranch_scc1 {l_small}')
        A(f's_cmp_eq_u32 s{sRT}, 2')
        A(f's_cbranch_scc1 {l2}')
        A(f's_cmp_eq_u32 s{sRT}, 3')
        A(f's_cbranch_scc1 {l3}')
        A(f's_cmp_eq_u32 s{sRT}, 4')
        A(f's_cbranch_scc1 {l4}')
        dma(P_WQ, 640 * 8192, 8192, q_off, 80, 40)
        self.lab(l2)
        dma(P_WO, 4096 * 1280, 1280, wo_off, 64, 32)
        self.lab(l3)
        dma(P_W1, 640 * 3456, 3456, m1_off, 80, 40)
        self.lab(l4)
        dma(P_W2, 1728 * 1280, 1280, m2_off, (sE,), (sF,))

        self.lab(l_w7)
        for r in range(4):
            A(f'v_mov_b32 v{4+r}, -1')
        A('v_lshlrev_b32 v3, 4, v2')
        if o.get('clr4'):
            lcl = self.nl('CL')
            A(f's_cmp_lg_u32 s{sRT}, 4')
            A(f's_cbranch_scc1 {lcl}')
            A(f's_lshl_b32 s3, s{sRU}, 3')
            A(f's_add_u32 s3, s3, s{sX}')
            A('s_mul_i32 s3, s3, 24576')
            for kk in range(6):
                for k in range(4):
                    A(f'buffer_store_dwordx4 v[4:7], v3, s[{S_WS}:{S_WS+3}], s3 offen offset:{1024*k} sc1')
                A('s_add_u32 s3, s3, 4096')
            self.lab(lcl)
        else:
            A('s_lshl_b32 s3, s2, 13')
            for k in range(4 if not o.get('noclear') else 0):
                A(f'buffer_store_dwordx4 v[4:7], v3, s[{S_WS}:{S_WS+3}], s3 offen offset:{1024*k} sc1')
            A('s_add_u32 s3, s3, 4096')
            for k in range(4 if not o.get('noclear') else 0):
                A(f'buffer_store_dwordx4 v[4:7], v3, s[{S_WS}:{S_WS+3}], s3 offen offset:{1024*k} sc1')
        A(f's_getreg_b32 s{sA}, hwreg(HW_REG_XCC_ID)')
        A(f's_and_b32 s{sA}, s{sA}, 7')
        A(f's_mul_i32 s{sBb}, s{sA}, s{sA}')
        A(f's_lshl_b32 s{sBb}, s{sBb}, 6')
        A(f's_lshl_b32 s{sA}, s{sA}, 17')
        A(f's_or_b32 s{sA}, s{sA}, s{sBb}')
        A(f's_or_b32 s{sA}, s{sA}, {1 << 25}')
        A(f's_lshl_b32 s{sBb}, s{sX}, 2')
        A(f'v_mov_b32 v8, s{sA}')
        A(f'v_mov_b32 v9, s{sBb}')
        A('s_waitcnt vmcnt(0)')
        A('s_mov_b64 exec, 1')
        A(f'buffer_atomic_add v8, v9, s[{S_DBG}:{S_DBG+3}], 0 offen sc1')
        A('s_mov_b64 exec, -1')

        self.lab(l_small)
        A(f's_mov_b64 s[{S_T0}:{S_T0+1}], s[{P_X}:{P_X+1}]')
        A(f's_mov_b32 s{S_T0+2}, 10240')
        lq, lr4, lm, le = self.nl('SQ'), self.nl('SR'), self.nl('SMM'), self.nl('SEnd')
        A(f's_cmp_eq_u32 s{sRT}, 4')
        A(f's_cbranch_scc1 {lr4}')
        A(f's_cmp_eq_u32 s{sRT}, 3')
        A(f's_cbranch_scc1 {lm}')
        A(f's_cmp_lg_u32 s{sRT}, 1')
        A(f's_cbranch_scc1 {le}')
        A(f's_mul_i32 s{sA}, s{sWAVE}, 1280')
        A('v_lshlrev_b32 v5, 2, v2')
        for i in range(5):
            A(f'buffer_load_dword v{10+i}, v5, s[{S_T0}:{S_T0+3}], s{sA} offen offset:{256*i}')
        A(f's_branch {le}')
        self.lab(lr4)
        A('v_lshrrev_b32 v5, 3, v2')
        A('v_and_b32 v6, 7, v2')
        A(f's_lshl_b32 s{sA}, s{sRU}, 3')
        A(f's_add_u32 s{sA}, s{sA}, s{sWAVE}')
        A(f's_lshl_b32 s{sA}, s{sA}, 4')
        A('v_lshlrev_b32 v6, 1, v6')
        A('v_mul_u32_u24 v5, 1280, v5')
        A('v_add_u32 v5, v5, v6')
        A(f'buffer_load_ushort v{VRES}, v5, s[{S_T0}:{S_T0+3}], s{sA} offen')
        A(f's_mov_b64 s[{S_T1}:{S_T1+1}], s[0:1]')
        A(f's_mov_b32 s{S_T1+2}, 1280')
        A(f'buffer_load_ushort v{VB2}, v6, s[{S_T1}:{S_T1+3}], s{sA} offen')
        A(f's_branch {le}')
        self.lab(lm)
        A(f's_mov_b64 s[{S_T1}:{S_T1+1}], s[{P_B1}:{P_B1+1}]')
        A(f's_mov_b32 s{S_T1+2}, 3456')
        A(f's_add_u32 s{sA}, s{sGX}, s{sRU}')
        A(f's_lshl_b32 s{sA}, s{sA}, 7')
        A('v_lshlrev_b32 v6, 1, v2')
        A(f'buffer_load_ushort v15, v6, s[{S_T1}:{S_T1+3}], s{sA} offen')
        self.lab(le)
        A(f's_mov_b32 s{sONE}, 0x3f803f80')
        A(f's_mov_b32 s{sLO}, 0x00003f80')
        A(f's_mov_b32 s{sHI}, 0x3f800000')

        self.stream_addr(30, 31, 28, 29)

        def kload(q):
            i, j = q
            val = VK + 16 * i + 4 * j
            A(f'buffer_load_dwordx4 v[{val}:{val+3}], v30, s[{S_K}:{S_K+3}], s{sBLK+i} offen offset:{64*j} nt')

        def vlds(q):
            oc, a = q
            i, rp = oc // 2, oc % 2
            imm = rp * 512 + a * 2048
            A(f's_add_u32 m0, s{sKLA}, {oc*2048 + a*1024 - imm + 4096}')
            A('s_sub_u32 m0, m0, 4096')
            A('s_nop 0')
            A(f'buffer_load_dwordx4 v31, s[{S_V}:{S_V+3}], s{sBLK+i} offen offset:{imm} nt lds')

        def vreg(q):
            oc, dh, kk = q
            i, rp = oc // 2, oc % 2
            r = VV + 4 * (2 * (oc - 9) + dh) + 2 * kk
            A(f'buffer_load_dwordx2 v[{r}:{r+1}], v28, s[{S_V}:{S_V+3}], s{sBLK+i} offen offset:{(2*rp+kk)*256 + dh*128} nt')

        W = o.get('win', 12)
        N1 = o.get('n1', 12)
        if o.get('pure'):
            N1 = 78
        if o.get('prio') == 2:
            lbq = self.nl('PRI')
            A(f's_cmp_lt_u32 s{sWAVE}, 4')
            A(f's_cbranch_scc1 {lbq}')
            A('s_setprio 1')
            self.lab(lbq)
        if o.get('prio') == 1:
            for pw in range(1, 4):
                lbq = self.nl('PRI')
                A(f's_cmp_lt_u32 s{sWAVE}, {2*pw}')
                A(f's_cbranch_scc1 {lbq}')
                A(f's_setprio {pw}')
                self.lab(lbq)
        seq = [(kload, (i, j)) for i in range(8) for j in range(4)] + [(vlds, (oc, a)) for oc in range(9) for a in range(2)] + \
              [(vreg, (oc, dh, kk)) for oc in range(9, 16) for dh in range(2) for kk in range(2)]
        NTOT = len(seq)
        n = 0

        def issue_next(extra=0, nowait=False):
            nonlocal n
            WL = o.get('wl')
            if WL and n >= WL and not nowait:
                lw = self.nl('WL')
                A(f's_cmp_eq_u32 s{sLIGHT}, 0')
                A(f's_cbranch_scc1 {lw}')
                A(f's_waitcnt vmcnt({WL-1+extra})')
                self.lab(lw)
            if n >= W and not nowait:
                A(f's_waitcnt vmcnt({W-1+extra})')
            kind, q = seq[n]
            kind(q)
            n += 1
            if o.get('sync') and (n > N1 + o.get('nln', 0) + o.get('n2', 4) or n < N1 - 2) and n % o['sync'] == 0 and n < NTOT - 2:
                A('s_barrier')
        for _ in range(N1):
            if n == min(W, N1) - 0 - 0 and False:
                pass
            issue_next(nowait=not o.get('n1win'))
            if n == o.get('nprb', 8):
                lbp = self.nl('PRB')
                A(f's_cmp_lg_u32 s{sWAVE}, 7')
                A(f's_cbranch_scc1 {lbp}')
                self.probe()
                self.lab(lbp)
        A(f's_waitcnt vmcnt({min(N1, W) if o.get("n1win") else N1})')
        if o.get('pure'):
            A('s_waitcnt vmcnt(0)')
        A('s_waitcnt lgkmcnt(0)')
        A('s_barrier')
        self.stamp(1)
        if o.get('pure'):
            A('s_branch L_fin')
            seq += seq
        self.lane(2)
        lb_tr = self.nl('TR')
        A(f's_cmp_eq_u32 s{sRT}, 0')
        A(f's_cbranch_scc1 {lb_tr}')
        A(f's_mov_b32 s{sA}, 320')
        A(f's_cmp_eq_u32 s{sRT}, 2')
        A(f's_cselect_b32 s{sA}, 256, s{sA}')
        A(f's_lshl_b32 s{sBb}, s{sNM1}, 5')
        A(f's_cmp_eq_u32 s{sRT}, 4')
        A(f's_cselect_b32 s{sA}, s{sBb}, s{sA}')
        A('v_and_b32 v3, 3, v2')
        A('v_bfe_u32 v4, v2, 2, 2')
        A('v_lshrrev_b32 v5, 4, v2')
        A('v_lshrrev_b32 v6, 1, v3')
        A('v_lshrrev_b32 v7, 1, v4')
        A('v_and_b32 v8, 1, v5')
        A('v_lshl_or_b32 v7, v8, 1, v7')
        A('v_lshl_or_b32 v7, v6, 2, v7')
        A(f'v_xor_b32 v7, s{sWAVE}, v7')
        A(f'v_mul_u32_u24 v6, s{sA}, v6')
        A('v_lshl_add_u32 v6, v5, 3, v6')
        A('v_add_u32 v6, v6, v4')
        A('v_and_b32 v3, 1, v3')
        A('v_lshlrev_b32 v3, 3, v3')
        A('v_lshl_add_u32 v6, v6, 7, v3')
        A('v_lshl_add_u32 v6, v7, 4, v6')
        A(f'v_add_u32 v6, {L_STG}, v6')
        for j in range(10):
            if j == 4:
                A(f's_cmp_eq_u32 s{sRT}, 4')
                A(f's_cbranch_scc1 {lb_tr}')
            if j == 8:
                A(f's_cmp_eq_u32 s{sRT}, 2')
                A(f's_cbranch_scc1 {lb_tr}')
            A(f'ds_read_b64_tr_b16 v[{VW+4*j}:{VW+4*j+1}], v6 offset:{4096*j}')
            A(f'ds_read_b64_tr_b16 v[{VW+4*j+2}:{VW+4*j+3}], v6 offset:{4096*j+512}')
        self.lab(lb_tr)
        A('s_waitcnt lgkmcnt(0)')
        for _ in range(o.get('nln', 0)):
            issue_next()
        l4, l3, le = self.nl('T4'), self.nl('T3'), self.nl('TE')
        A(f's_cmp_eq_u32 s{sRT}, 4')
        A(f's_cbranch_scc1 {l4}')
        A(f's_cmp_eq_u32 s{sRT}, 3')
        A(f's_cbranch_scc1 {l3}')
        A(f's_cmp_lg_u32 s{sRT}, 1')
        A(f's_cbranch_scc1 {le}')
        self.layernorm(10, 16, 0)
        self.lane(2)
        A('v_lshlrev_b32 v2, 2, v2')
        self.ln_stage_write(10, 2)
        A(f's_branch {le}')
        self.lab(l4)
        A(f'v_lshlrev_b32 v{VRES}, 16, v{VRES}')
        A(f'v_lshlrev_b32 v{VB2}, 16, v{VB2}')
        A(f's_branch {le}')
        self.lab(l3)
        A('v_lshlrev_b32 v15, 16, v15')
        A('v_lshlrev_b32 v3, 2, v2')
        A(f'ds_write_b32 v3, v15 offset:{L_B1}')
        self.lab(le)
        A('s_waitcnt lgkmcnt(0)')
        A('s_barrier')
        self.stamp(2)
        for _ in range(o.get('n2', 4)):
            issue_next(nowait=not o.get('n1win'))
        lb = self.nl('Q0')
        A(f's_cmp_lg_u32 s{sRT}, 1')
        A(f's_cbranch_scc1 {lb}')
        self.gemm_pre(320, 1296)
        self.q_addr_pre(0)
        self.gemm(10)
        self.pack4()
        self.lab(lb)
        while n < o.get('nqs', 36):
            issue_next()
        lb = self.nl('Q0s')
        A(f's_cmp_lg_u32 s{sRT}, 1')
        A(f's_cbranch_scc1 {lb}')
        self.table_wait()
        self.mask16()
        A(f'buffer_store_dwordx2 v[4:5], v29, s[{S_WS}:{S_WS+3}], s{sE} offen sc1')
        self.unmask()
        self.lab(lb)
        self.stamp(3)
        NQ = o.get('nq', 44)
        while n < NQ:
            issue_next()
        qls = self.q_loads(29)
        for l in qls:
            A(l)
        for _ in range(8):
            issue_next(4)
        A('s_waitcnt vmcnt(8)')
        lr, ld, lchk = self.nl('QP'), self.nl('QPD'), self.nl('QC')
        A(f's_branch {lchk}')
        self.lab(lr)
        for l in qls:
            A(l)
        A('s_waitcnt vmcnt(0)')
        self.lab(lchk)
        self.sent_test(range(16), 28)
        A('s_cmp_eq_u64 vcc, 0')
        if o.get('stop'):
            A(f's_branch {ld}')
        A(f's_cbranch_scc1 {ld}')
        self.spin_check(lr)
        self.lab(ld)
        self.table_wait()
        self.table_decode()
        self.stamp(4)
        self.lab('L_att')
        self.astamp(1)
        self.qk_part1()
        self.astamp(3)
        lb = self.nl('VR')
        A(f's_cmp_lg_u32 s{sLOFF}, 0')
        A(f's_cbranch_scc1 {lb}')
        self.stamp(5)
        self.stream_addr(30, 31, 28, 29)
        while n < NTOT:
            issue_next()
        self.lab(lb)
        self.softmax_part2()
        self.astamp(5)
        self.pv()
        self.lstamp(6, 9)
        self.astamp(6)
        self.o_finish()
        self.astamp(7)
        self.cstamp(10)
        if o.get('stop'):
            A('s_branch L_fin')
        self.chain()
        self.lab('L_fin')
        if self.ts:
            self.stamp(10)
            A('s_waitcnt lgkmcnt(0)')
            lb = self.nl('TSK')
            A(f's_cmp_lg_u32 s{sWAVE}, {o.get("tswave", 0)}')
            A(f's_cbranch_scc1 {lb}')
            A('s_lshl_b32 s3, s2, 7')
            A(f's_add_u32 s3, s3, {TS_OFF}')
            A('v_mov_b32 v1, 0')
            A('s_mov_b64 exec, 1')
            for k in range(11):
                A(f'v_mov_b32 v2, s{sTS+2*k}')
                A(f'v_mov_b32 v3, s{sTS+2*k+1}')
                A(f'buffer_store_dwordx2 v[2:3], v1, s[{S_WS}:{S_WS+3}], s3 offen offset:{8*k}')
                A('s_nop 1')
            A('s_mov_b64 exec, -1')
            self.lab(lb)
        self.lab('L_end')
        A('s_endpgm')
        L.append('.section .rodata,"a"')
        L.append('.p2align 6')
        L.append(f'.amdhsa_kernel {NAME}_kernel')
        for d in ['next_free_vgpr 256', 'next_free_sgpr 102', 'accum_offset 256', 'group_segment_fixed_size 0',
                  'kernarg_size 104', 'user_sgpr_count 2', 'user_sgpr_kernarg_segment_ptr 1',
                  'system_sgpr_workgroup_id_x 1', 'float_denorm_mode_32 3']:
            L.append('  .amdhsa_' + d)
        L.append('.end_amdhsa_kernel')
        return '\n'.join(L) + '\n'

    def reducer(self, which):
        A = self.A
        self.lane(10)
        A('v_lshlrev_b32 v11, 2, v10')
        A(f's_lshl_b32 s{sC}, s{sRU}, 3')
        A(f's_add_u32 s{sC}, s{sC}, s{sWAVE}')
        A(f's_lshl_b32 s{sD}, s{sC}, 8')
        A(f's_add_u32 s{sE}, s{sLOFF}, s{sRHO}')
        A(f's_add_u32 s{sE}, s{sE}, {MB_P1 if which == 1 else MB_P2}')
        for xs in range(8):
            A(f's_add_u32 s{sA}, s{sD}, {xs*20480}')
            A(f's_lshr_b32 s{sBb}, s{sA}, 13')
            A(f's_lshl_b32 s{sBb}, s{sBb}, 14')
            A(f's_and_b32 s{sA}, s{sA}, 8191')
            A(f's_add_u32 s{sA}, s{sA}, s{sBb}')
            A(f's_add_u32 s{sBLK+xs}, s{sA}, s{sE}')
        A('v_and_b32 v16, 7, v10')
        A('v_lshlrev_b32 v16, 1, v16')
        A('v_lshrrev_b32 v17, 3, v10')
        A('v_mul_u32_u24 v17, 1280, v17')
        A('v_add_u32 v17, v17, v16')
        A(f's_mul_i32 s{sE}, s{sX}, 10240')
        A(f's_lshl_b32 s{sBb}, s{sC}, 4')
        A(f's_add_u32 s{sE}, s{sE}, s{sBb}')
        A(f's_add_u32 s{sE}, s{sE}, s{sLOFF}')
        A(f's_add_u32 s{sE}, s{sE}, {MB_X1 if which == 1 else MB_X2}')
        if which == 2:
            lf = self.nl('RF')
            A(f's_cmp_eq_u32 s{sLOFF}, 0')
            A(f's_cbranch_scc1 {lf}')
            A(f's_mul_i32 s{sE}, s{sX}, 1280')
            A(f's_add_u32 s{sE}, s{sE}, s{sBb}')
            A(f's_lshl_b32 s{sA}, s{sX}, 3')
            A(f's_lshl_b64 exec, 0xff, s{sA}')
            self.lab(lf)
        A(f's_mov_b32 s{sM64}, 0x55555555')
        A(f's_mov_b32 s{sM64+1}, 0x55555555')
        loads = [f'buffer_load_dword v{xs}, v11, s[{S_WS}:{S_WS+3}], s{sBLK+xs} offen sc1' for xs in range(8)]
        self.poll(loads, range(8))
        A('v_add_f32 v0, v0, v1')
        A('v_add_f32 v2, v2, v3')
        A('v_add_f32 v4, v4, v5')
        A('v_add_f32 v6, v6, v7')
        A('v_add_f32 v0, v0, v2')
        A('v_add_f32 v4, v4, v6')
        A('v_add_f32 v0, v0, v4')
        A('v_cvt_pk_bf16_f32 v0, v0, v0')
        A('v_and_b32 v0, 0xffff0000, v0')
        if which == 2:
            A(f'v_add_f32 v0, v0, v{VB2}')
            A('v_cvt_pk_bf16_f32 v0, v0, v0')
            A('v_and_b32 v0, 0xffff0000, v0')
        A(f'v_add_f32 v0, v0, v{VRES}')
        A('v_cvt_pk_bf16_f32 v0, v0, v0')
        A(f'v_and_b32 v{VRES}, 0xffff0000, v0')
        A('v_and_b32 v1, 0xffff, v0')
        A('s_nop 0')
        A(f'v_or_b32_dpp v1, v{VRES}, v1 quad_perm:[1,1,3,3] row_mask:0xf bank_mask:0xf')
        A(f's_and_b64 exec, exec, s[{sM64}:{sM64+1}]')
        if which == 2:
            lf, le = self.nl('RO'), self.nl('ROE')
            A(f's_cmp_eq_u32 s{sLOFF}, 0')
            A(f's_cbranch_scc1 {lf}')
            A(f'buffer_store_dword v1, v16, s[{S_OUT}:{S_OUT+3}], s{sE} offen')
            A(f's_branch {le}')
            self.lab(lf)
        A('v_min_u32 v1, 0xfffffffe, v1')
        self.store_local(f'buffer_store_dword v1, v17, s[{S_WS}:{S_WS+3}], s{sE} offen')
        if which == 2:
            self.lab(le)
        A('s_mov_b64 exec, -1')

    def ln_gather(self, mb, nln):
        A = self.A
        A('v_lshlrev_b32 v30, 2, v24')
        A(f's_mul_i32 s{sD}, s{sX}, 10240')
        A(f's_mul_i32 s{sBb}, s{sWAVE}, 1280')
        A(f's_add_u32 s{sD}, s{sD}, s{sBb}')
        A(f's_add_u32 s{sD}, s{sD}, s{sLOFF}')
        A(f's_add_u32 s{sD}, s{sD}, {mb}')
        loads = [f'buffer_load_dword v{i}, v30, s[{S_WS}:{S_WS+3}], s{sD} offen offset:{256*i} sc1' for i in range(5)]
        self.poll(loads, range(5))
        self.cstamp(4 if nln == 2 else 9)
        if nln == 2:
            self.astamp(8)
        self.layernorm(0, 6, 16, True)
        if nln == 2:
            self.layernorm(0, 6, 16, False)
        self.ln_stage_write(0, 30)

    def chain(self):
        A = self.A
        l_wo, l_m1, l_m2, l_q, l_qp = 'C_wo', 'C_m1', 'C_m2', 'C_q', 'C_qp'
        A(f's_cmp_eq_u32 s{sRT}, 4')
        A(f's_cbranch_scc1 {l_m2}')
        A(f's_cmp_eq_u32 s{sRT}, 3')
        A(f's_cbranch_scc1 {l_m1}')
        A(f's_cmp_eq_u32 s{sRT}, 2')
        A(f's_cbranch_scc1 {l_wo}')
        A(f's_cmp_lg_u32 s{sLOFF}, 0')
        A('s_cbranch_scc1 L_fin')
        A(f's_cmp_eq_u32 s{sRT}, 1')
        A(f's_cbranch_scc1 {l_q}')
        A(f's_branch {l_qp}')
        self.lab(l_wo)
        self.gemm_pre(256, 1040)
        self.p_addr_pre(MB_P1)
        A('v_lshlrev_b32 v30, 4, v24')
        A(f's_lshl_b32 s{sA}, s{sX}, 13')
        A(f's_lshl_b32 s{sBb}, s{sWAVE}, 10')
        A(f's_add_u32 s{sA}, s{sA}, s{sBb}')
        A(f's_add_u32 s{sA}, s{sA}, s{sLOFF}')
        A(f's_add_u32 s{sD}, s{sA}, {MB_O}')
        A(f's_mul_i32 s{sA}, s{sWAVE}, 1040')
        A(f'v_add_u32 v28, s{sA}, v30')
        self.poll([f'buffer_load_dwordx4 v[0:3], v30, s[{S_WS}:{S_WS+3}], s{sD} offen sc1'], range(4))
        self.cstamp(1)
        A(f'ds_write_b128 v28, v[0:3] offset:{L_STAGE}')
        A('s_waitcnt lgkmcnt(0)')
        A('s_barrier')
        self.gemm(8)
        self.p_store()
        self.cstamp(2)
        A(f's_cmp_lg_u32 s{sLOFF}, 0')
        A('s_cbranch_scc1 L_fin')
        A(f's_branch {l_qp}')
        self.lab(l_m1)
        self.gemm_pre(320, 1296)
        A(f's_lshl_b32 s{sA}, s{sX}, 12')
        A(f's_lshl_b32 s{sBb}, s{sRU}, 3')
        A(f's_add_u32 s{sBb}, s{sBb}, s{sWAVE}')
        A(f's_lshl_b32 s{sBb}, s{sBb}, 7')
        A(f's_add_u32 s{sA}, s{sA}, s{sBb}')
        A(f's_add_u32 s{sA}, s{sA}, s{sLOFF}')
        A(f's_add_u32 s{sE}, s{sA}, {MB_H}')
        A('v_lshlrev_b32 v29, 4, v25')
        A('v_lshl_add_u32 v29, v26, 3, v29')
        A('v_and_b32 v28, 1, v26')
        A('v_lshlrev_b32 v28, 4, v28')
        A(f's_lshl_b32 s{sA}, s{sWAVE}, 5')
        A(f'v_add_u32 v28, s{sA}, v28')
        self.ln_gather(MB_X1, 2)
        self.astamp(9)
        A(f'ds_read_b128 v[20:23], v28 offset:{L_B1}')
        A('s_waitcnt lgkmcnt(0)')
        A('s_barrier')
        self.gemm(10, NT=4)
        self.astamp(10)
        A('v_cvt_pk_bf16_f32 v4, v0, v1')
        A('v_cvt_pk_bf16_f32 v5, v2, v3')
        A('v_lshlrev_b32 v0, 16, v4')
        A('v_and_b32 v1, 0xffff0000, v4')
        A('v_lshlrev_b32 v2, 16, v5')
        A('v_and_b32 v3, 0xffff0000, v5')
        for r in range(4):
            A(f'v_add_f32 v{r}, v{r}, v{20+r}')
        A('v_cvt_pk_bf16_f32 v4, v0, v1')
        A('v_cvt_pk_bf16_f32 v5, v2, v3')
        A('v_lshlrev_b32 v0, 16, v4')
        A('v_and_b32 v1, 0xffff0000, v4')
        A('v_lshlrev_b32 v2, 16, v5')
        A('v_and_b32 v3, 0xffff0000, v5')
        c1 = 2.0 * math.sqrt(2.0 / math.pi) * math.log2(math.e)
        c2 = c1 * 0.044715
        A(f'v_mov_b32 v12, 0x{f2u(c2):08x}')
        A(f'v_mov_b32 v13, 0x{f2u(c1):08x}')
        for r in range(4):
            A(f'v_mul_f32 v{4+r}, v{r}, v{r}')
        for r in range(4):
            A(f'v_fma_f32 v{4+r}, v{4+r}, v12, v13')
        for r in range(4):
            A(f'v_mul_f32 v{4+r}, v{4+r}, v{r}')
        for r in range(4):
            A(f'v_exp_f32 v{4+r}, -v{4+r}')
        A('s_nop 0')
        for r in range(4):
            A(f'v_add_f32 v{4+r}, 1.0, v{4+r}')
        for r in range(4):
            A(f'v_rcp_f32 v{4+r}, v{4+r}')
        A('s_nop 0')
        for r in range(4):
            A(f'v_mul_f32 v{r}, v{r}, v{4+r}')
        self.pack4()
        self.mask16()
        self.store_local(f'buffer_store_dwordx2 v[4:5], v29, s[{S_WS}:{S_WS+3}], s{sE} offen')
        self.unmask()
        self.cstamp(5)
        A(f's_cmp_lg_u32 s{sLOFF}, 0')
        A('s_cbranch_scc1 L_fin')
        A(f's_branch {l_qp}')
        self.lab(l_m2)
        self.reducer(1)
        self.cstamp(3)
        self.lane(24)
        A('v_and_b32 v25, 15, v24')
        A('v_lshrrev_b32 v26, 4, v24')
        A('v_and_b32 v27, 7, v25')
        A('v_lshrrev_b32 v28, 3, v25')
        A('v_mul_u32_u24 v27, 528, v27')
        A('v_lshl_add_u32 v27, v26, 4, v27')
        A(f's_lshl_b32 s{sA}, s{sNM1}, 6')
        A(f'v_mul_u32_u24 v28, s{sA}, v28')
        A('v_add_u32 v27, v27, v28')
        self.p_addr_pre(MB_P2)
        A('v_lshlrev_b32 v30, 3, v24')
        A('v_bfe_u32 v28, v24, 1, 3')
        A('v_mul_u32_u24 v28, 528, v28')
        A('v_lshl_add_u32 v28, v26, 4, v28')
        A('v_and_b32 v23, 1, v24')
        A('v_lshl_add_u32 v28, v23, 3, v28')
        A(f's_lshl_b32 s{sA}, s{sWAVE}, 6')
        A(f'v_add_u32 v28, s{sA}, v28')
        A(f's_lshl_b32 s{sA}, s{sX}, 12')
        A(f's_lshl_b32 s{sBb}, s{sWAVE}, 9')
        A(f's_add_u32 s{sA}, s{sA}, s{sBb}')
        A(f's_add_u32 s{sA}, s{sA}, s{sLOFF}')
        A(f's_add_u32 s{sD}, s{sA}, {MB_H}')
        lsk = self.nl('M2s')
        A(f's_lshl_b32 s{sA}, s{sNM1}, 1')
        A(f's_cmp_ge_u32 s{sWAVE}, s{sA}')
        A(f's_cbranch_scc1 {lsk}')
        self.poll([f'buffer_load_dwordx2 v[0:1], v30, s[{S_WS}:{S_WS+3}], s{sD} offen sc1'], range(2))
        self.cstamp(6)
        A(f'ds_write_b64 v28, v[0:1] offset:{L_STAGE}')
        A('s_waitcnt lgkmcnt(0)')
        self.lab(lsk)
        A('s_barrier')
        for j in range(4):
            A(f'ds_read_b128 v[{4+4*j}:{7+4*j}], v27 offset:{L_STAGE + 64*j}')
        lc = self.nl('M2c')
        for j in range(4):
            if j == 3:
                A(f's_cmp_eq_u32 s{sNM1}, 3')
                A(f's_cbranch_scc1 {lc}')
            A(f's_waitcnt lgkmcnt({3-j})')
            c = '0' if j == 0 else 'v[0:3]'
            A(f'v_mfma_f32_16x16x32_bf16 v[0:3], v[{VW+4*j}:{VW+4*j+3}], v[{4+4*j}:{7+4*j}], {c}')
        self.lab(lc)
        A('s_waitcnt lgkmcnt(0)')
        self.combine()
        self.p_store()
        self.cstamp(7)
        self.reducer(2)
        self.cstamp(8)
        A(f's_cmp_lg_u32 s{sLOFF}, 0')
        A('s_cbranch_scc1 L_fin')
        A(f's_branch {l_qp}')
        self.lab(l_q)
        self.gemm_pre(320, 1296)
        self.q_addr_pre(LSTRIDE)
        self.ln_gather(MB_X2, 1)
        A('s_barrier')
        self.gemm(10)
        self.pack4()
        self.mask16()
        self.store_local(f'buffer_store_dwordx2 v[4:5], v29, s[{S_WS}:{S_WS+3}], s{sE} offen')
        self.unmask()
        self.stamp(7)
        self.lab(l_qp)
        A(f's_mov_b32 s{sLOFF}, {LSTRIDE}')
        self.lane(30)
        lq = self.nl('QW')
        A(f's_cmp_lg_u32 s{sWAVE}, 0')
        A(f's_cbranch_scc1 {lq}')
        A('v_lshlrev_b32 v29, 7, v30')
        A('v_lshlrev_b32 v28, 4, v30')
        A(f's_lshl_b32 s{sA}, s{sH}, 11')
        A(f's_lshl_b32 s{sBb}, s{sB}, 4')
        A(f's_add_u32 s{sA}, s{sA}, s{sBb}')
        A(f's_add_u32 s{sD}, s{sA}, {MB_Q + LSTRIDE}')
        A('s_mov_b64 exec, 0xffff')
        self.poll([f'buffer_load_dwordx4 v[0:3], v29, s[{S_WS}:{S_WS+3}], s{sD} offen sc1'], range(4))
        A(f'ds_write_b128 v28, v[0:3] offset:{L_QB}')
        A('s_mov_b64 exec, -1')
        A('s_waitcnt lgkmcnt(0)')
        self.lab(lq)
        A('v_lshrrev_b32 v30, 4, v30')
        A('v_lshlrev_b32 v30, 4, v30')
        A('s_barrier')
        for j in range(4):
            A(f'ds_read_b128 v[{4*j}:{4*j+3}], v30 offset:{L_QB + 64*j}')
        self.stamp(8)
        A('s_branch L_att')


if __name__ == '__main__':
    ap = argparse.ArgumentParser()
    ap.add_argument('-o', default='cdna_kernels/' + NAME + '.s')
    ap.add_argument('--ts', action='store_true')
    ap.add_argument('--slow', action='store_true')
    for k, d in (('win', 12), ('n1', 12), ('n2', 4), ('nq', 44), ('tswave', 0), ('cmode', None), ('forcepar', None), ('nprobe', 2), ('sync', 0), ('n1win', 0), ('nln', 0), ('stop', 0), ('noclear', 0), ('nowt', 0), ('notable', 0), ('nqs', 36), ('nprb', 8), ('pure', 0), ('prio', 0), ('wl', 0), ('clr4', 0), ('amode', 0), ('rd2', 0)):
        ap.add_argument('--' + k, type=int, default=d)
    a = ap.parse_args()
    o = vars(a).copy()
    out = o.pop('o')
    open(out, 'w').write(G(**o).build())
```

```python
import sys, argparse, struct, math
NAME = 'interleave_layers__sliding_block_cached__mixer_channel_mlp__decode'
HEADER = open('cdna_kernels/' + NAME + '.s.ref').read().split('; Override launch')[0]

LSTRIDE = 0xF0000
MB_P1 = 0x00000
MB_P2 = 0x50000
MB_Q = 0xA0000
MB_O = 0xB0000
MB_X1 = 0xC0000
MB_X2 = 0xD4000
MB_H = 0xE8000
WIN_BYTES = 0x200000
TS_OFF = 0x800000

L_STAGE = 0
L_OP = 10368
L_B1 = 14464
L_XCH = 14720
L_QB = 14848
L_V = 16384
L_STG = 81920
LDS_BYTES = 163840

VK = 32
VV = 160
VW = 216
VRES, VB2 = 248, 249

S_K, S_V, S_WS, S_DBG, S_OUT, S_T0, S_T1 = 16, 20, 24, 28, 32, 36, 40
sX, sS, sH, sB, sWAVE = 44, 45, 46, 47, 48
sRT, sRU = 49, 50
sFAST, sLOFF, sSPIN = 51, 52, 53
sRHO = 54
sNM1 = 55
sA, sBb, sC, sD = 56, 57, 58, 59
sM64, sM64b = 60, 62
sGX = 64
sMW = 65
sBLK = 66
sKLA, sKLB = 74, 75
sE, sF = 76, 77
sLIGHT = 100
sTS = 78
P_X, P_WQ, P_WO, P_W1, P_B1, P_W2 = 4, 6, 8, 10, 12, 14
sONE, sLO, sHI = 4, 5, 6
SPIN_MAX = 400000
f2u = lambda f: struct.unpack('<I', struct.pack('<f', f))[0]


class G:
    vtmp = 31

    def __init__(self, **o):
        self.L = []
        self.o = o
        self.ts = o.get('ts')
        self.nlab = 0

    def A(self, s):
        self.L.append('  ' + s)

    def lab(self, name):
        self.L.append(name + ':')

    def nl(self, p='L'):
        self.nlab += 1
        return f'{p}_{self.nlab}'

    def stamp(self, k):
        if self.ts and (self.o.get('cmode') is None or k == 0):
            self.A(f's_memrealtime s[{sTS+2*k}:{sTS+2*k+1}]')

    def lstamp(self, k0, k1):
        if self.ts and self.o.get('cmode') is None:
            l1, l2 = self.nl('LS'), self.nl('LS')
            self.A(f's_cmp_lg_u32 s{sLOFF}, 0')
            self.A(f's_cbranch_scc1 {l1}')
            self.stamp(k0)
            self.A(f's_branch {l2}')
            self.lab(l1)
            self.stamp(k1)
            self.lab(l2)

    def astamp(self, k):
        if self.o.get('amode'):
            self.cstamp(k, True)

    def cstamp(self, k, am=False):
        cm = self.o.get('cmode')
        if self.ts and cm is not None and bool(self.o.get('amode')) == am:
            lb = self.nl('CS')
            self.A(f's_cmp_lg_u32 s{sLOFF}, {cm * LSTRIDE}')
            self.A(f's_cbranch_scc1 {lb}')
            self.A(f's_memrealtime s[{sTS+2*k}:{sTS+2*k+1}]')
            self.lab(lb)

    def lane(self, v):
        self.A(f'v_mbcnt_lo_u32_b32 v{v}, -1, 0')
        self.A(f'v_mbcnt_hi_u32_b32 v{v}, -1, v{v}')

    @staticmethod
    def kplace():
        pl = {}
        n = r = 0
        for i in range(8):
            nl = 3 if i < 2 else 2
            for j in range(4):
                if j < nl:
                    pl[(i, j)] = ('L', n)
                    n += 1
                else:
                    pl[(i, j)] = ('R', VK + 4 * r)
                    r += 1
        assert n == 18 and r == 14
        return pl

    def spin_check(self, lab_retry):
        self.A(f's_add_u32 s{sSPIN}, s{sSPIN}, 1')
        self.A(f's_cmp_lt_u32 s{sSPIN}, {SPIN_MAX}')
        self.A(f's_cbranch_scc1 {lab_retry}')

    def sent_test(self, regs, t):
        A = self.A
        regs = list(regs)
        if len(regs) == 1:
            A(f'v_cmp_eq_u32 vcc, -1, v{regs[0]}')
            return
        if len(regs) == 2:
            A(f'v_max_u32 v{t}, v{regs[0]}, v{regs[1]}')
            rest = []
        else:
            A(f'v_max3_u32 v{t}, v{regs[0]}, v{regs[1]}, v{regs[2]}')
            rest = regs[3:]
        while rest:
            if len(rest) >= 2:
                A(f'v_max3_u32 v{t}, v{t}, v{rest[0]}, v{rest[1]}')
                rest = rest[2:]
            else:
                A(f'v_max_u32 v{t}, v{t}, v{rest[0]}')
                rest = rest[1:]
        A(f'v_cmp_eq_u32 vcc, -1, v{t}')

    def poll(self, loads, regs):
        A = self.A
        lr, ld = self.nl('P'), self.nl('PD')
        self.lab(lr)
        for l in loads:
            A(l)
        A('s_waitcnt vmcnt(0)')
        self.sent_test(regs, self.vtmp)
        A('s_cmp_eq_u64 vcc, 0')
        A(f's_cbranch_scc1 {ld}')
        self.spin_check(lr)
        self.lab(ld)

    def store_local(self, ins):
        A = self.A
        l1, l2 = self.nl('SL'), self.nl('SE')
        A(f's_cmp_eq_u32 s{sFAST}, 0')
        A(f's_cbranch_scc1 {l1}')
        A(ins)
        A(f's_branch {l2}')
        self.lab(l1)
        A(ins + ' sc1')
        self.lab(l2)

    def wave_reduce(self, items):
        A = self.A
        steps = ['row_shr:1', 'row_shr:2', 'row_shr:4', 'row_shr:8', 'row_bcast:15 row_mask:0xa', 'row_bcast:31 row_mask:0xc']
        for st in steps:
            pad = 2 - (len(items) - 1)
            if pad > 0:
                A(f's_nop {pad-1}')
            for (r, op) in items:
                m = st if 'row_mask' in st else st + ' row_mask:0xf'
                A(f'{op}_dpp v{r}, v{r}, v{r} {m} bank_mask:0xf')
        A('s_nop 1')

    def mask16(self):
        self.A('s_mov_b32 exec_lo, 0x00ff00ff')
        self.A('s_mov_b32 exec_hi, 0')

    def unmask(self):
        self.A('s_mov_b64 exec, -1')

    def layernorm(self, pk, f, t, shifted=True):
        A = self.A
        s1, s2, d0 = t, t + 2, t + 4
        if shifted:
            A(f'v_readfirstlane_b32 s{sA}, v{pk}')
            A(f's_lshl_b32 s{sA}, s{sA}, 16')
            A(f's_xor_b32 s{sBb}, s{sA}, 0x80000000')
            A(f'v_mov_b32 v{d0}, s{sBb}')
            for i in range(5):
                A(f'v_dot2_f32_bf16 v{f+2*i}, v{pk+i}, s{sLO}, v{d0}')
                A(f'v_dot2_f32_bf16 v{f+2*i+1}, v{pk+i}, s{sHI}, v{d0}')
            A(f'v_pk_add_f32 v[{s1}:{s1+1}], v[{f}:{f+1}], v[{f+2}:{f+3}]')
            A(f'v_pk_mul_f32 v[{s2}:{s2+1}], v[{f}:{f+1}], v[{f}:{f+1}]')
            for i in range(1, 5):
                if i >= 2:
                    A(f'v_pk_add_f32 v[{s1}:{s1+1}], v[{f+2*i}:{f+2*i+1}], v[{s1}:{s1+1}]')
                A(f'v_pk_fma_f32 v[{s2}:{s2+1}], v[{f+2*i}:{f+2*i+1}], v[{f+2*i}:{f+2*i+1}], v[{s2}:{s2+1}]')
            A(f'v_add_f32 v{s1}, v{s1}, v{s1+1}')
            A(f'v_add_f32 v{s2}, v{s2}, v{s2+1}')
        else:
            for i in range(5):
                c1 = '0' if i == 0 else f'v{s1}'
                c2 = '0' if i == 0 else f'v{s2}'
                A(f'v_dot2_f32_bf16 v{s1}, v{pk+i}, s{sONE}, {c1}')
                A(f'v_dot2_f32_bf16 v{s2}, v{pk+i}, v{pk+i}, {c2}')
            A('s_nop 1')
        self.wave_reduce([(s1, 'v_add_f32'), (s2, 'v_add_f32')])
        A(f'v_readlane_b32 s{sBb}, v{s1}, 63')
        A(f'v_readlane_b32 s{sC}, v{s2}, 63')
        A(f'v_mov_b32 v{d0}, 0x3acccccd')
        A('s_nop 0')
        A(f'v_mul_f32 v{s1}, s{sBb}, v{d0}')
        A(f'v_mul_f32 v{s2}, s{sC}, v{d0}')
        A(f'v_fma_f32 v{s2}, -v{s1}, v{s1}, v{s2}')
        if shifted:
            A(f'v_add_f32 v{s1}, s{sA}, v{s1}')
        A(f'v_max_f32 v{s2}, 0, v{s2}')
        A(f'v_cvt_pk_bf16_f32 v{d0}, v{s1}, v{s2}')
        A(f'v_and_b32 v{s2}, 0xffff0000, v{d0}')
        A(f'v_add_f32 v{s2}, 0x3727c5ac, v{s2}')
        A(f'v_lshlrev_b32 v{s1}, 16, v{d0}')
        A(f'v_cvt_pk_bf16_f32 v{s2}, v{s2}, v{s2}')
        A(f'v_and_b32 v{s2}, 0xffff0000, v{s2}')
        A(f'v_sqrt_f32 v{s2}, v{s2}')
        if shifted:
            A(f'v_sub_f32 v{s1}, s{sA}, v{s1}')
        else:
            A(f'v_sub_f32 v{s1}, 0, v{s1}')
        A(f'v_cvt_pk_bf16_f32 v{s2}, v{s2}, v{s2}')
        A(f'v_and_b32 v{s2}, 0xffff0000, v{s2}')
        A(f'v_rcp_f32 v{s2}, v{s2}')
        if shifted:
            for i in range(5):
                A(f'v_pk_add_f32 v[{f+2*i}:{f+2*i+1}], v[{f+2*i}:{f+2*i+1}], v[{s1}:{s1+1}] op_sel_hi:[1,0]')
        else:
            for i in range(5):
                A(f'v_dot2_f32_bf16 v{f+2*i}, v{pk+i}, s{sLO}, v{s1}')
                A(f'v_dot2_f32_bf16 v{f+2*i+1}, v{pk+i}, s{sHI}, v{s1}')
        for i in range(5):
            A(f'v_cvt_pk_bf16_f32 v{pk+i}, v{f+2*i}, v{f+2*i+1}')
        for i in range(5):
            A(f'v_lshlrev_b32 v{f+2*i}, 16, v{pk+i}')
            A(f'v_and_b32 v{f+2*i+1}, 0xffff0000, v{pk+i}')
        for i in range(5):
            A(f'v_pk_mul_f32 v[{f+2*i}:{f+2*i+1}], v[{f+2*i}:{f+2*i+1}], v[{s2}:{s2+1}] op_sel_hi:[1,0]')
        for i in range(5):
            A(f'v_cvt_pk_bf16_f32 v{pk+i}, v{f+2*i}, v{f+2*i+1}')

    def ln_stage_write(self, pk, va4):
        A = self.A
        A(f's_mul_i32 s{sA}, s{sWAVE}, 1296')
        A(f'v_add_u32 v{va4}, s{sA}, v{va4}')
        for i in range(5):
            A(f'ds_write_b32 v{va4}, v{pk+i} offset:{L_STAGE + 256*i}')
        A('s_waitcnt lgkmcnt(0)')

    def gemm_pre(self, Kh, RS):
        A = self.A
        self.lane(24)
        A('v_and_b32 v25, 15, v24')
        A('v_lshrrev_b32 v26, 4, v24')
        A('v_and_b32 v27, 7, v25')
        A('v_lshrrev_b32 v28, 3, v25')
        A(f'v_mul_u32_u24 v27, {RS}, v27')
        A(f'v_mul_u32_u24 v28, {Kh*2}, v28')
        A('v_lshl_add_u32 v27, v26, 4, v27')
        A('v_add_u32 v27, v27, v28')

    def gemm(self, S, NT=5):
        A = self.A
        T = [4 + 4 * k for k in range(NT)]
        for j in range(min(NT, S)):
            A(f'ds_read_b128 v[{T[j]}:{T[j]+3}], v27 offset:{L_STAGE + 64*j}')
        for j in range(S):
            issued = min(S, j + NT)
            A(f's_waitcnt lgkmcnt({issued - j - 1})')
            c = '0' if j == 0 else 'v[0:3]'
            A(f'v_mfma_f32_16x16x32_bf16 v[0:3], v[{VW+4*j}:{VW+4*j+3}], v[{T[j%NT]}:{T[j%NT]+3}], {c}')
            if j + NT < S:
                A(f'ds_read_b128 v[{T[j%NT]}:{T[j%NT]+3}], v27 offset:{L_STAGE + 64*(j+NT)}')
        self.combine()

    def combine(self):
        A = self.A
        A('s_nop 7')
        A('s_nop 0')
        for r in range(4):
            A(f'v_mov_b32_dpp v{4+r}, v{r} row_ror:8 row_mask:0xf bank_mask:0xf')
        A('s_nop 0')
        for r in range(4):
            A(f'v_permlane32_swap_b32 v{4+r}, v{8+r}')
        A('s_nop 0')
        for r in range(4):
            A(f'v_add_f32 v{r}, v{r}, v{8+r}')

    def p_addr_pre(self, mb):
        A = self.A
        A(f's_mul_i32 s{sA}, s{sX}, 20480')
        A(f's_lshl_b32 s{sBb}, s{sRU}, 3')
        A(f's_add_u32 s{sBb}, s{sBb}, s{sWAVE}')
        A(f's_lshl_b32 s{sBb}, s{sBb}, 8')
        A(f's_add_u32 s{sA}, s{sA}, s{sBb}')
        A(f's_lshr_b32 s{sBb}, s{sA}, 13')
        A(f's_lshl_b32 s{sBb}, s{sBb}, 14')
        A(f's_and_b32 s{sA}, s{sA}, 8191')
        A(f's_add_u32 s{sA}, s{sA}, s{sBb}')
        A(f's_add_u32 s{sA}, s{sA}, s{sLOFF}')
        A(f's_add_u32 s{sA}, s{sA}, {mb}')
        A(f's_add_u32 s{sF}, s{sA}, s{sRHO}')
        A(f's_xor_b32 s{sE}, s{sF}, 8192')
        A('v_lshlrev_b32 v29, 5, v25')
        A('v_lshl_add_u32 v29, v26, 4, v29')

    def p_store(self):
        A = self.A
        for r in range(4):
            A(f'v_min_u32 v{r}, 0xfffffffe, v{r}')
        self.mask16()
        A(f'buffer_store_dwordx4 v[0:3], v29, s[{S_WS}:{S_WS+3}], s{sE} offen sc1')
        A(f'buffer_store_dwordx4 v[0:3], v29, s[{S_WS}:{S_WS+3}], s{sF} offen sc1')
        self.unmask()

    def q_addr_pre(self, loff):
        A = self.A
        A(f's_lshl_b32 s{sA}, s{sX}, 6')
        A(f's_lshl_b32 s{sBb}, s{sRU}, 3')
        A(f's_add_u32 s{sA}, s{sA}, s{sBb}')
        A(f's_add_u32 s{sA}, s{sA}, s{sWAVE}')
        A(f's_lshl_b32 s{sA}, s{sA}, 7')
        A(f's_add_u32 s{sE}, s{sA}, {MB_Q + loff}')
        A('v_lshlrev_b32 v29, 4, v25')
        A('v_lshl_add_u32 v29, v26, 3, v29')

    def pack4(self):
        A = self.A
        A('v_cvt_pk_bf16_f32 v4, v0, v1')
        A('v_cvt_pk_bf16_f32 v5, v2, v3')
        A('v_min_u32 v4, 0xfffffffe, v4')
        A('v_min_u32 v5, 0xfffffffe, v5')

    def q_loads(self, va):
        A = self.A
        self.lane(va)
        A(f'v_and_b32 v27, 1, v{va}')
        A(f'v_lshrrev_b32 v{va}, 4, v{va}')
        A(f'v_lshl_add_u32 v{va}, v27, 2, v{va}')
        A(f'v_lshlrev_b32 v{va}, 7, v{va}')
        A(f'v_xor_b32 v27, 512, v{va}')
        A(f's_lshl_b32 s{sA}, s{sH}, 11')
        A(f's_lshl_b32 s{sBb}, s{sB}, 4')
        A(f's_add_u32 s{sA}, s{sA}, s{sBb}')
        A(f's_add_u32 s{sA}, s{sA}, s{sLOFF}')
        A(f's_add_u32 s{sD}, s{sA}, {MB_Q}')
        return [f'buffer_load_dwordx4 v[{4*j}:{4*j+3}], v{va if j < 2 else 27}, s[{S_WS}:{S_WS+3}], s{sD} offen offset:{1024*(j & 1)} sc1' for j in range(4)]

    def qk_part1(self):
        A = self.A
        D = [16, 20]
        X = 24
        C0, C1 = 28, 29
        A('s_waitcnt lgkmcnt(0)')

        def compact(i):
            d = D[i % 2]
            for r in range(4):
                A(f'v_cndmask_b32 v{X+r}, v{X+r}, v{d+r}, s[{sM64}:{sM64+1}]')
            if i == 7:
                A(f's_mov_b32 s{sM64}, 0x00020002')
                A(f's_mov_b32 s{sM64+1}, 0x00010001')
            else:
                A(f's_lshl_b64 s[{sM64}:{sM64+1}], s[{sM64}:{sM64+1}], 2')
        A(f's_mov_b32 s{sM64}, 0x00010001')
        A(f's_mov_b32 s{sM64+1}, 0x00020002')
        for i in range(16):
            d = D[i % 2]
            qb = 8 * (i >> 3)
            for j in range(2):
                c = '0' if j == 0 else f'v[{d}:{d+3}]'
                k = VK + 8 * i + 4 * j
                A(f'v_mfma_f32_16x16x32_bf16 v[{d}:{d+3}], v[{k}:{k+3}], v[{qb+4*j}:{qb+4*j+3}], {c}')
            if i > 0:
                A('s_nop 5')
                compact(i - 1)
        A('s_nop 3')
        compact(15)
        A('s_nop 1')
        for r in range(4):
            A(f'v_mov_b32_dpp v{X+r}, v{X+r} quad_perm:[1,0,3,2] row_mask:0xc bank_mask:0xf')
        A('s_nop 0')
        A(f'v_permlane32_swap_b32 v{X}, v{X+2}')
        A(f'v_permlane32_swap_b32 v{X+1}, v{X+3}')
        A('s_nop 0')
        A(f'v_add_f32 v{C0}, v{X}, v{X+2}')
        A(f'v_add_f32 v{C1}, v{X+1}, v{X+3}')
        self.astamp(2)
        a0, a1, t0, m = 16, 17, 18, 19
        A(f'v_cvt_pk_bf16_f32 v{t0}, v{C0}, v{C1}')
        A(f'v_lshlrev_b32 v{a0}, 16, v{t0}')
        A(f'v_and_b32 v{a1}, 0xffff0000, v{t0}')
        A(f'v_mul_f32 v{a0}, 0x3db504f3, v{a0}')
        A(f'v_mul_f32 v{a1}, 0x3db504f3, v{a1}')
        A(f'v_cvt_pk_bf16_f32 v{t0}, v{a0}, v{a1}')
        A(f'v_lshlrev_b32 v{a0}, 16, v{t0}')
        A(f'v_and_b32 v{a1}, 0xffff0000, v{t0}')
        A(f'v_mov_b32 v{t0}, 0xff7fffff')
        A(f'v_max3_f32 v{m}, v{a0}, v{a1}, v{t0}')
        self.wave_reduce([(m, 'v_max_f32')])
        A(f'v_readlane_b32 s{sMW}, v{m}, 63')
        A('s_nop 1')
        A(f'v_subrev_f32 v{a0}, s{sMW}, v{a0}')
        A(f'v_subrev_f32 v{a1}, s{sMW}, v{a1}')
        A(f'v_mul_f32 v{a0}, 0x3fb8aa3b, v{a0}')
        A(f'v_mul_f32 v{a1}, 0x3fb8aa3b, v{a1}')
        A(f'v_exp_f32 v{a0}, v{a0}')
        A(f'v_exp_f32 v{a1}, v{a1}')
        A('s_nop 0')
        A(f'v_add_f32 v{m}, v{a0}, v{a1}')
        self.wave_reduce([(m, 'v_add_f32')])
        A(f'v_readlane_b32 s{sBb}, v{m}, 63')
        A(f's_lshl_b32 s{sC}, s{sWAVE}, 3')
        A(f'v_mov_b32 v20, s{sMW}')
        A(f'v_mov_b32 v21, s{sBb}')
        A(f'v_mov_b32 v22, s{sC}')
        A('s_mov_b64 exec, 1')
        A(f'ds_write_b64 v22, v[20:21] offset:{L_XCH}')
        A('s_mov_b64 exec, -1')

    def softmax_part2(self):
        A = self.A
        a0, a1 = 16, 17
        self.lane(22)
        A('v_and_b32 v23, 7, v22')
        A('v_lshlrev_b32 v23, 3, v23')
        A('v_and_b32 v22, 15, v22')
        A('v_and_b32 v18, 1, v22')
        A('v_lshlrev_b32 v18, 4, v18')
        A('v_mov_b32 v19, 0xffff')
        A('v_lshlrev_b32 v18, v18, v19')
        A('v_lshrrev_b32 v22, 1, v22')
        for jj in range(2):
            A(f'v_cmp_eq_u32 vcc, {jj}, v22')
            A('s_nop 1')
            A(f'v_cndmask_b32 v{14+jj}, 0, v18, vcc')
        A('s_waitcnt lgkmcnt(0)')
        A('s_barrier')
        self.astamp(4)
        A(f'ds_read_b64 v[20:21], v23 offset:{L_XCH}')
        A('s_waitcnt lgkmcnt(0)')
        A('v_mov_b32 v22, v20')
        for k in (1, 2, 4):
            A('s_nop 1')
            A(f'v_max_f32_dpp v22, v22, v22 row_ror:{k} row_mask:0xf bank_mask:0xf')
        A('v_sub_f32 v20, v20, v22')
        A(f'v_sub_f32 v23, s{sMW}, v22')
        A('v_mul_f32 v20, 0x3fb8aa3b, v20')
        A('v_mul_f32 v23, 0x3fb8aa3b, v23')
        A('v_exp_f32 v20, v20')
        A('v_exp_f32 v23, v23')
        A('s_nop 0')
        A('v_mul_f32 v21, v21, v20')
        A(f'v_mul_f32 v{a0}, v{a0}, v23')
        A(f'v_mul_f32 v{a1}, v{a1}, v23')
        for k in (1, 2, 4):
            if k > 1:
                A('s_nop 1')
            A(f'v_add_f32_dpp v21, v21, v21 row_ror:{k} row_mask:0xf bank_mask:0xf')
        A('v_rcp_f32 v21, v21')
        A('s_nop 0')
        A(f'v_mul_f32 v{a0}, v{a0}, v21')
        A(f'v_mul_f32 v{a1}, v{a1}, v21')
        A(f'v_cvt_pk_bf16_f32 v12, v{a0}, v{a0}')
        A(f'v_cvt_pk_bf16_f32 v13, v{a1}, v{a1}')
        A('s_nop 1')

    def pv_build(self, oc):
        A = self.A
        oc = 2 * (oc & 7) + (oc >> 3)
        A(f'v_and_b32_dpp v8, v12, v14 row_newbcast:{oc} row_mask:0xf bank_mask:0xf')
        A(f'v_and_b32_dpp v9, v12, v15 row_newbcast:{oc} row_mask:0xf bank_mask:0xf')
        A(f'v_and_b32_dpp v10, v13, v14 row_newbcast:{oc} row_mask:0xf bank_mask:0xf')
        A(f'v_and_b32_dpp v11, v13, v15 row_newbcast:{oc} row_mask:0xf bank_mask:0xf')

    def pv(self):
        A = self.A
        T = [16, 20, 24]
        self.lane(31)
        A('v_and_b32 v29, 15, v31')
        A('v_lshrrev_b32 v30, 4, v31')
        A('v_lshlrev_b32 v28, 3, v29')
        A('v_and_b32 v16, 1, v30')
        A('v_lshl_add_u32 v28, v16, 10, v28')
        A('v_lshrrev_b32 v16, 1, v30')
        A('v_lshl_add_u32 v28, v16, 9, v28')
        A(f'v_add_u32 v28, s{sKLA}, v28')
        A('v_lshlrev_b32 v30, 6, v30')
        A('v_lshl_add_u32 v29, v29, 2, v30')
        A(f's_lshl_b32 s{sA}, s{sWAVE}, 9')
        A(f'v_add_u32 v29, s{sA}, v29')
        A(f's_lshl_b32 s{sA}, s{sX}, 13')
        A(f's_lshl_b32 s{sBb}, s{sB}, 10')
        A(f's_add_u32 s{sA}, s{sA}, s{sBb}')
        A(f's_and_b32 s{sBb}, s{sH}, 3')
        A(f's_lshl_b32 s{sBb}, s{sBb}, 8')
        A(f's_add_u32 s{sA}, s{sA}, s{sBb}')
        A(f's_add_u32 s{sA}, s{sA}, s{sLOFF}')
        A(f's_add_u32 s{sE}, s{sA}, {MB_O}')
        A('v_lshlrev_b32 v30, 3, v31')
        A('v_lshlrev_b32 v31, 2, v31')
        A('s_waitcnt vmcnt(28)')
        order = self.o.get('pvorder') or [0, 1, 9, 2, 3, 10, 4, 5, 11, 6, 7, 12, 8, 13, 14, 15]
        lq = [(oc, dh) for oc in order if oc < 9 for dh in range(2)]
        issued = 0

        def issue():
            nonlocal issued
            if issued >= len(lq):
                return
            oc, dh = lq[issued]
            t = T[issued % 3]
            if self.o.get('rd2'):
                A(f'ds_read2_b64 v[{t}:{t+3}], v28 offset0:{16*dh} offset1:{16*dh+32}')
                if dh == 1:
                    A('v_add_u32 v28, 2048, v28')
            else:
                A(f'ds_read_b64 v[{t}:{t+1}], v28 offset:{oc*2048 + dh*128}')
                A(f'ds_read_b64 v[{t+2}:{t+3}], v28 offset:{oc*2048 + dh*128 + 256}')
            issued += 1
        for _ in range(3):
            issue()
        first = [True, True]
        li = 0
        for oc in order:
            self.pv_build(oc)
            for dh in range(2):
                d = 4 * dh
                c = '0' if first[dh] else f'v[{d}:{d+3}]'
                first[dh] = False
                if oc < 9:
                    A(f's_waitcnt lgkmcnt({(1 if self.o.get("rd2") else 2) * (issued - li - 1)})')
                    if dh == 0:
                        A('s_nop 0')
                    t = T[li % 3]
                    A(f'v_mfma_f32_16x16x32_bf16 v[{d}:{d+3}], v[{t}:{t+3}], v[8:11], {c}')
                    li += 1
                    issue()
                else:
                    q = 2 * oc + dh
                    r = VV + 4 * (q - 18)
                    if dh == 0:
                        A(f's_waitcnt vmcnt({2 * (31 - q - 1)})')
                        A('s_nop 0')
                    A(f'v_mfma_f32_16x16x32_bf16 v[{d}:{d+3}], v[{r}:{r+3}], v[8:11], {c}')

    def o_finish(self):
        A = self.A
        A('s_mov_b32 exec_lo, 0x000f000f')
        A('s_mov_b32 exec_hi, 0x000f000f')
        A('s_nop 5')
        for dh in range(2):
            for r in range(4):
                A(f'ds_write_b32 v29, v{4*dh+r} offset:{L_OP + 256*dh + 16*r}')
        A('s_mov_b64 exec, -1')
        A('s_waitcnt lgkmcnt(0)')
        A('s_barrier')
        ld = self.nl('OF')
        A(f's_cmp_lg_u32 s{sWAVE}, 0')
        A(f's_cbranch_scc1 {ld}')
        for w in range(8):
            A(f'ds_read_b64 v[{2*w}:{2*w+1}], v30 offset:{L_OP + 512*w}')
        for w in range(1, 8):
            A(f's_waitcnt lgkmcnt({7-w})')
            A(f'v_pk_add_f32 v[0:1], v[0:1], v[{2*w}:{2*w+1}]')
        A('v_cvt_pk_bf16_f32 v0, v0, v1')
        A('v_min_u32 v0, 0xfffffffe, v0')
        self.store_local(f'buffer_store_dword v0, v31, s[{S_WS}:{S_WS+3}], s{sE} offen')
        self.lab(ld)

    def table_wait(self, v=16):
        A = self.A
        lr, ld = self.nl('TB'), self.nl('TBD')

        def chk():
            A(f's_and_b32 s{sA}, s8, s9')
            for k in range(10, 16):
                A(f's_and_b32 s{sA}, s{sA}, s{k}')
            A(f's_bitcmp1_b32 s{sA}, 30')
        A(f's_load_dwordx8 s[8:15], s[{S_DBG}:{S_DBG+1}], 0')
        A('s_waitcnt lgkmcnt(0)')
        chk()
        A(f's_cbranch_scc1 {ld}')
        self.lane(v)
        A(f'v_and_b32 v{v}, 7, v{v}')
        A(f'v_lshlrev_b32 v{v}, 2, v{v}')
        self.lab(lr)
        A('s_sleep 32')
        A(f'buffer_load_dword v{v+1}, v{v}, s[{S_DBG}:{S_DBG+3}], 0 offen sc1')
        A('s_waitcnt vmcnt(0)')
        A(f'v_cmp_gt_u32 vcc, 0x40000000, v{v+1}')
        l2 = self.nl('TBE')
        A('s_cmp_eq_u64 vcc, 0')
        A(f's_cbranch_scc1 {l2}')
        self.spin_check(lr)
        self.lab(l2)
        A(f's_load_dwordx8 s[8:15], s[{S_DBG}:{S_DBG+1}], 0 glc')
        A('s_waitcnt lgkmcnt(0)')
        self.lab(ld)

    def table_decode(self):
        A = self.A
        o = self.o
        A(f's_load_dword s7, s[{S_DBG}:{S_DBG+1}], 128')
        A(f's_mov_b32 s{sFAST}, 0')
        for k in range(8, 16):
            A(f's_bfe_u32 s{sA}, s{k}, {(8 << 16) | 17}')
            A(f's_bfe_u32 s{sBb}, s{k}, {(11 << 16) | 6}')
            A(f's_mul_i32 s{sA}, s{sA}, s{sA}')
            A(f's_lshl_b32 s{sBb}, s{sBb}, 5')
            A(f's_xor_b32 s{sA}, s{sA}, s{sBb}')
            A(f's_or_b32 s{sFAST}, s{sFAST}, s{sA}')
        A(f's_cmp_eq_u32 s{sFAST}, 0')
        A(f's_cselect_b32 s{sFAST}, 1, 0')
        if o.get('slow'):
            A(f's_mov_b32 s{sFAST}, 0')
        A('s_waitcnt lgkmcnt(0)')
        A(f's_and_b32 s{sE}, s7, 0xffff')
        A(f's_lshl_b32 s{sE}, s{sE}, 1')
        A('s_lshr_b32 s7, s7, 16')
        A(f's_cmp_ge_u32 s{sE}, s7')
        A(f's_cselect_b32 s{sE}, 0, 1')
        if o.get('forcepar') is not None:
            A(f's_mov_b32 s{sE}, {o["forcepar"]}')
        A(f's_getreg_b32 s{sA}, hwreg(HW_REG_XCC_ID)')
        A(f's_bfe_u32 s{sA}, s{sA}, {(1 << 16) | 2}')
        A(f's_xor_b32 s{sE}, s{sE}, s{sA}')
        A(f's_lshl_b32 s{sRHO}, s{sE}, 13')

    def probe(self):
        A = self.A
        o = self.o
        A('s_and_b32 s3, s2, 63')
        A('s_lshl_b32 s3, s3, 7')
        A(f's_lshr_b32 s{sA}, s2, 6')
        A(f's_lshl_b32 s{sA}, s{sA}, 14')
        A(f's_add_u32 s3, s3, s{sA}')
        A('s_add_u32 s3, s3, 0x1E0000')
        A(f's_add_u32 s{sM64}, s{S_WS}, s3')
        A(f's_addc_u32 s{sM64+1}, s{S_WS+1}, 0')
        A(f's_load_dword s{sA}, s[{sM64}:{sM64+1}], 0 glc')
        A(f's_load_dword s{sBb}, s[{sM64}:{sM64+1}], 0x2000 glc')
        A('s_waitcnt lgkmcnt(0)')
        A(f's_mov_b32 s{sE}, 0')
        for rep in range(o.get('nprobe', 2)):
            A(f's_memtime s[{sM64b}:{sM64b+1}]')
            A('s_waitcnt lgkmcnt(0)')
            A(f's_load_dword s{sA}, s[{sM64}:{sM64+1}], 0 glc')
            A('s_waitcnt lgkmcnt(0)')
            A(f's_memtime s[{sC}:{sC+1}]')
            A('s_waitcnt lgkmcnt(0)')
            A(f's_load_dword s{sA}, s[{sM64}:{sM64+1}], 0x2000 glc')
            A('s_waitcnt lgkmcnt(0)')
            A(f's_memtime s[{sA}:{sA+1}]')
            A('s_waitcnt lgkmcnt(0)')
            A(f's_lshl_b32 s{sC}, s{sC}, 1')
            A(f's_sub_u32 s{sC}, s{sC}, s{sM64b}')
            A(f's_sub_u32 s{sC}, s{sC}, s{sA}')
            A(f's_add_u32 s{sE}, s{sE}, s{sC}')
        A(f's_lshr_b32 s{sE}, s{sE}, 31')
        A(f's_getreg_b32 s{sA}, hwreg(HW_REG_XCC_ID)')
        A(f's_and_b32 s{sA}, s{sA}, 7')
        A(f's_lshr_b32 s{sF}, s{sA}, 2')
        A(f's_xor_b32 s{sE}, s{sE}, s{sF}')
        A(f's_or_b32 s{sE}, s{sE}, 0x10000')
        A(f'v_mov_b32 v8, s{sE}')
        A('v_mov_b32 v9, 128')
        A('s_mov_b64 exec, 1')
        A(f'buffer_atomic_add v8, v9, s[{S_DBG}:{S_DBG+3}], 0 offen sc1')
        A('s_mov_b64 exec, -1')

    def flag(self):
        A = self.A
        A(f's_lshl_b32 s{sBb}, s{sX}, 2')
        A('v_mov_b32 v8, s7')
        A(f'v_mov_b32 v9, s{sBb}')
        A('s_mov_b64 exec, 1')
        A(f'buffer_atomic_add v8, v9, s[{S_DBG}:{S_DBG+3}], 0 offen sc1')
        A('s_mov_b64 exec, -1')

    def stream_addr(self, vk, vl, vr, tmp):
        A = self.A
        self.lane(tmp)
        A(f's_lshl_b32 s{sA}, s{sWAVE}, 15')
        A(f'v_lshlrev_b32 v{vl}, 4, v{tmp}')
        A(f'v_add_u32 v{vl}, s{sA}, v{vl}')
        A(f'v_and_b32 v{vk}, 7, v{tmp}')
        A(f'v_lshlrev_b32 v{vk}, 8, v{vk}')
        A(f'v_bfe_u32 v{vr}, v{tmp}, 3, 1')
        A(f'v_lshl_add_u32 v{vk}, v{vr}, 6, v{vk}')
        A(f'v_lshrrev_b32 v{vr}, 4, v{tmp}')
        A(f'v_lshl_add_u32 v{vk}, v{vr}, 4, v{vk}')
        A(f'v_add_u32 v{vk}, s{sA}, v{vk}')
        A(f'v_and_b32 v{vr}, 15, v{tmp}')
        A(f'v_lshlrev_b32 v{vr}, 3, v{vr}')
        A(f'v_add_u32 v{vr}, s{sA}, v{vr}')
        A(f'v_bfe_u32 v{tmp}, v{tmp}, 4, 1')
        A(f'v_lshl_add_u32 v{vr}, v{tmp}, 10, v{vr}')
        self.lane(tmp)
        A(f'v_lshrrev_b32 v{tmp}, 5, v{tmp}')
        A(f'v_lshl_add_u32 v{vr}, v{tmp}, 9, v{vr}')

    def build(self):
        A = self.A
        L = self.L
        o = self.o
        L.append(HEADER.rstrip('\n'))
        L.append(f'; @launch grid=(256,1,1) block=(512,1,1) lds={LDS_BYTES}')
        L.append('.amdgcn_target "amdgcn-amd-amdhsa--gfx950"')
        L.append('.text')
        L.append(f'.globl {NAME}_kernel')
        L.append('.p2align 8')
        L.append(f'.type {NAME}_kernel,@function')
        L.append(f'{NAME}_kernel:')
        A('s_cmp_ge_u32 s2, 256')
        A('s_cbranch_scc1 L_end')
        if self.ts:
            for k in range(1, 11):
                A(f's_mov_b64 s[{sTS+2*k}:{sTS+2*k+1}], 0')
        self.stamp(0)
        A(f's_load_dwordx2 s[{P_X}:{P_X+1}], s[0:1], 0')
        A(f's_load_dwordx4 s[{S_T0}:{S_T0+3}], s[0:1], 8')
        A(f's_load_dwordx4 s[{S_T1}:{S_T1+3}], s[0:1], 24')
        A('s_load_dwordx4 s[68:71], s[0:1], 48')
        A('s_load_dwordx4 s[72:75], s[0:1], 64')
        A('s_load_dwordx4 s[60:63], s[0:1], 80')
        A('s_load_dwordx2 s[64:65], s[0:1], 96')
        A(f's_and_b32 s{sX}, s2, 7')
        A(f's_lshr_b32 s{sS}, s2, 3')
        A(f's_and_b32 s{sH}, s{sS}, 3')
        A(f's_lshl_b32 s{sA}, s{sX}, 2')
        A(f's_add_u32 s{sH}, s{sH}, s{sA}')
        A(f's_lshr_b32 s{sB}, s{sS}, 2')
        A(f's_lshl_b32 s{sA}, s{sB}, 5')
        A(f's_add_u32 s{sA}, s{sA}, s{sH}')
        A(f's_lshl_b32 s{sA}, s{sA}, 20')
        A(f's_add_u32 s{sA}, s{sA}, 0xC0000')
        A('v_lshrrev_b32 v1, 6, v0')
        A('v_and_b32 v2, 63, v0')
        A(f'v_readfirstlane_b32 s{sWAVE}, v1')
        A(f's_mov_b32 s{sLOFF}, 0')
        A(f's_mov_b32 s{sSPIN}, 0')
        A('s_waitcnt lgkmcnt(0)')
        A(f's_add_u32 s{S_K}, s{S_T0}, s{sA}')
        A(f's_addc_u32 s{S_K+1}, s{S_T0+1}, 0')
        A(f's_mov_b32 s{S_K+2}, 0x40000')
        A(f's_mov_b32 s{S_K+3}, 0x20000')
        A(f's_add_u32 s{S_V}, s{S_T0+2}, s{sA}')
        A(f's_addc_u32 s{S_V+1}, s{S_T0+3}, 0')
        A(f's_mov_b32 s{S_V+2}, 0x40000')
        A(f's_mov_b32 s{S_V+3}, 0x20000')
        A(f's_add_u32 s{S_WS}, s64, 0x1fffff')
        A(f's_addc_u32 s{S_WS+1}, s65, 0')
        A(f's_and_b32 s{S_WS}, s{S_WS}, 0xffe00000')
        A(f's_mov_b32 s{S_WS+2}, {0x1000000 if self.ts else WIN_BYTES}')
        A(f's_mov_b32 s{S_WS+3}, 0x20000')
        A(f's_mov_b64 s[{S_DBG}:{S_DBG+1}], s[62:63]')
        A(f's_mov_b32 s{S_DBG+2}, 256')
        A(f's_mov_b32 s{S_DBG+3}, 0x20000')
        A(f's_mov_b64 s[{S_OUT}:{S_OUT+1}], s[60:61]')
        A(f's_mov_b32 s{S_OUT+2}, 10240')
        A(f's_mov_b32 s{S_OUT+3}, 0x20000')
        A(f's_mov_b64 s[{P_WQ}:{P_WQ+1}], s[{S_T1}:{S_T1+1}]')
        A(f's_mov_b64 s[{P_WO}:{P_WO+1}], s[{S_T1+2}:{S_T1+3}]')
        A(f's_mov_b64 s[{P_W1}:{P_W1+1}], s[68:69]')
        A(f's_mov_b64 s[{P_B1}:{P_B1+1}], s[70:71]')
        A(f's_mov_b64 s[{P_W2}:{P_W2+1}], s[72:73]')
        A('s_mov_b64 s[0:1], s[74:75]')
        for i in range(8):
            A(f's_mov_b32 s{sBLK+i}, {i*4096}')
        A(f's_mul_i32 s{sKLA}, s{sWAVE}, 18432')
        A(f's_add_u32 s{sKLA}, s{sKLA}, {L_V}')
        A(f's_cmp_lt_u32 s{sX}, 3')
        A(f's_cselect_b32 s{sNM1}, 4, 3')
        A(f's_lshl_b32 s{sGX}, s{sX}, 2')
        A(f's_mul_i32 s{sA}, s{sX}, 3')
        A(f's_add_u32 s{sA}, s{sA}, 3')
        A(f's_min_u32 s{sGX}, s{sGX}, s{sA}')
        A(f's_mov_b32 s{sRT}, 1')
        A(f's_mov_b32 s{sRU}, s{sS}')
        for lo, typ in ((8, 2), (18, 4), (28, 3)):
            A(f's_sub_u32 s{sA}, s{sS}, {lo}')
            A(f's_cmp_ge_u32 s{sS}, {lo}')
            A(f's_cselect_b32 s{sRT}, {typ}, s{sRT}')
            A(f's_cselect_b32 s{sRU}, s{sA}, s{sRU}')
        lb = self.nl('RN')
        A(f's_cmp_lg_u32 s{sRT}, 3')
        A(f's_cbranch_scc1 {lb}')
        A(f's_cmp_ge_u32 s{sRU}, s{sNM1}')
        A(f's_cselect_b32 s{sRT}, 0, s{sRT}')
        self.lab(lb)
        A(f's_mov_b32 s{S_T0+3}, 0x20000')
        A(f's_mov_b32 s{S_T1+3}, 0x20000')
        A(f's_and_b32 s{sA}, s{sRT}, 3')
        A(f's_cmp_eq_u32 s{sA}, 0')
        A(f's_cselect_b32 s{sLIGHT}, 1, 0')

        CPOL = {0: ' sc1', 1: ' sc1 nt', 2: ' nt', 3: '', 4: ' sc0 sc1'}[o.get('cpol', 0)]
        l_w7, l_small = self.nl('W7'), self.nl('SM')
        A(f's_cmp_eq_u32 s{sWAVE}, 7')
        A(f's_cbranch_scc1 {l_w7}')
        A('v_lshrrev_b32 v3, 3, v2')
        A(f's_lshl_b32 s{sA}, s{sWAVE}, 3')
        A(f'v_add_u32 v3, s{sA}, v3')
        A('v_and_b32 v4, 7, v2')
        A('v_bfe_u32 v6, v2, 4, 1')
        A('v_xor_b32 v4, v4, v6')
        A(f's_and_b32 s{sA}, s{sWAVE}, 1')
        A(f's_lshl_b32 s{sA}, s{sA}, 1')
        A(f'v_xor_b32 v4, s{sA}, v4')
        A('v_lshlrev_b32 v4, 4, v4')

        def dma(ptr, size, stride, offcode, ninstr, khi):
            A(f's_mov_b64 s[{S_T0}:{S_T0+1}], s[{ptr}:{ptr+1}]')
            A(f's_mov_b32 s{S_T0+2}, {size}')
            offcode()
            A(f'v_mul_u32_u24 v5, {stride}, v3')
            A(f'v_add3_u32 v5, v5, v4, s{sC}')
            A(f's_lshl_b32 s{sD}, s{sWAVE}, 10')
            nmax = ninstr if isinstance(ninstr, int) else 32
            kmax = (nmax + 6) // 7
            for k in range(kmax):
                if isinstance(ninstr, int):
                    if 7 * k + 6 >= ninstr:
                        A(f's_cmp_ge_u32 s{sWAVE}, {ninstr - 7*k}')
                        A(f's_cbranch_scc1 {l_small}')
                elif 7 * k + 6 >= 24:
                    A(f's_add_u32 s{sA}, s{sWAVE}, {7*k}')
                    A(f's_cmp_ge_u32 s{sA}, s{ninstr[0]}')
                    A(f's_cbranch_scc1 {l_small}')
                A(f's_add_u32 s{sA}, s{sWAVE}, {7*k}')
                A(f's_cmp_ge_u32 s{sA}, {khi if isinstance(khi, int) else "s%d" % khi[0]}')
                A(f's_cselect_b32 s{sA}, {64 + 32*(k & 1)}, {32*(k & 1)}')
                A(f'v_xor_b32 v6, s{sA}, v5')
                A(f's_add_u32 m0, s{sD}, {L_STG + 7168*k}')
                A(f's_mov_b32 s{sC}, {k*56*stride}')
                A(f'buffer_load_dwordx4 v6, s[{S_T0}:{S_T0+3}], s{sC} offen nt lds')
            A(f's_branch {l_small}')

        def q_off():
            A(f's_lshl_b32 s{sC}, s{sX}, 10')
            A(f's_lshl_b32 s{sD}, s{sRU}, 7')
            A(f's_add_u32 s{sC}, s{sC}, s{sD}')

        def m1_off():
            A(f's_add_u32 s{sC}, s{sGX}, s{sRU}')
            A(f's_lshl_b32 s{sC}, s{sC}, 7')

        def wo_off():
            A(f's_mul_i32 s{sC}, s{sX}, {512*1280}')
            A(f's_lshl_b32 s{sD}, s{sRU}, 7')
            A(f's_add_u32 s{sC}, s{sC}, s{sD}')

        def m2_off():
            A(f's_mul_i32 s{sC}, s{sGX}, {64*1280}')
            A(f's_lshl_b32 s{sD}, s{sRU}, 7')
            A(f's_add_u32 s{sC}, s{sC}, s{sD}')
            A(f's_lshl_b32 s{sE}, s{sNM1}, 3')
            A(f's_lshl_b32 s{sF}, s{sNM1}, 2')
        l2, l3, l4 = self.nl('D2'), self.nl('D3'), self.nl('D4')
        if o.get('nowt'):
            A(f's_branch {l_small}')
        A(f's_cmp_eq_u32 s{sRT}, 0')
        A(f's_cbranch_scc1 {l_small}')
        A(f's_cmp_eq_u32 s{sRT}, 2')
        A(f's_cbranch_scc1 {l2}')
        A(f's_cmp_eq_u32 s{sRT}, 3')
        A(f's_cbranch_scc1 {l3}')
        A(f's_cmp_eq_u32 s{sRT}, 4')
        A(f's_cbranch_scc1 {l4}')
        dma(P_WQ, 640 * 8192, 8192, q_off, 80, 40)
        self.lab(l2)
        dma(P_WO, 4096 * 1280, 1280, wo_off, 64, 32)
        self.lab(l3)
        dma(P_W1, 640 * 3456, 3456, m1_off, 80, 40)
        self.lab(l4)
        dma(P_W2, 1728 * 1280, 1280, m2_off, (sE,), (sF,))

        self.lab(l_w7)
        for r in range(4):
            A(f'v_mov_b32 v{4+r}, -1')
        A('v_lshlrev_b32 v3, 4, v2')
        if o.get('clr4'):
            lcl = self.nl('CL')
            A(f's_cmp_lg_u32 s{sRT}, 4')
            A(f's_cbranch_scc1 {lcl}')
            A(f's_lshl_b32 s3, s{sRU}, 3')
            A(f's_add_u32 s3, s3, s{sX}')
            A('s_mul_i32 s3, s3, 24576')
            for kk in range(6):
                for k in range(4):
                    A(f'buffer_store_dwordx4 v[4:7], v3, s[{S_WS}:{S_WS+3}], s3 offen offset:{1024*k}{CPOL}')
                A('s_add_u32 s3, s3, 4096')
            self.lab(lcl)
        else:
            A('s_lshl_b32 s3, s2, 13')
            for k in range(4 if not o.get('noclear') else 0):
                A(f'buffer_store_dwordx4 v[4:7], v3, s[{S_WS}:{S_WS+3}], s3 offen offset:{1024*k}{CPOL}')
            A('s_add_u32 s3, s3, 4096')
            for k in range(4 if not o.get('noclear') else 0):
                A(f'buffer_store_dwordx4 v[4:7], v3, s[{S_WS}:{S_WS+3}], s3 offen offset:{1024*k}{CPOL}')
        A(f's_getreg_b32 s{sA}, hwreg(HW_REG_XCC_ID)')
        A(f's_and_b32 s{sA}, s{sA}, 7')
        A(f's_mul_i32 s{sBb}, s{sA}, s{sA}')
        A(f's_lshl_b32 s{sBb}, s{sBb}, 6')
        A(f's_lshl_b32 s{sA}, s{sA}, 17')
        A(f's_or_b32 s{sA}, s{sA}, s{sBb}')
        A(f's_or_b32 s{sA}, s{sA}, {1 << 25}')
        A(f's_lshl_b32 s{sBb}, s{sX}, 2')
        A(f'v_mov_b32 v8, s{sA}')
        A(f'v_mov_b32 v9, s{sBb}')
        A('s_waitcnt vmcnt(0)')
        A('s_mov_b64 exec, 1')
        A(f'buffer_atomic_add v8, v9, s[{S_DBG}:{S_DBG+3}], 0 offen sc1')
        A('s_mov_b64 exec, -1')

        self.lab(l_small)
        A(f's_mov_b64 s[{S_T0}:{S_T0+1}], s[{P_X}:{P_X+1}]')
        A(f's_mov_b32 s{S_T0+2}, 10240')
        lq, lr4, lm, le = self.nl('SQ'), self.nl('SR'), self.nl('SMM'), self.nl('SEnd')
        A(f's_cmp_eq_u32 s{sRT}, 4')
        A(f's_cbranch_scc1 {lr4}')
        A(f's_cmp_eq_u32 s{sRT}, 3')
        A(f's_cbranch_scc1 {lm}')
        A(f's_cmp_lg_u32 s{sRT}, 1')
        A(f's_cbranch_scc1 {le}')
        A(f's_mul_i32 s{sA}, s{sWAVE}, 1280')
        A('v_lshlrev_b32 v5, 2, v2')
        for i in range(5):
            A(f'buffer_load_dword v{10+i}, v5, s[{S_T0}:{S_T0+3}], s{sA} offen offset:{256*i}')
        A(f's_branch {le}')
        self.lab(lr4)
        A('v_lshrrev_b32 v5, 3, v2')
        A('v_and_b32 v6, 7, v2')
        A(f's_lshl_b32 s{sA}, s{sRU}, 3')
        A(f's_add_u32 s{sA}, s{sA}, s{sWAVE}')
        A(f's_lshl_b32 s{sA}, s{sA}, 4')
        A('v_lshlrev_b32 v6, 1, v6')
        A('v_mul_u32_u24 v5, 1280, v5')
        A('v_add_u32 v5, v5, v6')
        A(f'buffer_load_ushort v{VRES}, v5, s[{S_T0}:{S_T0+3}], s{sA} offen')
        A(f's_mov_b64 s[{S_T1}:{S_T1+1}], s[0:1]')
        A(f's_mov_b32 s{S_T1+2}, 1280')
        A(f'buffer_load_ushort v{VB2}, v6, s[{S_T1}:{S_T1+3}], s{sA} offen')
        A(f's_branch {le}')
        self.lab(lm)
        A(f's_mov_b64 s[{S_T1}:{S_T1+1}], s[{P_B1}:{P_B1+1}]')
        A(f's_mov_b32 s{S_T1+2}, 3456')
        A(f's_add_u32 s{sA}, s{sGX}, s{sRU}')
        A(f's_lshl_b32 s{sA}, s{sA}, 7')
        A('v_lshlrev_b32 v6, 1, v2')
        A(f'buffer_load_ushort v15, v6, s[{S_T1}:{S_T1+3}], s{sA} offen')
        self.lab(le)
        A(f's_mov_b32 s{sONE}, 0x3f803f80')
        A(f's_mov_b32 s{sLO}, 0x00003f80')
        A(f's_mov_b32 s{sHI}, 0x3f800000')

        self.stream_addr(30, 31, 28, 29)

        def kload(q):
            i, j = q
            val = VK + 16 * i + 4 * j
            ko = (j >> 1) * 2048 + (j & 1) * 128
            A(f'buffer_load_dwordx4 v[{val}:{val+3}], v30, s[{S_K}:{S_K+3}], s{sBLK+i} offen offset:{ko} nt')

        def vlds(q):
            oc, a = q
            i, rp = oc // 2, oc % 2
            imm = rp * 2048 + a * 1024
            A(f's_add_u32 m0, s{sKLA}, {oc*2048 + a*1024 - imm + 4096}')
            A('s_sub_u32 m0, m0, 4096')
            A('s_nop 0')
            A(f'buffer_load_dwordx4 v31, s[{S_V}:{S_V+3}], s{sBLK+i} offen offset:{imm} nt lds')

        def vreg(q):
            oc, dh, kk = q
            i, rp = oc // 2, oc % 2
            r = VV + 4 * (2 * (oc - 9) + dh) + 2 * kk
            A(f'buffer_load_dwordx2 v[{r}:{r+1}], v28, s[{S_V}:{S_V+3}], s{sBLK+i} offen offset:{rp*2048 + kk*256 + dh*128} nt')

        W = o.get('win', 12)
        N1 = o.get('n1', 12)
        if o.get('pure'):
            N1 = 78
        if o.get('prio') == 2:
            lbq = self.nl('PRI')
            A(f's_cmp_lt_u32 s{sWAVE}, 4')
            A(f's_cbranch_scc1 {lbq}')
            A('s_setprio 1')
            self.lab(lbq)
        if o.get('prio') == 1:
            for pw in range(1, 4):
                lbq = self.nl('PRI')
                A(f's_cmp_lt_u32 s{sWAVE}, {2*pw}')
                A(f's_cbranch_scc1 {lbq}')
                A(f's_setprio {pw}')
                self.lab(lbq)
        seq = [(kload, (i, j)) for i in range(8) for j in range(4)] + [(vlds, (oc, a)) for oc in range(9) for a in range(2)] + \
              [(vreg, (oc, dh, kk)) for oc in range(9, 16) for dh in range(2) for kk in range(2)]
        NTOT = len(seq)
        n = 0

        def issue_next(extra=0, nowait=False):
            nonlocal n
            WL = o.get('wl')
            if WL and n >= WL and not nowait:
                lw = self.nl('WL')
                A(f's_cmp_eq_u32 s{sLIGHT}, 0')
                A(f's_cbranch_scc1 {lw}')
                A(f's_waitcnt vmcnt({WL-1+extra})')
                self.lab(lw)
            nt0 = o.get('ntail') or 50
            Wn = W
            if n >= nt0 and o.get('wtail'):
                Wn = min(W + (n - nt0 + 1), o['wtail'])
            if n >= Wn and not nowait:
                A(f's_waitcnt vmcnt({Wn-1+extra})')
            kind, q = seq[n]
            kind(q)
            n += 1
            if o.get('syncat') and n in [int(z) for z in str(o['syncat']).split('0') if False] + [int(str(o['syncat'])[i:i+2]) for i in range(0, len(str(o['syncat'])), 2)]:
                A('s_barrier')
            if o.get('sync') and (n > N1 + o.get('nln', 0) + o.get('n2', 4) or n < N1 - 2) and n % o['sync'] == 0 and n < (o.get('synclim') or NTOT - 2):
                A('s_barrier')
        for _ in range(N1):
            if n == min(W, N1) - 0 - 0 and False:
                pass
            issue_next(nowait=not o.get('n1win'))
            if n == o.get('nprb', 8):
                lbp = self.nl('PRB')
                A(f's_cmp_lg_u32 s{sWAVE}, 7')
                A(f's_cbranch_scc1 {lbp}')
                A(f's_cmp_lg_u32 s{sRT}, 4')
                A(f's_cbranch_scc1 {lbp}')
                self.probe()
                self.lab(lbp)
        A(f's_waitcnt vmcnt({min(N1, W) if o.get("n1win") else N1})')
        if o.get('pure'):
            A('s_waitcnt vmcnt(0)')
        A('s_waitcnt lgkmcnt(0)')
        A('s_barrier')
        self.stamp(1)
        if o.get('pure'):
            A('s_branch L_fin')
            seq += seq
        self.lane(2)
        lb_tr = self.nl('TR')
        A(f's_cmp_eq_u32 s{sRT}, 0')
        A(f's_cbranch_scc1 {lb_tr}')
        A(f's_mov_b32 s{sA}, 320')
        A(f's_cmp_eq_u32 s{sRT}, 2')
        A(f's_cselect_b32 s{sA}, 256, s{sA}')
        A(f's_lshl_b32 s{sBb}, s{sNM1}, 5')
        A(f's_cmp_eq_u32 s{sRT}, 4')
        A(f's_cselect_b32 s{sA}, s{sBb}, s{sA}')
        A('v_and_b32 v3, 3, v2')
        A('v_bfe_u32 v4, v2, 2, 2')
        A('v_lshrrev_b32 v5, 4, v2')
        A('v_lshrrev_b32 v6, 1, v3')
        A('v_lshrrev_b32 v7, 1, v4')
        A('v_and_b32 v8, 1, v5')
        A('v_lshl_or_b32 v7, v8, 1, v7')
        A('v_lshl_or_b32 v7, v6, 2, v7')
        A(f'v_xor_b32 v7, s{sWAVE}, v7')
        A(f'v_mul_u32_u24 v6, s{sA}, v6')
        A('v_lshl_add_u32 v6, v5, 3, v6')
        A('v_add_u32 v6, v6, v4')
        A('v_and_b32 v3, 1, v3')
        A('v_lshlrev_b32 v3, 3, v3')
        A('v_lshl_add_u32 v6, v6, 7, v3')
        A('v_lshl_add_u32 v6, v7, 4, v6')
        A(f'v_add_u32 v6, {L_STG}, v6')
        for j in range(10):
            if j == 4:
                A(f's_cmp_eq_u32 s{sRT}, 4')
                A(f's_cbranch_scc1 {lb_tr}')
            if j == 8:
                A(f's_cmp_eq_u32 s{sRT}, 2')
                A(f's_cbranch_scc1 {lb_tr}')
            A(f'ds_read_b64_tr_b16 v[{VW+4*j}:{VW+4*j+1}], v6 offset:{4096*j}')
            A(f'ds_read_b64_tr_b16 v[{VW+4*j+2}:{VW+4*j+3}], v6 offset:{4096*j+512}')
        self.lab(lb_tr)
        A('s_waitcnt lgkmcnt(0)')
        for _ in range(o.get('nln', 0)):
            issue_next()
        l4, l3, le = self.nl('T4'), self.nl('T3'), self.nl('TE')
        A(f's_cmp_eq_u32 s{sRT}, 4')
        A(f's_cbranch_scc1 {l4}')
        A(f's_cmp_eq_u32 s{sRT}, 3')
        A(f's_cbranch_scc1 {l3}')
        A(f's_cmp_lg_u32 s{sRT}, 1')
        A(f's_cbranch_scc1 {le}')
        self.layernorm(10, 16, 0)
        self.lane(2)
        A('v_lshlrev_b32 v2, 2, v2')
        self.ln_stage_write(10, 2)
        A(f's_branch {le}')
        self.lab(l4)
        A(f'v_lshlrev_b32 v{VRES}, 16, v{VRES}')
        A(f'v_lshlrev_b32 v{VB2}, 16, v{VB2}')
        A(f's_branch {le}')
        self.lab(l3)
        A('v_lshlrev_b32 v15, 16, v15')
        A('v_lshlrev_b32 v3, 2, v2')
        A(f'ds_write_b32 v3, v15 offset:{L_B1}')
        self.lab(le)
        A('s_waitcnt lgkmcnt(0)')
        A('s_barrier')
        self.stamp(2)
        for _ in range(o.get('n2', 4)):
            issue_next(nowait=not o.get('n1win'))
        lb = self.nl('Q0')
        A(f's_cmp_lg_u32 s{sRT}, 1')
        A(f's_cbranch_scc1 {lb}')
        self.gemm_pre(320, 1296)
        self.q_addr_pre(0)
        self.gemm(10)
        self.pack4()
        self.lab(lb)
        while n < o.get('nqs', 36):
            issue_next()
        lb = self.nl('Q0s')
        A(f's_cmp_lg_u32 s{sRT}, 1')
        A(f's_cbranch_scc1 {lb}')
        self.table_wait(6)
        self.mask16()
        A(f'buffer_store_dwordx2 v[4:5], v29, s[{S_WS}:{S_WS+3}], s{sE} offen sc1')
        self.unmask()
        self.lab(lb)
        self.stamp(3)
        NQ = o.get('nq', 44)
        while n < NQ:
            issue_next()
        qls = self.q_loads(29)
        for l in qls:
            A(l)
        for _ in range(8):
            issue_next(4)
        A('s_waitcnt vmcnt(8)')
        lr, ld, lchk = self.nl('QP'), self.nl('QPD'), self.nl('QC')
        A(f's_branch {lchk}')
        self.lab(lr)
        for l in qls:
            A(l)
        A('s_waitcnt vmcnt(0)')
        self.lab(lchk)
        self.sent_test(range(16), 28)
        A('s_cmp_eq_u64 vcc, 0')
        if o.get('stop'):
            A(f's_branch {ld}')
        A(f's_cbranch_scc1 {ld}')
        self.spin_check(lr)
        self.lab(ld)
        self.table_wait()
        self.table_decode()
        self.stamp(4)
        self.lab('L_att')
        self.astamp(1)
        self.qk_part1()
        self.astamp(3)
        lb = self.nl('VR')
        A(f's_cmp_lg_u32 s{sLOFF}, 0')
        A(f's_cbranch_scc1 {lb}')
        self.stamp(5)
        self.stream_addr(30, 31, 28, 29)
        while n < NTOT:
            issue_next()
        self.lab(lb)
        self.softmax_part2()
        self.astamp(5)
        self.pv()
        self.lstamp(6, 9)
        self.astamp(6)
        self.o_finish()
        self.astamp(7)
        self.cstamp(10)
        if o.get('stop'):
            A('s_branch L_fin')
        self.chain()
        self.lab('L_fin')
        if self.ts:
            self.stamp(10)
            A('s_waitcnt lgkmcnt(0)')
            lb = self.nl('TSK')
            A(f's_cmp_lg_u32 s{sWAVE}, {o.get("tswave", 0)}')
            A(f's_cbranch_scc1 {lb}')
            A('s_lshl_b32 s3, s2, 7')
            A(f's_add_u32 s3, s3, {TS_OFF}')
            A('v_mov_b32 v1, 0')
            A('s_mov_b64 exec, 1')
            for k in range(11):
                A(f'v_mov_b32 v2, s{sTS+2*k}')
                A(f'v_mov_b32 v3, s{sTS+2*k+1}')
                A(f'buffer_store_dwordx2 v[2:3], v1, s[{S_WS}:{S_WS+3}], s3 offen offset:{8*k}')
                A('s_nop 1')
            A('s_mov_b64 exec, -1')
            self.lab(lb)
        self.lab('L_end')
        A('s_endpgm')
        L.append('.section .rodata,"a"')
        L.append('.p2align 6')
        L.append(f'.amdhsa_kernel {NAME}_kernel')
        for d in ['next_free_vgpr 256', 'next_free_sgpr 102', 'accum_offset 256', 'group_segment_fixed_size 0',
                  'kernarg_size 104', 'user_sgpr_count 2', 'user_sgpr_kernarg_segment_ptr 1',
                  'system_sgpr_workgroup_id_x 1', 'float_denorm_mode_32 3']:
            L.append('  .amdhsa_' + d)
        L.append('.end_amdhsa_kernel')
        return '\n'.join(L) + '\n'

    def reducer(self, which):
        A = self.A
        self.lane(10)
        A('v_lshlrev_b32 v11, 2, v10')
        A(f's_lshl_b32 s{sC}, s{sRU}, 3')
        A(f's_add_u32 s{sC}, s{sC}, s{sWAVE}')
        A(f's_lshl_b32 s{sD}, s{sC}, 8')
        A(f's_add_u32 s{sE}, s{sLOFF}, s{sRHO}')
        A(f's_add_u32 s{sE}, s{sE}, {MB_P1 if which == 1 else MB_P2}')
        for xs in range(8):
            A(f's_add_u32 s{sA}, s{sD}, {xs*20480}')
            A(f's_lshr_b32 s{sBb}, s{sA}, 13')
            A(f's_lshl_b32 s{sBb}, s{sBb}, 14')
            A(f's_and_b32 s{sA}, s{sA}, 8191')
            A(f's_add_u32 s{sA}, s{sA}, s{sBb}')
            A(f's_add_u32 s{sBLK+xs}, s{sA}, s{sE}')
        A('v_and_b32 v16, 7, v10')
        A('v_lshlrev_b32 v16, 1, v16')
        A('v_lshrrev_b32 v17, 3, v10')
        A('v_mul_u32_u24 v17, 1280, v17')
        A('v_add_u32 v17, v17, v16')
        A(f's_mul_i32 s{sE}, s{sX}, 10240')
        A(f's_lshl_b32 s{sBb}, s{sC}, 4')
        A(f's_add_u32 s{sE}, s{sE}, s{sBb}')
        A(f's_add_u32 s{sE}, s{sE}, s{sLOFF}')
        A(f's_add_u32 s{sE}, s{sE}, {MB_X1 if which == 1 else MB_X2}')
        if which == 2:
            lf = self.nl('RF')
            A(f's_cmp_eq_u32 s{sLOFF}, 0')
            A(f's_cbranch_scc1 {lf}')
            A(f's_mul_i32 s{sE}, s{sX}, 1280')
            A(f's_add_u32 s{sE}, s{sE}, s{sBb}')
            A(f's_lshl_b32 s{sA}, s{sX}, 3')
            A(f's_lshl_b64 exec, 0xff, s{sA}')
            self.lab(lf)
        A(f's_mov_b32 s{sM64}, 0x55555555')
        A(f's_mov_b32 s{sM64+1}, 0x55555555')
        loads = [f'buffer_load_dword v{xs}, v11, s[{S_WS}:{S_WS+3}], s{sBLK+xs} offen sc1' for xs in range(8)]
        self.poll(loads, range(8))
        A('v_add_f32 v0, v0, v1')
        A('v_add_f32 v2, v2, v3')
        A('v_add_f32 v4, v4, v5')
        A('v_add_f32 v6, v6, v7')
        A('v_add_f32 v0, v0, v2')
        A('v_add_f32 v4, v4, v6')
        A('v_add_f32 v0, v0, v4')
        A('v_cvt_pk_bf16_f32 v0, v0, v0')
        A('v_and_b32 v0, 0xffff0000, v0')
        if which == 2:
            A(f'v_add_f32 v0, v0, v{VB2}')
            A('v_cvt_pk_bf16_f32 v0, v0, v0')
            A('v_and_b32 v0, 0xffff0000, v0')
        A(f'v_add_f32 v0, v0, v{VRES}')
        A('v_cvt_pk_bf16_f32 v0, v0, v0')
        A(f'v_and_b32 v{VRES}, 0xffff0000, v0')
        A('v_and_b32 v1, 0xffff, v0')
        A('s_nop 0')
        A(f'v_or_b32_dpp v1, v{VRES}, v1 quad_perm:[1,1,3,3] row_mask:0xf bank_mask:0xf')
        A(f's_and_b64 exec, exec, s[{sM64}:{sM64+1}]')
        if which == 2:
            lf, le = self.nl('RO'), self.nl('ROE')
            A(f's_cmp_eq_u32 s{sLOFF}, 0')
            A(f's_cbranch_scc1 {lf}')
            A(f'buffer_store_dword v1, v16, s[{S_OUT}:{S_OUT+3}], s{sE} offen')
            A(f's_branch {le}')
            self.lab(lf)
        A('v_min_u32 v1, 0xfffffffe, v1')
        self.store_local(f'buffer_store_dword v1, v17, s[{S_WS}:{S_WS+3}], s{sE} offen')
        if which == 2:
            self.lab(le)
        A('s_mov_b64 exec, -1')

    def ln_gather(self, mb, nln):
        A = self.A
        A('v_lshlrev_b32 v30, 2, v24')
        A(f's_mul_i32 s{sD}, s{sX}, 10240')
        A(f's_mul_i32 s{sBb}, s{sWAVE}, 1280')
        A(f's_add_u32 s{sD}, s{sD}, s{sBb}')
        A(f's_add_u32 s{sD}, s{sD}, s{sLOFF}')
        A(f's_add_u32 s{sD}, s{sD}, {mb}')
        loads = [f'buffer_load_dword v{i}, v30, s[{S_WS}:{S_WS+3}], s{sD} offen offset:{256*i} sc1' for i in range(5)]
        self.poll(loads, range(5))
        self.cstamp(4 if nln == 2 else 9)
        if nln == 2:
            self.astamp(8)
        self.layernorm(0, 6, 16, True)
        if nln == 2:
            self.layernorm(0, 6, 16, False)
        self.ln_stage_write(0, 30)

    def chain(self):
        A = self.A
        l_wo, l_m1, l_m2, l_q, l_qp = 'C_wo', 'C_m1', 'C_m2', 'C_q', 'C_qp'
        A(f's_cmp_eq_u32 s{sRT}, 4')
        A(f's_cbranch_scc1 {l_m2}')
        A(f's_cmp_eq_u32 s{sRT}, 3')
        A(f's_cbranch_scc1 {l_m1}')
        A(f's_cmp_eq_u32 s{sRT}, 2')
        A(f's_cbranch_scc1 {l_wo}')
        A(f's_cmp_lg_u32 s{sLOFF}, 0')
        A('s_cbranch_scc1 L_fin')
        A(f's_cmp_eq_u32 s{sRT}, 1')
        A(f's_cbranch_scc1 {l_q}')
        A(f's_branch {l_qp}')
        self.lab(l_wo)
        self.gemm_pre(256, 1040)
        self.p_addr_pre(MB_P1)
        A('v_lshlrev_b32 v30, 4, v24')
        A(f's_lshl_b32 s{sA}, s{sX}, 13')
        A(f's_lshl_b32 s{sBb}, s{sWAVE}, 10')
        A(f's_add_u32 s{sA}, s{sA}, s{sBb}')
        A(f's_add_u32 s{sA}, s{sA}, s{sLOFF}')
        A(f's_add_u32 s{sD}, s{sA}, {MB_O}')
        A(f's_mul_i32 s{sA}, s{sWAVE}, 1040')
        A(f'v_add_u32 v28, s{sA}, v30')
        self.poll([f'buffer_load_dwordx4 v[0:3], v30, s[{S_WS}:{S_WS+3}], s{sD} offen sc1'], range(4))
        self.cstamp(1)
        A(f'ds_write_b128 v28, v[0:3] offset:{L_STAGE}')
        A('s_waitcnt lgkmcnt(0)')
        A('s_barrier')
        self.gemm(8)
        self.p_store()
        self.cstamp(2)
        A(f's_cmp_lg_u32 s{sLOFF}, 0')
        A('s_cbranch_scc1 L_fin')
        A(f's_branch {l_qp}')
        self.lab(l_m1)
        self.gemm_pre(320, 1296)
        A(f's_lshl_b32 s{sA}, s{sX}, 12')
        A(f's_lshl_b32 s{sBb}, s{sRU}, 3')
        A(f's_add_u32 s{sBb}, s{sBb}, s{sWAVE}')
        A(f's_lshl_b32 s{sBb}, s{sBb}, 7')
        A(f's_add_u32 s{sA}, s{sA}, s{sBb}')
        A(f's_add_u32 s{sA}, s{sA}, s{sLOFF}')
        A(f's_add_u32 s{sE}, s{sA}, {MB_H}')
        A('v_lshlrev_b32 v29, 4, v25')
        A('v_lshl_add_u32 v29, v26, 3, v29')
        A('v_and_b32 v28, 1, v26')
        A('v_lshlrev_b32 v28, 4, v28')
        A(f's_lshl_b32 s{sA}, s{sWAVE}, 5')
        A(f'v_add_u32 v28, s{sA}, v28')
        self.ln_gather(MB_X1, 2)
        self.astamp(9)
        A(f'ds_read_b128 v[20:23], v28 offset:{L_B1}')
        A('s_waitcnt lgkmcnt(0)')
        A('s_barrier')
        self.gemm(10, NT=4)
        self.astamp(10)
        A('v_cvt_pk_bf16_f32 v4, v0, v1')
        A('v_cvt_pk_bf16_f32 v5, v2, v3')
        A('v_lshlrev_b32 v0, 16, v4')
        A('v_and_b32 v1, 0xffff0000, v4')
        A('v_lshlrev_b32 v2, 16, v5')
        A('v_and_b32 v3, 0xffff0000, v5')
        for r in range(4):
            A(f'v_add_f32 v{r}, v{r}, v{20+r}')
        A('v_cvt_pk_bf16_f32 v4, v0, v1')
        A('v_cvt_pk_bf16_f32 v5, v2, v3')
        A('v_lshlrev_b32 v0, 16, v4')
        A('v_and_b32 v1, 0xffff0000, v4')
        A('v_lshlrev_b32 v2, 16, v5')
        A('v_and_b32 v3, 0xffff0000, v5')
        c1 = 2.0 * math.sqrt(2.0 / math.pi) * math.log2(math.e)
        c2 = c1 * 0.044715
        A(f'v_mov_b32 v12, 0x{f2u(c2):08x}')
        A(f'v_mov_b32 v13, 0x{f2u(c1):08x}')
        for r in range(4):
            A(f'v_mul_f32 v{4+r}, v{r}, v{r}')
        for r in range(4):
            A(f'v_fma_f32 v{4+r}, v{4+r}, v12, v13')
        for r in range(4):
            A(f'v_mul_f32 v{4+r}, v{4+r}, v{r}')
        for r in range(4):
            A(f'v_exp_f32 v{4+r}, -v{4+r}')
        A('s_nop 0')
        for r in range(4):
            A(f'v_add_f32 v{4+r}, 1.0, v{4+r}')
        for r in range(4):
            A(f'v_rcp_f32 v{4+r}, v{4+r}')
        A('s_nop 0')
        for r in range(4):
            A(f'v_mul_f32 v{r}, v{r}, v{4+r}')
        self.pack4()
        self.mask16()
        self.store_local(f'buffer_store_dwordx2 v[4:5], v29, s[{S_WS}:{S_WS+3}], s{sE} offen')
        self.unmask()
        self.cstamp(5)
        A(f's_cmp_lg_u32 s{sLOFF}, 0')
        A('s_cbranch_scc1 L_fin')
        A(f's_branch {l_qp}')
        self.lab(l_m2)
        self.reducer(1)
        self.cstamp(3)
        self.lane(24)
        A('v_and_b32 v25, 15, v24')
        A('v_lshrrev_b32 v26, 4, v24')
        A('v_and_b32 v27, 7, v25')
        A('v_lshrrev_b32 v28, 3, v25')
        A('v_mul_u32_u24 v27, 528, v27')
        A('v_lshl_add_u32 v27, v26, 4, v27')
        A(f's_lshl_b32 s{sA}, s{sNM1}, 6')
        A(f'v_mul_u32_u24 v28, s{sA}, v28')
        A('v_add_u32 v27, v27, v28')
        self.p_addr_pre(MB_P2)
        A('v_lshlrev_b32 v30, 3, v24')
        A('v_bfe_u32 v28, v24, 1, 3')
        A('v_mul_u32_u24 v28, 528, v28')
        A('v_lshl_add_u32 v28, v26, 4, v28')
        A('v_and_b32 v23, 1, v24')
        A('v_lshl_add_u32 v28, v23, 3, v28')
        A(f's_lshl_b32 s{sA}, s{sWAVE}, 6')
        A(f'v_add_u32 v28, s{sA}, v28')
        A(f's_lshl_b32 s{sA}, s{sX}, 12')
        A(f's_lshl_b32 s{sBb}, s{sWAVE}, 9')
        A(f's_add_u32 s{sA}, s{sA}, s{sBb}')
        A(f's_add_u32 s{sA}, s{sA}, s{sLOFF}')
        A(f's_add_u32 s{sD}, s{sA}, {MB_H}')
        lsk = self.nl('M2s')
        A(f's_lshl_b32 s{sA}, s{sNM1}, 1')
        A(f's_cmp_ge_u32 s{sWAVE}, s{sA}')
        A(f's_cbranch_scc1 {lsk}')
        self.poll([f'buffer_load_dwordx2 v[0:1], v30, s[{S_WS}:{S_WS+3}], s{sD} offen sc1'], range(2))
        self.cstamp(6)
        A(f'ds_write_b64 v28, v[0:1] offset:{L_STAGE}')
        A('s_waitcnt lgkmcnt(0)')
        self.lab(lsk)
        A('s_barrier')
        for j in range(4):
            A(f'ds_read_b128 v[{4+4*j}:{7+4*j}], v27 offset:{L_STAGE + 64*j}')
        lc = self.nl('M2c')
        for j in range(4):
            if j == 3:
                A(f's_cmp_eq_u32 s{sNM1}, 3')
                A(f's_cbranch_scc1 {lc}')
            A(f's_waitcnt lgkmcnt({3-j})')
            c = '0' if j == 0 else 'v[0:3]'
            A(f'v_mfma_f32_16x16x32_bf16 v[0:3], v[{VW+4*j}:{VW+4*j+3}], v[{4+4*j}:{7+4*j}], {c}')
        self.lab(lc)
        A('s_waitcnt lgkmcnt(0)')
        self.combine()
        self.p_store()
        self.cstamp(7)
        self.reducer(2)
        self.cstamp(8)
        A(f's_cmp_lg_u32 s{sLOFF}, 0')
        A('s_cbranch_scc1 L_fin')
        A(f's_branch {l_qp}')
        self.lab(l_q)
        self.gemm_pre(320, 1296)
        self.q_addr_pre(LSTRIDE)
        self.ln_gather(MB_X2, 1)
        A('s_barrier')
        self.gemm(10)
        self.pack4()
        self.mask16()
        self.store_local(f'buffer_store_dwordx2 v[4:5], v29, s[{S_WS}:{S_WS+3}], s{sE} offen')
        self.unmask()
        self.stamp(7)
        self.lab(l_qp)
        A(f's_mov_b32 s{sLOFF}, {LSTRIDE}')
        self.lane(30)
        lq = self.nl('QW')
        A(f's_cmp_lg_u32 s{sWAVE}, 0')
        A(f's_cbranch_scc1 {lq}')
        A('v_lshlrev_b32 v29, 7, v30')
        A('v_lshlrev_b32 v28, 4, v30')
        A(f's_lshl_b32 s{sA}, s{sH}, 11')
        A(f's_lshl_b32 s{sBb}, s{sB}, 4')
        A(f's_add_u32 s{sA}, s{sA}, s{sBb}')
        A(f's_add_u32 s{sD}, s{sA}, {MB_Q + LSTRIDE}')
        A('s_mov_b64 exec, 0xffff')
        self.poll([f'buffer_load_dwordx4 v[0:3], v29, s[{S_WS}:{S_WS+3}], s{sD} offen sc1'], range(4))
        A(f'ds_write_b128 v28, v[0:3] offset:{L_QB}')
        A('s_mov_b64 exec, -1')
        A('s_waitcnt lgkmcnt(0)')
        self.lab(lq)
        A('v_and_b32 v27, 1, v30')
        A('v_lshrrev_b32 v30, 4, v30')
        A('v_lshl_add_u32 v30, v27, 2, v30')
        A('v_lshlrev_b32 v30, 4, v30')
        A('v_xor_b32 v27, 64, v30')
        A('s_barrier')
        for j in range(4):
            A(f'ds_read_b128 v[{4*j}:{4*j+3}], v{30 if j < 2 else 27} offset:{L_QB + 128*(j & 1)}')
        self.stamp(8)
        A('s_branch L_att')


if __name__ == '__main__':
    ap = argparse.ArgumentParser()
    ap.add_argument('-o', default='cdna_kernels/' + NAME + '.s')
    ap.add_argument('--ts', action='store_true')
    ap.add_argument('--slow', action='store_true')
    for k, d in (('win', 12), ('n1', 12), ('n2', 4), ('nq', 44), ('tswave', 0), ('cmode', None), ('forcepar', None), ('nprobe', 2), ('sync', 0), ('n1win', 0), ('nln', 0), ('stop', 0), ('noclear', 0), ('nowt', 0), ('notable', 0), ('nqs', 36), ('nprb', 8), ('pure', 0), ('prio', 0), ('wl', 0), ('clr4', 0), ('amode', 0), ('rd2', 0), ('wtail', 0), ('synclim', 0), ('cpol', 0), ('syncat', 0), ('ntail', 0), ('k128', 0)):
        ap.add_argument('--' + k, type=int, default=d)
    a = ap.parse_args()
    o = vars(a).copy()
    out = o.pop('o')
    open(out, 'w').write(G(**o).build())
```

```python
import sys, argparse, struct, math
NAME = 'interleave_layers__sliding_block_cached__mixer_channel_mlp__decode'
HEADER = open('cdna_kernels/' + NAME + '.s.ref').read().split('; Override launch')[0]

LSTRIDE = 0xF0000
MB_P1 = 0x00000
MB_P2 = 0xA0000
MB_Q = 0x90000
MB_O = 0x50000
MB_X1 = 0x60000
MB_X2 = 0x74000
MB_H = 0x88000
WIN_BYTES = 0x200000
TS_OFF = 0x800000

L_STAGE = 0
L_OP = 10368
L_B1 = 14464
L_XCH = 14720
L_QB = 14848
L_V = 16384
L_STG = 81920
LDS_BYTES = 163840

VK = 32
VV = 160
VW = 216
VRES, VB2 = 248, 249

S_K, S_V, S_WS, S_DBG, S_OUT, S_T0, S_T1 = 16, 20, 24, 28, 32, 36, 40
sX, sS, sH, sB, sWAVE = 44, 45, 46, 47, 48
sRT, sRU = 49, 50
sFAST, sLOFF, sSPIN = 51, 52, 53
sRHO = 54
sNM1 = 55
sA, sBb, sC, sD = 56, 57, 58, 59
sM64, sM64b = 60, 62
sGX = 64
sMW = 65
sBLK = 66
sKLA, sKLB = 74, 75
sE, sF = 76, 77
sLIGHT = 100
sTS = 78
P_X, P_WQ, P_WO, P_W1, P_B1, P_W2 = 4, 6, 8, 10, 12, 14
sONE, sLO, sHI = 4, 5, 6
SPIN_MAX = 400000
f2u = lambda f: struct.unpack('<I', struct.pack('<f', f))[0]


class G:
    vtmp = 31

    def __init__(self, **o):
        self.L = []
        self.o = o
        self.ts = o.get('ts')
        self.nlab = 0

    def A(self, s):
        self.L.append('  ' + s)

    def lab(self, name):
        self.L.append(name + ':')

    def nl(self, p='L'):
        self.nlab += 1
        return f'{p}_{self.nlab}'

    def stamp(self, k):
        if self.o.get('dbgflag') and k in (7, 8):
            return
        if self.ts and (self.o.get('cmode') is None or k == 0):
            self.A(f's_memrealtime s[{sTS+2*k}:{sTS+2*k+1}]')

    def lstamp(self, k0, k1):
        if self.ts and self.o.get('cmode') is None:
            l1, l2 = self.nl('LS'), self.nl('LS')
            self.A(f's_cmp_lg_u32 s{sLOFF}, 0')
            self.A(f's_cbranch_scc1 {l1}')
            self.stamp(k0)
            self.A(f's_branch {l2}')
            self.lab(l1)
            self.stamp(k1)
            self.lab(l2)

    def astamp(self, k):
        if self.o.get('amode'):
            self.cstamp(k, True)

    def cstamp(self, k, am=False):
        cm = self.o.get('cmode')
        if self.ts and cm is not None and bool(self.o.get('amode')) == am:
            lb = self.nl('CS')
            self.A(f's_cmp_lg_u32 s{sLOFF}, {cm * LSTRIDE}')
            self.A(f's_cbranch_scc1 {lb}')
            self.A(f's_memrealtime s[{sTS+2*k}:{sTS+2*k+1}]')
            self.lab(lb)

    def lane(self, v):
        self.A(f'v_mbcnt_lo_u32_b32 v{v}, -1, 0')
        self.A(f'v_mbcnt_hi_u32_b32 v{v}, -1, v{v}')

    @staticmethod
    def kplace():
        pl = {}
        n = r = 0
        for i in range(8):
            nl = 3 if i < 2 else 2
            for j in range(4):
                if j < nl:
                    pl[(i, j)] = ('L', n)
                    n += 1
                else:
                    pl[(i, j)] = ('R', VK + 4 * r)
                    r += 1
        assert n == 18 and r == 14
        return pl

    def spin_check(self, lab_retry):
        self.A(f's_add_u32 s{sSPIN}, s{sSPIN}, 1')
        self.A(f's_cmp_lt_u32 s{sSPIN}, {SPIN_MAX}')
        self.A(f's_cbranch_scc1 {lab_retry}')

    def sent_test(self, regs, t):
        A = self.A
        regs = list(regs)
        if len(regs) == 1:
            A(f'v_cmp_eq_u32 vcc, -1, v{regs[0]}')
            return
        if len(regs) == 2:
            A(f'v_max_u32 v{t}, v{regs[0]}, v{regs[1]}')
            rest = []
        else:
            A(f'v_max3_u32 v{t}, v{regs[0]}, v{regs[1]}, v{regs[2]}')
            rest = regs[3:]
        while rest:
            if len(rest) >= 2:
                A(f'v_max3_u32 v{t}, v{t}, v{rest[0]}, v{rest[1]}')
                rest = rest[2:]
            else:
                A(f'v_max_u32 v{t}, v{t}, v{rest[0]}')
                rest = rest[1:]
        A(f'v_cmp_eq_u32 vcc, -1, v{t}')

    def poll(self, loads, regs):
        A = self.A
        lr, ld = self.nl('P'), self.nl('PD')
        self.lab(lr)
        for l in loads:
            A(l)
        A('s_waitcnt vmcnt(0)')
        self.sent_test(regs, self.vtmp)
        A('s_cmp_eq_u64 vcc, 0')
        A(f's_cbranch_scc1 {ld}')
        self.spin_check(lr)
        self.lab(ld)

    def store_local(self, ins):
        A = self.A
        l1, l2 = self.nl('SL'), self.nl('SE')
        A(f's_cmp_eq_u32 s{sFAST}, 0')
        A(f's_cbranch_scc1 {l1}')
        A(ins)
        A(f's_branch {l2}')
        self.lab(l1)
        A(ins + ' sc1')
        self.lab(l2)

    def wave_reduce(self, items):
        A = self.A
        steps = ['row_shr:1', 'row_shr:2', 'row_shr:4', 'row_shr:8', 'row_bcast:15 row_mask:0xa', 'row_bcast:31 row_mask:0xc']
        for st in steps:
            pad = 2 - (len(items) - 1)
            if pad > 0:
                A(f's_nop {pad-1}')
            for (r, op) in items:
                m = st if 'row_mask' in st else st + ' row_mask:0xf'
                A(f'{op}_dpp v{r}, v{r}, v{r} {m} bank_mask:0xf')
        A('s_nop 1')

    def mask16(self):
        self.A('s_mov_b32 exec_lo, 0x00ff00ff')
        self.A('s_mov_b32 exec_hi, 0')

    def unmask(self):
        self.A('s_mov_b64 exec, -1')

    def layernorm(self, pk, f, t, shifted=True):
        A = self.A
        s1, s2, d0 = t, t + 2, t + 4
        if shifted:
            A(f'v_readfirstlane_b32 s{sA}, v{pk}')
            A(f's_lshl_b32 s{sA}, s{sA}, 16')
            A(f's_xor_b32 s{sBb}, s{sA}, 0x80000000')
            A(f'v_mov_b32 v{d0}, s{sBb}')
            for i in range(5):
                A(f'v_dot2_f32_bf16 v{f+2*i}, v{pk+i}, s{sLO}, v{d0}')
                A(f'v_dot2_f32_bf16 v{f+2*i+1}, v{pk+i}, s{sHI}, v{d0}')
            A(f'v_pk_add_f32 v[{s1}:{s1+1}], v[{f}:{f+1}], v[{f+2}:{f+3}]')
            A(f'v_pk_mul_f32 v[{s2}:{s2+1}], v[{f}:{f+1}], v[{f}:{f+1}]')
            for i in range(1, 5):
                if i >= 2:
                    A(f'v_pk_add_f32 v[{s1}:{s1+1}], v[{f+2*i}:{f+2*i+1}], v[{s1}:{s1+1}]')
                A(f'v_pk_fma_f32 v[{s2}:{s2+1}], v[{f+2*i}:{f+2*i+1}], v[{f+2*i}:{f+2*i+1}], v[{s2}:{s2+1}]')
            A(f'v_add_f32 v{s1}, v{s1}, v{s1+1}')
            A(f'v_add_f32 v{s2}, v{s2}, v{s2+1}')
        else:
            for i in range(5):
                c1 = '0' if i == 0 else f'v{s1}'
                c2 = '0' if i == 0 else f'v{s2}'
                A(f'v_dot2_f32_bf16 v{s1}, v{pk+i}, s{sONE}, {c1}')
                A(f'v_dot2_f32_bf16 v{s2}, v{pk+i}, v{pk+i}, {c2}')
            A('s_nop 1')
        self.wave_reduce([(s1, 'v_add_f32'), (s2, 'v_add_f32')])
        A(f'v_readlane_b32 s{sBb}, v{s1}, 63')
        A(f'v_readlane_b32 s{sC}, v{s2}, 63')
        A(f'v_mov_b32 v{d0}, 0x3acccccd')
        A('s_nop 0')
        A(f'v_mul_f32 v{s1}, s{sBb}, v{d0}')
        A(f'v_mul_f32 v{s2}, s{sC}, v{d0}')
        A(f'v_fma_f32 v{s2}, -v{s1}, v{s1}, v{s2}')
        if shifted:
            A(f'v_add_f32 v{s1}, s{sA}, v{s1}')
        A(f'v_max_f32 v{s2}, 0, v{s2}')
        A(f'v_cvt_pk_bf16_f32 v{d0}, v{s1}, v{s2}')
        A(f'v_and_b32 v{s2}, 0xffff0000, v{d0}')
        A(f'v_add_f32 v{s2}, 0x37280000, v{s2}')
        A(f'v_lshlrev_b32 v{s1}, 16, v{d0}')
        A(f'v_cvt_pk_bf16_f32 v{s2}, v{s2}, v{s2}')
        A(f'v_and_b32 v{s2}, 0xffff0000, v{s2}')
        A(f'v_sqrt_f32 v{s2}, v{s2}')
        if shifted:
            A(f'v_sub_f32 v{s1}, s{sA}, v{s1}')
        else:
            A(f'v_sub_f32 v{s1}, 0, v{s1}')
        A(f'v_cvt_pk_bf16_f32 v{s2}, v{s2}, v{s2}')
        A(f'v_and_b32 v{s2}, 0xffff0000, v{s2}')
        A(f'v_rcp_f32 v{s2}, v{s2}')
        if shifted:
            for i in range(5):
                A(f'v_pk_add_f32 v[{f+2*i}:{f+2*i+1}], v[{f+2*i}:{f+2*i+1}], v[{s1}:{s1+1}] op_sel_hi:[1,0]')
        else:
            for i in range(5):
                A(f'v_dot2_f32_bf16 v{f+2*i}, v{pk+i}, s{sLO}, v{s1}')
                A(f'v_dot2_f32_bf16 v{f+2*i+1}, v{pk+i}, s{sHI}, v{s1}')
        for i in range(5):
            A(f'v_cvt_pk_bf16_f32 v{pk+i}, v{f+2*i}, v{f+2*i+1}')
        for i in range(5):
            A(f'v_lshlrev_b32 v{f+2*i}, 16, v{pk+i}')
            A(f'v_and_b32 v{f+2*i+1}, 0xffff0000, v{pk+i}')
        for i in range(5):
            A(f'v_pk_mul_f32 v[{f+2*i}:{f+2*i+1}], v[{f+2*i}:{f+2*i+1}], v[{s2}:{s2+1}] op_sel_hi:[1,0]')
        for i in range(5):
            A(f'v_cvt_pk_bf16_f32 v{pk+i}, v{f+2*i}, v{f+2*i+1}')

    def ln_stage_write(self, pk, va4):
        A = self.A
        A(f's_mul_i32 s{sA}, s{sWAVE}, 1296')
        A(f'v_add_u32 v{va4}, s{sA}, v{va4}')
        for i in range(5):
            A(f'ds_write_b32 v{va4}, v{pk+i} offset:{L_STAGE + 256*i}')
        A('s_waitcnt lgkmcnt(0)')

    def gemm_pre(self, Kh, RS):
        A = self.A
        self.lane(24)
        A('v_and_b32 v25, 15, v24')
        A('v_lshrrev_b32 v26, 4, v24')
        A('v_and_b32 v27, 7, v25')
        A('v_lshrrev_b32 v28, 3, v25')
        A(f'v_mul_u32_u24 v27, {RS}, v27')
        A(f'v_mul_u32_u24 v28, {Kh*2}, v28')
        A('v_lshl_add_u32 v27, v26, 4, v27')
        A('v_add_u32 v27, v27, v28')

    def gemm(self, S, NT=5):
        A = self.A
        T = [4 + 4 * k for k in range(NT)]
        for j in range(min(NT, S)):
            A(f'ds_read_b128 v[{T[j]}:{T[j]+3}], v27 offset:{L_STAGE + 64*j}')
        for j in range(S):
            issued = min(S, j + NT)
            A(f's_waitcnt lgkmcnt({issued - j - 1})')
            c = '0' if j == 0 else 'v[0:3]'
            A(f'v_mfma_f32_16x16x32_bf16 v[0:3], v[{VW+4*j}:{VW+4*j+3}], v[{T[j%NT]}:{T[j%NT]+3}], {c}')
            if j + NT < S:
                A(f'ds_read_b128 v[{T[j%NT]}:{T[j%NT]+3}], v27 offset:{L_STAGE + 64*(j+NT)}')
        self.combine()

    def combine(self):
        A = self.A
        A('s_nop 7')
        A('s_nop 0')
        for r in range(4):
            A(f'v_mov_b32_dpp v{4+r}, v{r} row_ror:8 row_mask:0xf bank_mask:0xf')
        A('s_nop 0')
        for r in range(4):
            A(f'v_permlane32_swap_b32 v{4+r}, v{8+r}')
        A('s_nop 0')
        for r in range(4):
            A(f'v_add_f32 v{r}, v{r}, v{8+r}')

    def p_addr_pre(self, mb):
        A = self.A
        A(f's_mul_i32 s{sA}, s{sX}, 20480')
        A(f's_lshl_b32 s{sBb}, s{sRU}, 3')
        A(f's_add_u32 s{sBb}, s{sBb}, s{sWAVE}')
        A(f's_lshl_b32 s{sBb}, s{sBb}, 8')
        A(f's_add_u32 s{sA}, s{sA}, s{sBb}')
        A(f's_lshr_b32 s{sBb}, s{sA}, 13')
        A(f's_lshl_b32 s{sBb}, s{sBb}, 14')
        A(f's_and_b32 s{sA}, s{sA}, 8191')
        A(f's_add_u32 s{sA}, s{sA}, s{sBb}')
        A(f's_add_u32 s{sA}, s{sA}, s{sLOFF}')
        A(f's_add_u32 s{sA}, s{sA}, {mb}')
        A(f's_add_u32 s{sF}, s{sA}, s{sRHO}')
        A(f's_xor_b32 s{sE}, s{sF}, 8192')
        A('v_lshlrev_b32 v29, 5, v25')
        A('v_lshl_add_u32 v29, v26, 4, v29')

    def p_store(self):
        A = self.A
        for r in range(4):
            A(f'v_min_u32 v{r}, 0xfffffffe, v{r}')
        self.mask16()
        A(f'buffer_store_dwordx4 v[0:3], v29, s[{S_WS}:{S_WS+3}], s{sE} offen sc1')
        A(f'buffer_store_dwordx4 v[0:3], v29, s[{S_WS}:{S_WS+3}], s{sF} offen sc1')
        self.unmask()

    def q_addr_pre(self, loff):
        A = self.A
        A(f's_lshl_b32 s{sA}, s{sX}, 6')
        A(f's_lshl_b32 s{sBb}, s{sRU}, 3')
        A(f's_add_u32 s{sA}, s{sA}, s{sBb}')
        A(f's_add_u32 s{sA}, s{sA}, s{sWAVE}')
        A(f's_lshl_b32 s{sA}, s{sA}, 7')
        A(f's_add_u32 s{sE}, s{sA}, {MB_Q + loff}')
        A('v_lshlrev_b32 v29, 4, v25')
        A('v_lshl_add_u32 v29, v26, 3, v29')

    def pack4(self):
        A = self.A
        A('v_cvt_pk_bf16_f32 v4, v0, v1')
        A('v_cvt_pk_bf16_f32 v5, v2, v3')
        A('v_min_u32 v4, 0xfffffffe, v4')
        A('v_min_u32 v5, 0xfffffffe, v5')

    def q_loads(self, va):
        A = self.A
        self.lane(va)
        A(f'v_and_b32 v27, 1, v{va}')
        A(f'v_lshrrev_b32 v{va}, 4, v{va}')
        A(f'v_lshl_add_u32 v{va}, v27, 2, v{va}')
        A(f'v_lshlrev_b32 v{va}, 7, v{va}')
        A(f'v_xor_b32 v27, 512, v{va}')
        A(f's_lshl_b32 s{sA}, s{sH}, 11')
        A(f's_lshl_b32 s{sBb}, s{sB}, 4')
        A(f's_add_u32 s{sA}, s{sA}, s{sBb}')
        A(f's_add_u32 s{sA}, s{sA}, s{sLOFF}')
        A(f's_add_u32 s{sD}, s{sA}, {MB_Q}')
        return [f'buffer_load_dwordx4 v[{4*j}:{4*j+3}], v{va if j < 2 else 27}, s[{S_WS}:{S_WS+3}], s{sD} offen offset:{1024*(j & 1)} sc1' for j in range(4)]

    def qk_part1(self):
        A = self.A
        D = [16, 20]
        X = 24
        C0, C1 = 28, 29
        A('s_waitcnt lgkmcnt(0)')

        def compact(i):
            d = D[i % 2]
            for r in range(4):
                A(f'v_cndmask_b32 v{X+r}, v{X+r}, v{d+r}, s[{sM64}:{sM64+1}]')
            if i == 7:
                A(f's_mov_b32 s{sM64}, 0x00020002')
                A(f's_mov_b32 s{sM64+1}, 0x00010001')
            else:
                A(f's_lshl_b64 s[{sM64}:{sM64+1}], s[{sM64}:{sM64+1}], 2')
        A(f's_mov_b32 s{sM64}, 0x00010001')
        A(f's_mov_b32 s{sM64+1}, 0x00020002')
        for i in range(16):
            d = D[i % 2]
            qb = 8 * (i >> 3)
            for j in range(2):
                c = '0' if j == 0 else f'v[{d}:{d+3}]'
                k = VK + 8 * i + 4 * j
                A(f'v_mfma_f32_16x16x32_bf16 v[{d}:{d+3}], v[{k}:{k+3}], v[{qb+4*j}:{qb+4*j+3}], {c}')
            if i > 0:
                A('s_nop 5')
                compact(i - 1)
        A('s_nop 3')
        compact(15)
        A('s_nop 1')
        for r in range(4):
            A(f'v_mov_b32_dpp v{X+r}, v{X+r} quad_perm:[1,0,3,2] row_mask:0xc bank_mask:0xf')
        A('s_nop 0')
        A(f'v_permlane32_swap_b32 v{X}, v{X+2}')
        A(f'v_permlane32_swap_b32 v{X+1}, v{X+3}')
        A('s_nop 0')
        A(f'v_add_f32 v{C0}, v{X}, v{X+2}')
        A(f'v_add_f32 v{C1}, v{X+1}, v{X+3}')
        self.astamp(2)
        a0, a1, t0, m = 2, 3, 4, 5
        A(f'v_cvt_pk_bf16_f32 v{t0}, v{C0}, v{C1}')
        A(f'v_lshlrev_b32 v{a0}, 16, v{t0}')
        A(f'v_and_b32 v{a1}, 0xffff0000, v{t0}')
        A(f'v_mul_f32 v{a0}, 0x3db504f3, v{a0}')
        A(f'v_mul_f32 v{a1}, 0x3db504f3, v{a1}')
        A(f'v_cvt_pk_bf16_f32 v{t0}, v{a0}, v{a1}')
        A(f'v_lshlrev_b32 v{a0}, 16, v{t0}')
        A(f'v_and_b32 v{a1}, 0xffff0000, v{t0}')
        A(f'v_mov_b32 v{t0}, 0xff7fffff')
        A(f'v_max3_f32 v{m}, v{a0}, v{a1}, v{t0}')
        self.wave_reduce([(m, 'v_max_f32')])
        A(f'v_readlane_b32 s{sMW}, v{m}, 63')
        A('s_nop 1')
        A(f'v_subrev_f32 v{a0}, s{sMW}, v{a0}')
        A(f'v_subrev_f32 v{a1}, s{sMW}, v{a1}')
        A(f'v_mul_f32 v{a0}, 0x3fb8aa3b, v{a0}')
        A(f'v_mul_f32 v{a1}, 0x3fb8aa3b, v{a1}')
        A(f'v_exp_f32 v{a0}, v{a0}')
        A(f'v_exp_f32 v{a1}, v{a1}')
        A('s_nop 0')
        A(f'v_add_f32 v{m}, v{a0}, v{a1}')
        self.wave_reduce([(m, 'v_add_f32')])
        A(f'v_readlane_b32 s{sBb}, v{m}, 63')
        A(f's_lshl_b32 s{sC}, s{sWAVE}, 3')
        A(f'v_mov_b32 v6, s{sMW}')
        A(f'v_mov_b32 v7, s{sBb}')
        A(f'v_mov_b32 v8, s{sC}')
        A('s_mov_b64 exec, 1')
        A(f'ds_write_b64 v8, v[6:7] offset:{L_XCH}')
        A('s_mov_b64 exec, -1')

    def softmax_part2(self):
        A = self.A
        a0, a1 = 2, 3
        self.lane(8)
        A('v_and_b32 v9, 7, v8')
        A('v_lshlrev_b32 v9, 3, v9')
        A('v_and_b32 v8, 15, v8')
        A('v_and_b32 v4, 1, v8')
        A('v_lshlrev_b32 v4, 4, v4')
        A('v_mov_b32 v5, 0xffff')
        A('v_lshlrev_b32 v4, v4, v5')
        A('v_lshrrev_b32 v8, 1, v8')
        for jj in range(2):
            A(f'v_cmp_eq_u32 vcc, {jj}, v8')
            A('s_nop 1')
            A(f'v_cndmask_b32 v{14+jj}, 0, v4, vcc')
        A('s_waitcnt lgkmcnt(0)')
        self.pv_pre()
        A('s_barrier')
        self.astamp(4)
        A(f'ds_read_b64 v[6:7], v9 offset:{L_XCH}')
        A('s_waitcnt lgkmcnt(0)')
        A('v_mov_b32 v8, v6')
        for k in (1, 2, 4):
            A('s_nop 1')
            A(f'v_max_f32_dpp v8, v8, v8 row_ror:{k} row_mask:0xf bank_mask:0xf')
        A('v_sub_f32 v6, v6, v8')
        A(f'v_sub_f32 v9, s{sMW}, v8')
        A('v_mul_f32 v6, 0x3fb8aa3b, v6')
        A('v_mul_f32 v9, 0x3fb8aa3b, v9')
        A('v_exp_f32 v6, v6')
        A('v_exp_f32 v9, v9')
        A('s_nop 0')
        A('v_mul_f32 v7, v7, v6')
        A(f'v_mul_f32 v{a0}, v{a0}, v9')
        A(f'v_mul_f32 v{a1}, v{a1}, v9')
        for k in (1, 2, 4):
            if k > 1:
                A('s_nop 1')
            A(f'v_add_f32_dpp v7, v7, v7 row_ror:{k} row_mask:0xf bank_mask:0xf')
        A('v_rcp_f32 v7, v7')
        A('s_nop 0')
        A(f'v_mul_f32 v{a0}, v{a0}, v7')
        A(f'v_mul_f32 v{a1}, v{a1}, v7')
        A(f'v_cvt_pk_bf16_f32 v12, v{a0}, v{a0}')
        A(f'v_cvt_pk_bf16_f32 v13, v{a1}, v{a1}')
        A('s_nop 1')

    def pv_build(self, oc):
        A = self.A
        oc = 2 * (oc & 7) + (oc >> 3)
        A(f'v_and_b32_dpp v8, v12, v14 row_newbcast:{oc} row_mask:0xf bank_mask:0xf')
        A(f'v_and_b32_dpp v9, v12, v15 row_newbcast:{oc} row_mask:0xf bank_mask:0xf')
        A(f'v_and_b32_dpp v10, v13, v14 row_newbcast:{oc} row_mask:0xf bank_mask:0xf')
        A(f'v_and_b32_dpp v11, v13, v15 row_newbcast:{oc} row_mask:0xf bank_mask:0xf')

    def pv_pre(self):
        A = self.A
        T = [16, 20, 24]
        self.lane(31)
        A('v_and_b32 v29, 15, v31')
        A('v_lshrrev_b32 v30, 4, v31')
        A('v_lshlrev_b32 v28, 3, v29')
        A('v_and_b32 v16, 1, v30')
        A('v_lshl_add_u32 v28, v16, 10, v28')
        A('v_lshrrev_b32 v16, 1, v30')
        A('v_lshl_add_u32 v28, v16, 9, v28')
        A(f'v_add_u32 v28, s{sKLA}, v28')
        A('v_lshlrev_b32 v30, 6, v30')
        A('v_lshl_add_u32 v29, v29, 2, v30')
        A(f's_lshl_b32 s{sA}, s{sWAVE}, 9')
        A(f'v_add_u32 v29, s{sA}, v29')
        A(f's_lshl_b32 s{sA}, s{sX}, 13')
        A(f's_lshl_b32 s{sBb}, s{sB}, 10')
        A(f's_add_u32 s{sA}, s{sA}, s{sBb}')
        A(f's_and_b32 s{sBb}, s{sH}, 3')
        A(f's_lshl_b32 s{sBb}, s{sBb}, 8')
        A(f's_add_u32 s{sA}, s{sA}, s{sBb}')
        A(f's_add_u32 s{sA}, s{sA}, s{sLOFF}')
        A(f's_add_u32 s{sE}, s{sA}, {MB_O}')
        A('v_lshlrev_b32 v30, 3, v31')
        A('v_lshlrev_b32 v31, 2, v31')
        A('s_waitcnt vmcnt(28)')
        order = self.o.get('pvorder') or [0, 1, 9, 2, 3, 10, 4, 5, 11, 6, 7, 12, 8, 13, 14, 15]
        lq = [(oc, dh) for oc in order if oc < 9 for dh in range(2)]
        issued = 0

        def issue():
            nonlocal issued
            if issued >= len(lq):
                return
            oc, dh = lq[issued]
            t = T[issued % 3]
            if self.o.get('rd2'):
                A(f'ds_read2_b64 v[{t}:{t+3}], v28 offset0:{16*dh} offset1:{16*dh+32}')
                if dh == 1:
                    A('v_add_u32 v28, 2048, v28')
            else:
                A(f'ds_read_b64 v[{t}:{t+1}], v28 offset:{oc*2048 + dh*128}')
                A(f'ds_read_b64 v[{t+2}:{t+3}], v28 offset:{oc*2048 + dh*128 + 256}')
            issued += 1
        for _ in range(3):
            issue()
        self._pv = (T, order, lq, issue, lambda: issued)

    def pv(self):
        A = self.A
        T, order, lq, issue, nissued = self._pv
        first = [True, True]
        li = 0
        for oc in order:
            self.pv_build(oc)
            for dh in range(2):
                d = 4 * dh
                c = '0' if first[dh] else f'v[{d}:{d+3}]'
                first[dh] = False
                if oc < 9:
                    A(f's_waitcnt lgkmcnt({(1 if self.o.get("rd2") else 2) * (nissued() - li - 1)})')
                    if dh == 0:
                        A('s_nop 0')
                    t = T[li % 3]
                    A(f'v_mfma_f32_16x16x32_bf16 v[{d}:{d+3}], v[{t}:{t+3}], v[8:11], {c}')
                    li += 1
                    issue()
                else:
                    q = 2 * oc + dh
                    r = VV + 4 * (q - 18)
                    if dh == 0:
                        A(f's_waitcnt vmcnt({2 * (31 - q - 1)})')
                        A('s_nop 0')
                    A(f'v_mfma_f32_16x16x32_bf16 v[{d}:{d+3}], v[{r}:{r+3}], v[8:11], {c}')

    def o_finish(self):
        A = self.A
        A('s_mov_b32 exec_lo, 0x000f000f')
        A('s_mov_b32 exec_hi, 0x000f000f')
        A('s_nop 5')
        for dh in range(2):
            for r in range(4):
                A(f'ds_write_b32 v29, v{4*dh+r} offset:{L_OP + 256*dh + 16*r}')
        A('s_mov_b64 exec, -1')
        A('s_waitcnt lgkmcnt(0)')
        A('s_barrier')
        ld = self.nl('OF')
        A(f's_cmp_lg_u32 s{sWAVE}, 0')
        A(f's_cbranch_scc1 {ld}')
        for w in range(8):
            A(f'ds_read_b64 v[{2*w}:{2*w+1}], v30 offset:{L_OP + 512*w}')
        for w in range(1, 8):
            A(f's_waitcnt lgkmcnt({7-w})')
            A(f'v_pk_add_f32 v[0:1], v[0:1], v[{2*w}:{2*w+1}]')
        A('v_cvt_pk_bf16_f32 v0, v0, v1')
        A('v_min_u32 v0, 0xfffffffe, v0')
        self.store_local(f'buffer_store_dword v0, v31, s[{S_WS}:{S_WS+3}], s{sE} offen')
        self.lab(ld)

    def table_wait(self, v=16):
        A = self.A
        lr, ld = self.nl('TB'), self.nl('TBD')

        def chk():
            A(f's_and_b32 s{sA}, s8, s9')
            for k in range(10, 16):
                A(f's_and_b32 s{sA}, s{sA}, s{k}')
            A(f's_bitcmp1_b32 s{sA}, 30')
        A(f's_load_dwordx8 s[8:15], s[{S_DBG}:{S_DBG+1}], 0')
        A('s_waitcnt lgkmcnt(0)')
        chk()
        A(f's_cbranch_scc1 {ld}')
        self.lane(v)
        A(f'v_and_b32 v{v}, 7, v{v}')
        A(f'v_lshlrev_b32 v{v}, 2, v{v}')
        self.lab(lr)
        A('s_sleep 32')
        A(f'buffer_load_dword v{v+1}, v{v}, s[{S_DBG}:{S_DBG+3}], 0 offen sc1')
        A('s_waitcnt vmcnt(0)')
        A(f'v_cmp_gt_u32 vcc, 0x40000000, v{v+1}')
        l2 = self.nl('TBE')
        A('s_cmp_eq_u64 vcc, 0')
        A(f's_cbranch_scc1 {l2}')
        self.spin_check(lr)
        self.lab(l2)
        A(f's_load_dwordx8 s[8:15], s[{S_DBG}:{S_DBG+1}], 0 glc')
        A('s_waitcnt lgkmcnt(0)')
        self.lab(ld)

    def table_decode(self):
        A = self.A
        o = self.o
        A(f's_load_dword s7, s[{S_DBG}:{S_DBG+1}], 128')
        A(f's_mov_b32 s{sFAST}, 0')
        for k in range(8, 16):
            A(f's_bfe_u32 s{sA}, s{k}, {(8 << 16) | 17}')
            A(f's_bfe_u32 s{sBb}, s{k}, {(11 << 16) | 6}')
            A(f's_mul_i32 s{sA}, s{sA}, s{sA}')
            A(f's_lshl_b32 s{sBb}, s{sBb}, 5')
            A(f's_xor_b32 s{sA}, s{sA}, s{sBb}')
            A(f's_or_b32 s{sFAST}, s{sFAST}, s{sA}')
        A(f's_cmp_eq_u32 s{sFAST}, 0')
        A(f's_cselect_b32 s{sFAST}, 1, 0')
        if o.get('slow'):
            A(f's_mov_b32 s{sFAST}, 0')
        A('s_waitcnt lgkmcnt(0)')
        A(f's_and_b32 s{sE}, s7, 0xffff')
        A(f's_lshl_b32 s{sE}, s{sE}, 1')
        A('s_lshr_b32 s7, s7, 16')
        A(f's_cmp_ge_u32 s{sE}, s7')
        A(f's_cselect_b32 s{sE}, 0, 1')
        if o.get('forcepar') is not None:
            A(f's_mov_b32 s{sE}, {o["forcepar"]}')
        A(f's_getreg_b32 s{sA}, hwreg(HW_REG_XCC_ID)')
        A(f's_bfe_u32 s{sA}, s{sA}, {(1 << 16) | 2}')
        A(f's_xor_b32 s{sE}, s{sE}, s{sA}')
        A(f's_lshl_b32 s{sRHO}, s{sE}, 13')

    def probe(self):
        A = self.A
        o = self.o
        A('s_and_b32 s3, s2, 63')
        A('s_lshl_b32 s3, s3, 7')
        A(f's_lshr_b32 s{sA}, s2, 6')
        A(f's_lshl_b32 s{sA}, s{sA}, 14')
        A(f's_add_u32 s3, s3, s{sA}')
        A('s_add_u32 s3, s3, 0x1E0000')
        A(f's_add_u32 s{sM64}, s{S_WS}, s3')
        A(f's_addc_u32 s{sM64+1}, s{S_WS+1}, 0')
        A(f's_load_dword s{sA}, s[{sM64}:{sM64+1}], 0 glc')
        A(f's_load_dword s{sBb}, s[{sM64}:{sM64+1}], 0x2000 glc')
        A('s_waitcnt lgkmcnt(0)')
        A(f's_mov_b32 s{sE}, 0')
        for rep in range(o.get('nprobe', 2)):
            A(f's_memtime s[{sM64b}:{sM64b+1}]')
            A('s_waitcnt lgkmcnt(0)')
            A(f's_load_dword s{sA}, s[{sM64}:{sM64+1}], 0 glc')
            A('s_waitcnt lgkmcnt(0)')
            A(f's_memtime s[{sC}:{sC+1}]')
            A('s_waitcnt lgkmcnt(0)')
            A(f's_load_dword s{sA}, s[{sM64}:{sM64+1}], 0x2000 glc')
            A('s_waitcnt lgkmcnt(0)')
            A(f's_memtime s[{sA}:{sA+1}]')
            A('s_waitcnt lgkmcnt(0)')
            A(f's_lshl_b32 s{sC}, s{sC}, 1')
            A(f's_sub_u32 s{sC}, s{sC}, s{sM64b}')
            A(f's_sub_u32 s{sC}, s{sC}, s{sA}')
            A(f's_add_u32 s{sE}, s{sE}, s{sC}')
        A(f's_lshr_b32 s{sE}, s{sE}, 31')
        A(f's_getreg_b32 s{sA}, hwreg(HW_REG_XCC_ID)')
        A(f's_and_b32 s{sA}, s{sA}, 7')
        A(f's_lshr_b32 s{sF}, s{sA}, 2')
        A(f's_xor_b32 s{sE}, s{sE}, s{sF}')
        A(f's_or_b32 s{sE}, s{sE}, 0x10000')
        A(f'v_mov_b32 v8, s{sE}')
        A('v_mov_b32 v9, 128')
        A('s_mov_b64 exec, 1')
        A(f'buffer_atomic_add v8, v9, s[{S_DBG}:{S_DBG+3}], 0 offen sc1')
        A('s_mov_b64 exec, -1')

    def flag(self):
        A = self.A
        A(f's_lshl_b32 s{sBb}, s{sX}, 2')
        A('v_mov_b32 v8, s7')
        A(f'v_mov_b32 v9, s{sBb}')
        A('s_mov_b64 exec, 1')
        A(f'buffer_atomic_add v8, v9, s[{S_DBG}:{S_DBG+3}], 0 offen sc1')
        A('s_mov_b64 exec, -1')

    def stream_addr(self, vk, vl, vr, tmp):
        A = self.A
        self.lane(tmp)
        A(f's_lshl_b32 s{sA}, s{sWAVE}, 15')
        A(f'v_lshlrev_b32 v{vl}, 4, v{tmp}')
        A(f'v_add_u32 v{vl}, s{sA}, v{vl}')
        A(f'v_and_b32 v{vk}, 7, v{tmp}')
        A(f'v_lshlrev_b32 v{vk}, 8, v{vk}')
        A(f'v_bfe_u32 v{vr}, v{tmp}, 3, 1')
        A(f'v_lshl_add_u32 v{vk}, v{vr}, 6, v{vk}')
        A(f'v_lshrrev_b32 v{vr}, 4, v{tmp}')
        A(f'v_lshl_add_u32 v{vk}, v{vr}, 4, v{vk}')
        A(f'v_add_u32 v{vk}, s{sA}, v{vk}')
        A(f'v_and_b32 v{vr}, 15, v{tmp}')
        A(f'v_lshlrev_b32 v{vr}, 3, v{vr}')
        A(f'v_add_u32 v{vr}, s{sA}, v{vr}')
        A(f'v_bfe_u32 v{tmp}, v{tmp}, 4, 1')
        A(f'v_lshl_add_u32 v{vr}, v{tmp}, 10, v{vr}')
        self.lane(tmp)
        A(f'v_lshrrev_b32 v{tmp}, 5, v{tmp}')
        A(f'v_lshl_add_u32 v{vr}, v{tmp}, 9, v{vr}')

    def build(self):
        A = self.A
        L = self.L
        o = self.o
        L.append(HEADER.rstrip('\n'))
        L.append(f'; @launch grid=(256,1,1) block=(512,1,1) lds={LDS_BYTES}')
        L.append('.amdgcn_target "amdgcn-amd-amdhsa--gfx950"')
        L.append('.text')
        L.append(f'.globl {NAME}_kernel')
        L.append('.p2align 8')
        L.append(f'.type {NAME}_kernel,@function')
        L.append(f'{NAME}_kernel:')
        A('s_cmp_ge_u32 s2, 256')
        A('s_cbranch_scc1 L_end')
        if self.ts:
            for k in range(1, 11):
                A(f's_mov_b64 s[{sTS+2*k}:{sTS+2*k+1}], 0')
        self.stamp(0)
        A(f's_load_dwordx2 s[{P_X}:{P_X+1}], s[0:1], 0')
        A(f's_load_dwordx4 s[{S_T0}:{S_T0+3}], s[0:1], 8')
        A(f's_load_dwordx4 s[{S_T1}:{S_T1+3}], s[0:1], 24')
        A('s_load_dwordx4 s[68:71], s[0:1], 48')
        A('s_load_dwordx4 s[72:75], s[0:1], 64')
        A('s_load_dwordx4 s[60:63], s[0:1], 80')
        A('s_load_dwordx2 s[64:65], s[0:1], 96')
        A(f's_and_b32 s{sX}, s2, 7')
        A(f's_lshr_b32 s{sS}, s2, 3')
        A(f's_and_b32 s{sH}, s{sS}, 3')
        A(f's_lshl_b32 s{sA}, s{sX}, 2')
        A(f's_add_u32 s{sH}, s{sH}, s{sA}')
        A(f's_lshr_b32 s{sB}, s{sS}, 2')
        A(f's_lshl_b32 s{sA}, s{sB}, 5')
        A(f's_add_u32 s{sA}, s{sA}, s{sH}')
        A(f's_lshl_b32 s{sA}, s{sA}, 20')
        A(f's_add_u32 s{sA}, s{sA}, 0xC0000')
        A('v_lshrrev_b32 v1, 6, v0')
        A('v_and_b32 v2, 63, v0')
        A(f'v_readfirstlane_b32 s{sWAVE}, v1')
        A(f's_mov_b32 s{sLOFF}, 0')
        A(f's_mov_b32 s{sSPIN}, 0')
        A('s_waitcnt lgkmcnt(0)')
        if o.get('dbgflag') == 2:
            A(f's_memrealtime s[{sTS+14}:{sTS+15}]')
        A(f's_add_u32 s{S_K}, s{S_T0}, s{sA}')
        A(f's_addc_u32 s{S_K+1}, s{S_T0+1}, 0')
        A(f's_mov_b32 s{S_K+2}, 0x40000')
        A(f's_mov_b32 s{S_K+3}, 0x20000')
        A(f's_add_u32 s{S_V}, s{S_T0+2}, s{sA}')
        A(f's_addc_u32 s{S_V+1}, s{S_T0+3}, 0')
        A(f's_mov_b32 s{S_V+2}, 0x40000')
        A(f's_mov_b32 s{S_V+3}, 0x20000')
        K0 = o.get('k0', 0)
        if K0:
            self.stream_addr(30, 31, 28, 29)
            lk0 = self.nl('K0')
            A(f's_cmp_eq_u32 s{sWAVE}, 7')
            A(f's_cbranch_scc1 {lk0}')
            for j in range(K0):
                A(f'buffer_load_dwordx4 v[{VK+4*j}:{VK+4*j+3}], v30, s[{S_K}:{S_K+3}], 0 offen offset:{(j >> 1) * 2048 + (j & 1) * 128} nt')
            self.lab(lk0)
        A(f's_add_u32 s{S_WS}, s64, 0x1fffff')
        A(f's_addc_u32 s{S_WS+1}, s65, 0')
        A(f's_and_b32 s{S_WS}, s{S_WS}, 0xffe00000')
        A(f's_mov_b32 s{S_WS+2}, {0x1000000 if self.ts else WIN_BYTES}')
        A(f's_mov_b32 s{S_WS+3}, 0x20000')
        A(f's_mov_b64 s[{S_DBG}:{S_DBG+1}], s[62:63]')
        A(f's_mov_b32 s{S_DBG+2}, 256')
        A(f's_mov_b32 s{S_DBG+3}, 0x20000')
        A(f's_mov_b64 s[{S_OUT}:{S_OUT+1}], s[60:61]')
        A(f's_mov_b32 s{S_OUT+2}, 10240')
        A(f's_mov_b32 s{S_OUT+3}, 0x20000')
        A(f's_mov_b64 s[{P_WQ}:{P_WQ+1}], s[{S_T1}:{S_T1+1}]')
        A(f's_mov_b64 s[{P_WO}:{P_WO+1}], s[{S_T1+2}:{S_T1+3}]')
        A(f's_mov_b64 s[{P_W1}:{P_W1+1}], s[68:69]')
        A(f's_mov_b64 s[{P_B1}:{P_B1+1}], s[70:71]')
        A(f's_mov_b64 s[{P_W2}:{P_W2+1}], s[72:73]')
        A('s_mov_b64 s[0:1], s[74:75]')
        for i in range(8):
            A(f's_mov_b32 s{sBLK+i}, {i*4096}')
        A(f's_mul_i32 s{sKLA}, s{sWAVE}, 18432')
        A(f's_add_u32 s{sKLA}, s{sKLA}, {L_V}')
        A(f's_cmp_lt_u32 s{sX}, 3')
        A(f's_cselect_b32 s{sNM1}, 4, 3')
        A(f's_lshl_b32 s{sGX}, s{sX}, 2')
        A(f's_mul_i32 s{sA}, s{sX}, 3')
        A(f's_add_u32 s{sA}, s{sA}, 3')
        A(f's_min_u32 s{sGX}, s{sGX}, s{sA}')
        A(f's_mov_b32 s{sRT}, 1')
        A(f's_mov_b32 s{sRU}, s{sS}')
        for lo, typ in ((8, 2), (18, 4), (28, 3)):
            A(f's_sub_u32 s{sA}, s{sS}, {lo}')
            A(f's_cmp_ge_u32 s{sS}, {lo}')
            A(f's_cselect_b32 s{sRT}, {typ}, s{sRT}')
            A(f's_cselect_b32 s{sRU}, s{sA}, s{sRU}')
        lb = self.nl('RN')
        A(f's_cmp_lg_u32 s{sRT}, 3')
        A(f's_cbranch_scc1 {lb}')
        A(f's_cmp_ge_u32 s{sRU}, s{sNM1}')
        A(f's_cselect_b32 s{sRT}, 0, s{sRT}')
        self.lab(lb)
        A(f's_mov_b32 s{S_T0+3}, 0x20000')
        A(f's_mov_b32 s{S_T1+3}, 0x20000')
        A(f's_and_b32 s{sA}, s{sRT}, 3')
        A(f's_cmp_eq_u32 s{sA}, 0')
        A(f's_cselect_b32 s{sLIGHT}, 1, 0')

        CPOL = {0: ' sc1', 1: ' sc1 nt', 2: ' nt', 3: '', 4: ' sc0 sc1'}[o.get('cpol', 0)]
        l_w7, l_small = self.nl('W7'), self.nl('SM')
        A(f's_cmp_eq_u32 s{sWAVE}, 7')
        A(f's_cbranch_scc1 {l_w7}')
        A('v_lshrrev_b32 v3, 3, v2')
        A(f's_lshl_b32 s{sA}, s{sWAVE}, 3')
        A(f'v_add_u32 v3, s{sA}, v3')
        A('v_and_b32 v4, 7, v2')
        A('v_bfe_u32 v6, v2, 4, 1')
        A('v_xor_b32 v4, v4, v6')
        A(f's_and_b32 s{sA}, s{sWAVE}, 1')
        A(f's_lshl_b32 s{sA}, s{sA}, 1')
        A(f'v_xor_b32 v4, s{sA}, v4')
        A('v_lshlrev_b32 v4, 4, v4')

        def dma(ptr, size, stride, offcode, ninstr, khi):
            A(f's_mov_b64 s[{S_T0}:{S_T0+1}], s[{ptr}:{ptr+1}]')
            A(f's_mov_b32 s{S_T0+2}, {size}')
            offcode()
            A(f'v_mul_u32_u24 v5, {stride}, v3')
            A(f'v_add3_u32 v5, v5, v4, s{sC}')
            A(f's_lshl_b32 s{sD}, s{sWAVE}, 10')
            nmax = ninstr if isinstance(ninstr, int) else 32
            kmax = (nmax + 6) // 7
            for k in range(kmax):
                if isinstance(ninstr, int):
                    if 7 * k + 6 >= ninstr:
                        A(f's_cmp_ge_u32 s{sWAVE}, {ninstr - 7*k}')
                        A(f's_cbranch_scc1 {l_small}')
                elif 7 * k + 6 >= 24:
                    A(f's_add_u32 s{sA}, s{sWAVE}, {7*k}')
                    A(f's_cmp_ge_u32 s{sA}, s{ninstr[0]}')
                    A(f's_cbranch_scc1 {l_small}')
                A(f's_add_u32 s{sA}, s{sWAVE}, {7*k}')
                A(f's_cmp_ge_u32 s{sA}, {khi if isinstance(khi, int) else "s%d" % khi[0]}')
                A(f's_cselect_b32 s{sA}, {64 + 32*(k & 1)}, {32*(k & 1)}')
                A(f'v_xor_b32 v6, s{sA}, v5')
                A(f's_add_u32 m0, s{sD}, {L_STG + 7168*k}')
                A(f's_mov_b32 s{sC}, {k*56*stride}')
                A(f'buffer_load_dwordx4 v6, s[{S_T0}:{S_T0+3}], s{sC} offen nt lds')
            A(f's_branch {l_small}')

        def q_off():
            A(f's_lshl_b32 s{sC}, s{sX}, 10')
            A(f's_lshl_b32 s{sD}, s{sRU}, 7')
            A(f's_add_u32 s{sC}, s{sC}, s{sD}')

        def m1_off():
            A(f's_add_u32 s{sC}, s{sGX}, s{sRU}')
            A(f's_lshl_b32 s{sC}, s{sC}, 7')

        def wo_off():
            A(f's_mul_i32 s{sC}, s{sX}, {512*1280}')
            A(f's_lshl_b32 s{sD}, s{sRU}, 7')
            A(f's_add_u32 s{sC}, s{sC}, s{sD}')

        def m2_off():
            A(f's_mul_i32 s{sC}, s{sGX}, {64*1280}')
            A(f's_lshl_b32 s{sD}, s{sRU}, 7')
            A(f's_add_u32 s{sC}, s{sC}, s{sD}')
            A(f's_lshl_b32 s{sE}, s{sNM1}, 3')
            A(f's_lshl_b32 s{sF}, s{sNM1}, 2')
        l2, l3, l4 = self.nl('D2'), self.nl('D3'), self.nl('D4')
        if o.get('nowt'):
            A(f's_branch {l_small}')
        A(f's_cmp_eq_u32 s{sRT}, 0')
        A(f's_cbranch_scc1 {l_small}')
        A(f's_cmp_eq_u32 s{sRT}, 2')
        A(f's_cbranch_scc1 {l2}')
        A(f's_cmp_eq_u32 s{sRT}, 3')
        A(f's_cbranch_scc1 {l3}')
        A(f's_cmp_eq_u32 s{sRT}, 4')
        A(f's_cbranch_scc1 {l4}')
        dma(P_WQ, 640 * 8192, 8192, q_off, 80, 40)
        self.lab(l2)
        dma(P_WO, 4096 * 1280, 1280, wo_off, 64, 32)
        self.lab(l3)
        dma(P_W1, 640 * 3456, 3456, m1_off, 80, 40)
        self.lab(l4)
        dma(P_W2, 1728 * 1280, 1280, m2_off, (sE,), (sF,))

        self.lab(l_w7)
        for r in range(4):
            A(f'v_mov_b32 v{4+r}, -1')
        A('v_lshlrev_b32 v3, 4, v2')
        lq0 = self.nl('CQ0')
        A(f's_cmp_lg_u32 s{sRT}, 1')
        A(f's_cbranch_scc1 {lq0}')
        A(f's_lshl_b32 s3, s{sX}, 3')
        A(f's_add_u32 s3, s3, s{sRU}')
        A('s_lshl_b32 s3, s3, 10')
        A(f's_add_u32 s3, s3, {MB_Q}')
        A(f'buffer_store_dwordx4 v[4:7], v3, s[{S_WS}:{S_WS+3}], s3 offen sc1')
        self.lab(lq0)
        A('s_mul_i32 s3, s2, 2304')
        A(f'buffer_store_dwordx4 v[4:7], v3, s[{S_WS}:{S_WS+3}], s3 offen sc1')
        A(f'buffer_store_dwordx4 v[4:7], v3, s[{S_WS}:{S_WS+3}], s3 offen offset:1024 sc1')
        A('s_mov_b64 exec, 0xffff')
        A(f'buffer_store_dwordx4 v[4:7], v3, s[{S_WS}:{S_WS+3}], s3 offen offset:2048 sc1')
        A('s_lshl_b32 s3, s2, 8')
        A(f's_add_u32 s3, s3, {LSTRIDE + MB_Q}')
        A(f'buffer_store_dwordx4 v[4:7], v3, s[{S_WS}:{S_WS+3}], s3 offen sc1')
        A('s_mov_b64 exec, -1')
        A(f's_getreg_b32 s{sA}, hwreg(HW_REG_XCC_ID)')
        A(f's_and_b32 s{sA}, s{sA}, 7')
        A(f's_mul_i32 s{sBb}, s{sA}, s{sA}')
        A(f's_lshl_b32 s{sBb}, s{sBb}, 6')
        A(f's_lshl_b32 s{sA}, s{sA}, 17')
        A(f's_or_b32 s{sA}, s{sA}, s{sBb}')
        A(f's_or_b32 s{sA}, s{sA}, {1 << 25}')
        A(f's_lshl_b32 s{sBb}, s{sX}, 2')
        A(f'v_mov_b32 v8, s{sA}')
        A(f'v_mov_b32 v9, s{sBb}')
        A('s_waitcnt vmcnt(0)')
        if o.get('dbgflag') == 1:
            A(f's_memrealtime s[{sTS+14}:{sTS+15}]')
        A('s_mov_b64 exec, 1')
        A(f'buffer_atomic_add v8, v9, s[{S_DBG}:{S_DBG+3}], 0 offen sc1')
        A('s_mov_b64 exec, -1')
        if o.get('dbgflag') == 1:
            A('s_waitcnt vmcnt(0)')
            A(f's_memrealtime s[{sTS+16}:{sTS+17}]')
        for j in range(K0):
            A(f'buffer_load_dwordx4 v[{VK+4*j}:{VK+4*j+3}], v30, s[{S_K}:{S_K+3}], 0 offen offset:{(j >> 1) * 2048 + (j & 1) * 128} nt')

        self.lab(l_small)
        A(f's_mov_b64 s[{S_T0}:{S_T0+1}], s[{P_X}:{P_X+1}]')
        A(f's_mov_b32 s{S_T0+2}, 10240')
        lq, lr4, lm, le = self.nl('SQ'), self.nl('SR'), self.nl('SMM'), self.nl('SEnd')
        A(f's_cmp_eq_u32 s{sRT}, 4')
        A(f's_cbranch_scc1 {lr4}')
        A(f's_cmp_eq_u32 s{sRT}, 3')
        A(f's_cbranch_scc1 {lm}')
        A(f's_cmp_lg_u32 s{sRT}, 1')
        A(f's_cbranch_scc1 {le}')
        A(f's_mul_i32 s{sA}, s{sWAVE}, 1280')
        A('v_lshlrev_b32 v5, 2, v2')
        for i in range(5):
            A(f'buffer_load_dword v{10+i}, v5, s[{S_T0}:{S_T0+3}], s{sA} offen offset:{256*i}')
        A(f's_branch {le}')
        self.lab(lr4)
        A('v_lshrrev_b32 v5, 3, v2')
        A('v_and_b32 v6, 7, v2')
        A(f's_lshl_b32 s{sA}, s{sRU}, 3')
        A(f's_add_u32 s{sA}, s{sA}, s{sWAVE}')
        A(f's_lshl_b32 s{sA}, s{sA}, 4')
        A('v_lshlrev_b32 v6, 1, v6')
        A('v_mul_u32_u24 v5, 1280, v5')
        A('v_add_u32 v5, v5, v6')
        A(f'buffer_load_ushort v{VRES}, v5, s[{S_T0}:{S_T0+3}], s{sA} offen')
        A(f's_mov_b64 s[{S_T1}:{S_T1+1}], s[0:1]')
        A(f's_mov_b32 s{S_T1+2}, 1280')
        A(f'buffer_load_ushort v{VB2}, v6, s[{S_T1}:{S_T1+3}], s{sA} offen')
        A(f's_branch {le}')
        self.lab(lm)
        A(f's_mov_b64 s[{S_T1}:{S_T1+1}], s[{P_B1}:{P_B1+1}]')
        A(f's_mov_b32 s{S_T1+2}, 3456')
        A(f's_add_u32 s{sA}, s{sGX}, s{sRU}')
        A(f's_lshl_b32 s{sA}, s{sA}, 7')
        A('v_lshlrev_b32 v6, 1, v2')
        A(f'buffer_load_ushort v15, v6, s[{S_T1}:{S_T1+3}], s{sA} offen')
        self.lab(le)
        A(f's_mov_b32 s{sONE}, 0x3f803f80')
        A(f's_mov_b32 s{sLO}, 0x00003f80')
        A(f's_mov_b32 s{sHI}, 0x3f800000')

        if not K0:
            self.stream_addr(30, 31, 28, 29)

        def kload(q):
            i, j = q
            val = VK + 16 * i + 4 * j
            ko = (j >> 1) * 2048 + (j & 1) * 128
            A(f'buffer_load_dwordx4 v[{val}:{val+3}], v30, s[{S_K}:{S_K+3}], s{sBLK+i} offen offset:{ko} nt')

        def vlds(q):
            oc, a = q
            i, rp = oc // 2, oc % 2
            imm = rp * 2048 + a * 1024
            A(f's_add_u32 m0, s{sKLA}, {oc*2048 + a*1024 - imm + 4096}')
            A('s_sub_u32 m0, m0, 4096')
            A('s_nop 0')
            A(f'buffer_load_dwordx4 v31, s[{S_V}:{S_V+3}], s{sBLK+i} offen offset:{imm} nt lds')

        def vreg(q):
            oc, dh, kk = q
            i, rp = oc // 2, oc % 2
            r = VV + 4 * (2 * (oc - 9) + dh) + 2 * kk
            A(f'buffer_load_dwordx2 v[{r}:{r+1}], v28, s[{S_V}:{S_V+3}], s{sBLK+i} offen offset:{rp*2048 + kk*256 + dh*128} nt')

        if o.get('dbgflag') == 2:
            A(f's_memrealtime s[{sTS+16}:{sTS+17}]')
        W = o.get('win', 12)
        N1 = o.get('n1', 12)
        if o.get('pure'):
            N1 = 78
        if o.get('prio') == 2:
            lbq = self.nl('PRI')
            A(f's_cmp_lt_u32 s{sWAVE}, 4')
            A(f's_cbranch_scc1 {lbq}')
            A('s_setprio 1')
            self.lab(lbq)
        if o.get('prio') == 1:
            for pw in range(1, 4):
                lbq = self.nl('PRI')
                A(f's_cmp_lt_u32 s{sWAVE}, {2*pw}')
                A(f's_cbranch_scc1 {lbq}')
                A(f's_setprio {pw}')
                self.lab(lbq)
        seq = [(kload, (i, j)) for i in range(8) for j in range(4)] + [(vlds, (oc, a)) for oc in range(9) for a in range(2)] + \
              [(vreg, (oc, dh, kk)) for oc in range(9, 16) for dh in range(2) for kk in range(2)]
        NTOT = len(seq)
        n = K0

        def issue_next(extra=0, nowait=False):
            nonlocal n
            WL = o.get('wl')
            if WL and n >= WL and not nowait:
                lw = self.nl('WL')
                A(f's_cmp_eq_u32 s{sLIGHT}, 0')
                A(f's_cbranch_scc1 {lw}')
                A(f's_waitcnt vmcnt({WL-1+extra})')
                self.lab(lw)
            nt0 = o.get('ntail') or 50
            Wn = W
            if n >= nt0 and o.get('wtail'):
                Wn = min(W + (n - nt0 + 1), o['wtail'])
            if n >= Wn and not nowait:
                A(f's_waitcnt vmcnt({Wn-1+extra})')
            kind, q = seq[n]
            kind(q)
            n += 1
            if o.get('syncat') and n in [int(z) for z in str(o['syncat']).split('0') if False] + [int(str(o['syncat'])[i:i+2]) for i in range(0, len(str(o['syncat'])), 2)]:
                A('s_barrier')
            if o.get('sync') and (n > N1 + o.get('nln', 0) + o.get('n2', 4) or n < N1 - 2) and n % o['sync'] == 0 and n < (o.get('synclim') or NTOT - 2):
                A('s_barrier')
        for _ in range(N1 - K0):
            issue_next(nowait=not o.get('n1win'))
            if n == o.get('nprb', 8):
                lbp = self.nl('PRB')
                A(f's_cmp_lg_u32 s{sWAVE}, 7')
                A(f's_cbranch_scc1 {lbp}')
                A(f's_cmp_lg_u32 s{sRT}, 4')
                A(f's_cbranch_scc1 {lbp}')
                self.probe()
                self.lab(lbp)
        A(f's_waitcnt vmcnt({min(N1, W) if o.get("n1win") else N1 - K0})')
        if o.get('pure'):
            A('s_waitcnt vmcnt(0)')
        A('s_waitcnt lgkmcnt(0)')
        A('s_barrier')
        self.stamp(1)
        if o.get('pure'):
            A('s_branch L_fin')
            seq += seq
        self.lane(2)
        lb_tr = self.nl('TR')
        A(f's_cmp_eq_u32 s{sRT}, 0')
        A(f's_cbranch_scc1 {lb_tr}')
        A(f's_mov_b32 s{sA}, 320')
        A(f's_cmp_eq_u32 s{sRT}, 2')
        A(f's_cselect_b32 s{sA}, 256, s{sA}')
        A(f's_lshl_b32 s{sBb}, s{sNM1}, 5')
        A(f's_cmp_eq_u32 s{sRT}, 4')
        A(f's_cselect_b32 s{sA}, s{sBb}, s{sA}')
        A('v_and_b32 v3, 3, v2')
        A('v_bfe_u32 v4, v2, 2, 2')
        A('v_lshrrev_b32 v5, 4, v2')
        A('v_lshrrev_b32 v6, 1, v3')
        A('v_lshrrev_b32 v7, 1, v4')
        A('v_and_b32 v8, 1, v5')
        A('v_lshl_or_b32 v7, v8, 1, v7')
        A('v_lshl_or_b32 v7, v6, 2, v7')
        A(f'v_xor_b32 v7, s{sWAVE}, v7')
        A(f'v_mul_u32_u24 v6, s{sA}, v6')
        A('v_lshl_add_u32 v6, v5, 3, v6')
        A('v_add_u32 v6, v6, v4')
        A('v_and_b32 v3, 1, v3')
        A('v_lshlrev_b32 v3, 3, v3')
        A('v_lshl_add_u32 v6, v6, 7, v3')
        A('v_lshl_add_u32 v6, v7, 4, v6')
        A(f'v_add_u32 v6, {L_STG}, v6')
        for j in range(10):
            if j == 4:
                A(f's_cmp_eq_u32 s{sRT}, 4')
                A(f's_cbranch_scc1 {lb_tr}')
            if j == 8:
                A(f's_cmp_eq_u32 s{sRT}, 2')
                A(f's_cbranch_scc1 {lb_tr}')
            A(f'ds_read_b64_tr_b16 v[{VW+4*j}:{VW+4*j+1}], v6 offset:{4096*j}')
            A(f'ds_read_b64_tr_b16 v[{VW+4*j+2}:{VW+4*j+3}], v6 offset:{4096*j+512}')
        self.lab(lb_tr)
        A('s_waitcnt lgkmcnt(0)')
        for _ in range(o.get('nln', 0)):
            issue_next()
        l4, l3, le = self.nl('T4'), self.nl('T3'), self.nl('TE')
        A(f's_cmp_eq_u32 s{sRT}, 4')
        A(f's_cbranch_scc1 {l4}')
        A(f's_cmp_eq_u32 s{sRT}, 3')
        A(f's_cbranch_scc1 {l3}')
        A(f's_cmp_lg_u32 s{sRT}, 1')
        A(f's_cbranch_scc1 {le}')
        self.layernorm(10, 16, 0)
        self.lane(2)
        A('v_lshlrev_b32 v2, 2, v2')
        self.ln_stage_write(10, 2)
        A(f's_branch {le}')
        self.lab(l4)
        A(f'v_lshlrev_b32 v{VRES}, 16, v{VRES}')
        A(f'v_lshlrev_b32 v{VB2}, 16, v{VB2}')
        A(f's_branch {le}')
        self.lab(l3)
        A('v_lshlrev_b32 v15, 16, v15')
        A('v_lshlrev_b32 v3, 2, v2')
        A(f'ds_write_b32 v3, v15 offset:{L_B1}')
        self.lab(le)
        A('s_waitcnt lgkmcnt(0)')
        A('s_barrier')
        self.stamp(2)
        for _ in range(o.get('n2', 4)):
            issue_next(nowait=not o.get('n1win'))
        lb = self.nl('Q0')
        A(f's_cmp_lg_u32 s{sRT}, 1')
        A(f's_cbranch_scc1 {lb}')
        self.gemm_pre(320, 1296)
        self.q_addr_pre(0)
        self.gemm(10)
        self.pack4()
        self.lab(lb)
        while n < o.get('nqs', 36):
            issue_next()
        lb = self.nl('Q0s')
        A(f's_cmp_lg_u32 s{sRT}, 1')
        A(f's_cbranch_scc1 {lb}')
        self.mask16()
        A(f'buffer_store_dwordx2 v[4:5], v29, s[{S_WS}:{S_WS+3}], s{sE} offen sc1')
        self.unmask()
        self.lab(lb)
        self.stamp(3)
        NQ = o.get('nq', 44)
        while n < NQ:
            issue_next()
        self.table_wait()
        qls = self.q_loads(29)
        for l in qls:
            A(l)
        for _ in range(8):
            issue_next(4)
        A('s_waitcnt vmcnt(8)')
        lr, ld, lchk = self.nl('QP'), self.nl('QPD'), self.nl('QC')
        A(f's_branch {lchk}')
        self.lab(lr)
        for l in qls:
            A(l)
        A('s_waitcnt vmcnt(0)')
        self.lab(lchk)
        self.sent_test(range(16), 28)
        A('s_cmp_eq_u64 vcc, 0')
        if o.get('stop'):
            A(f's_branch {ld}')
        A(f's_cbranch_scc1 {ld}')
        self.spin_check(lr)
        self.lab(ld)
        self.table_decode()
        self.stamp(4)
        self.lab('L_att')
        self.astamp(1)
        self.qk_part1()
        self.astamp(3)
        lb = self.nl('VR')
        A(f's_cmp_lg_u32 s{sLOFF}, 0')
        A(f's_cbranch_scc1 {lb}')
        self.stamp(5)
        self.stream_addr(30, 31, 28, 29)
        while n < NTOT:
            issue_next()
        self.lab(lb)
        self.softmax_part2()
        self.astamp(5)
        self.pv()
        self.lstamp(6, 9)
        self.astamp(6)
        lpc = self.nl('PCL')
        A(f's_cmp_lg_u32 s{sRT}, 4')
        A(f's_cbranch_scc1 {lpc}')
        A(f's_cmp_lg_u32 s{sLOFF}, 0')
        A(f's_cbranch_scc1 {lpc}')
        for r in range(4):
            A(f'v_mov_b32 v{24+r}, -1')
        A('v_lshlrev_b32 v23, 2, v31')
        A(f's_mul_i32 s3, s{sX}, 10')
        A(f's_add_u32 s3, s3, s{sRU}')
        A('s_lshl_b32 s3, s3, 3')
        A(f's_add_u32 s3, s3, s{sWAVE}')
        A('s_lshl_b32 s3, s3, 11')
        A(f's_add_u32 s3, s3, {MB_P2}')
        A(f'buffer_store_dwordx4 v[24:27], v23, s[{S_WS}:{S_WS+3}], s3 offen sc1')
        A(f'buffer_store_dwordx4 v[24:27], v23, s[{S_WS}:{S_WS+3}], s3 offen offset:1024 sc1')
        A('s_waitcnt vmcnt(0)')
        self.lab(lpc)
        self.o_finish()
        self.astamp(7)
        self.cstamp(10)
        if o.get('stop'):
            A('s_branch L_fin')
        self.chain()
        self.lab('L_fin')
        if self.ts:
            self.stamp(10)
            A('s_waitcnt lgkmcnt(0)')
            lb = self.nl('TSK')
            A(f's_cmp_lg_u32 s{sWAVE}, {o.get("tswave", 0)}')
            A(f's_cbranch_scc1 {lb}')
            A('s_lshl_b32 s3, s2, 7')
            A(f's_add_u32 s3, s3, {TS_OFF}')
            A('v_mov_b32 v1, 0')
            A('s_mov_b64 exec, 1')
            for k in range(11):
                A(f'v_mov_b32 v2, s{sTS+2*k}')
                A(f'v_mov_b32 v3, s{sTS+2*k+1}')
                A(f'buffer_store_dwordx2 v[2:3], v1, s[{S_WS}:{S_WS+3}], s3 offen offset:{8*k}')
                A('s_nop 1')
            A('s_mov_b64 exec, -1')
            self.lab(lb)
        self.lab('L_end')
        A('s_endpgm')
        L.append('.section .rodata,"a"')
        L.append('.p2align 6')
        L.append(f'.amdhsa_kernel {NAME}_kernel')
        for d in ['next_free_vgpr 256', 'next_free_sgpr 102', 'accum_offset 256', 'group_segment_fixed_size 0',
                  'kernarg_size 104', 'user_sgpr_count 2', 'user_sgpr_kernarg_segment_ptr 1',
                  'system_sgpr_workgroup_id_x 1', 'float_denorm_mode_32 3']:
            L.append('  .amdhsa_' + d)
        L.append('.end_amdhsa_kernel')
        return '\n'.join(L) + '\n'

    def reducer(self, which):
        A = self.A
        self.lane(10)
        A('v_lshlrev_b32 v11, 2, v10')
        A(f's_lshl_b32 s{sC}, s{sRU}, 3')
        A(f's_add_u32 s{sC}, s{sC}, s{sWAVE}')
        A(f's_lshl_b32 s{sD}, s{sC}, 8')
        A(f's_add_u32 s{sE}, s{sLOFF}, s{sRHO}')
        A(f's_add_u32 s{sE}, s{sE}, {MB_P1 if which == 1 else MB_P2}')
        for xs in range(8):
            A(f's_add_u32 s{sA}, s{sD}, {xs*20480}')
            A(f's_lshr_b32 s{sBb}, s{sA}, 13')
            A(f's_lshl_b32 s{sBb}, s{sBb}, 14')
            A(f's_and_b32 s{sA}, s{sA}, 8191')
            A(f's_add_u32 s{sA}, s{sA}, s{sBb}')
            A(f's_add_u32 s{sBLK+xs}, s{sA}, s{sE}')
        A('v_and_b32 v16, 7, v10')
        A('v_lshlrev_b32 v16, 1, v16')
        A('v_lshrrev_b32 v17, 3, v10')
        A('v_mul_u32_u24 v17, 1280, v17')
        A('v_add_u32 v17, v17, v16')
        A(f's_mul_i32 s{sE}, s{sX}, 10240')
        A(f's_lshl_b32 s{sBb}, s{sC}, 4')
        A(f's_add_u32 s{sE}, s{sE}, s{sBb}')
        A(f's_add_u32 s{sE}, s{sE}, s{sLOFF}')
        A(f's_add_u32 s{sE}, s{sE}, {MB_X1 if which == 1 else MB_X2}')
        if which == 2:
            lf = self.nl('RF')
            A(f's_cmp_eq_u32 s{sLOFF}, 0')
            A(f's_cbranch_scc1 {lf}')
            A(f's_mul_i32 s{sE}, s{sX}, 1280')
            A(f's_add_u32 s{sE}, s{sE}, s{sBb}')
            A(f's_lshl_b32 s{sA}, s{sX}, 3')
            A(f's_lshl_b64 exec, 0xff, s{sA}')
            self.lab(lf)
        A(f's_mov_b32 s{sM64}, 0x55555555')
        A(f's_mov_b32 s{sM64+1}, 0x55555555')
        loads = [f'buffer_load_dword v{xs}, v11, s[{S_WS}:{S_WS+3}], s{sBLK+xs} offen sc1' for xs in range(8)]
        if which == 2 and self.o.get('rd2d'):
            A(f's_sleep {self.o["rd2d"]}')
        if which == 1 and self.o.get('rd1d') is not None:
            A('v_lshlrev_b32 v12, 4, v10')
            A(f's_lshl_b32 s{sA}, s{sX}, 13')
            A(f's_lshl_b32 s{sBb}, s{sWAVE}, 10')
            A(f's_add_u32 s{sA}, s{sA}, s{sBb}')
            A(f's_add_u32 s{sA}, s{sA}, s{sLOFF}')
            A(f's_add_u32 s{sD}, s{sA}, {MB_O}')
            self.poll([f'buffer_load_dwordx4 v[0:3], v12, s[{S_WS}:{S_WS+3}], s{sD} offen sc1'], range(4))
            A('s_barrier')
            if self.o['rd1d']:
                A(f's_sleep {self.o["rd1d"]}')
        self.poll(loads, range(8))
        A('v_add_f32 v0, v0, v1')
        A('v_add_f32 v2, v2, v3')
        A('v_add_f32 v4, v4, v5')
        A('v_add_f32 v6, v6, v7')
        A('v_add_f32 v0, v0, v2')
        A('v_add_f32 v4, v4, v6')
        A('v_add_f32 v0, v0, v4')
        A('v_cvt_pk_bf16_f32 v0, v0, v0')
        A('v_and_b32 v0, 0xffff0000, v0')
        if which == 2:
            A(f'v_add_f32 v0, v0, v{VB2}')
            A('v_cvt_pk_bf16_f32 v0, v0, v0')
            A('v_and_b32 v0, 0xffff0000, v0')
        A(f'v_add_f32 v0, v0, v{VRES}')
        A('v_cvt_pk_bf16_f32 v0, v0, v0')
        A(f'v_and_b32 v{VRES}, 0xffff0000, v0')
        A('v_and_b32 v1, 0xffff, v0')
        A('s_nop 0')
        A(f'v_or_b32_dpp v1, v{VRES}, v1 quad_perm:[1,1,3,3] row_mask:0xf bank_mask:0xf')
        A(f's_and_b64 exec, exec, s[{sM64}:{sM64+1}]')
        if which == 2:
            lf, le = self.nl('RO'), self.nl('ROE')
            A(f's_cmp_eq_u32 s{sLOFF}, 0')
            A(f's_cbranch_scc1 {lf}')
            A(f'buffer_store_dword v1, v16, s[{S_OUT}:{S_OUT+3}], s{sE} offen')
            A(f's_branch {le}')
            self.lab(lf)
        A('v_min_u32 v1, 0xfffffffe, v1')
        self.store_local(f'buffer_store_dword v1, v17, s[{S_WS}:{S_WS+3}], s{sE} offen')
        if which == 2:
            self.lab(le)
        A('s_mov_b64 exec, -1')

    def ln_gather(self, mb, nln):
        A = self.A
        A('v_lshlrev_b32 v30, 2, v24')
        A(f's_mul_i32 s{sD}, s{sX}, 10240')
        A(f's_mul_i32 s{sBb}, s{sWAVE}, 1280')
        A(f's_add_u32 s{sD}, s{sD}, s{sBb}')
        A(f's_add_u32 s{sD}, s{sD}, s{sLOFF}')
        A(f's_add_u32 s{sD}, s{sD}, {mb}')
        loads = [f'buffer_load_dword v{i}, v30, s[{S_WS}:{S_WS+3}], s{sD} offen offset:{256*i} sc1' for i in range(5)]
        self.poll(loads, range(5))
        self.cstamp(4 if nln == 2 else 9)
        if nln == 2:
            self.astamp(8)
        self.layernorm(0, 6, 16, True)
        if nln == 2:
            self.layernorm(0, 6, 16, False)
        self.ln_stage_write(0, 30)

    def chain(self):
        A = self.A
        l_wo, l_m1, l_m2, l_q, l_qp = 'C_wo', 'C_m1', 'C_m2', 'C_q', 'C_qp'
        A(f's_cmp_eq_u32 s{sRT}, 4')
        A(f's_cbranch_scc1 {l_m2}')
        A(f's_cmp_eq_u32 s{sRT}, 3')
        A(f's_cbranch_scc1 {l_m1}')
        A(f's_cmp_eq_u32 s{sRT}, 2')
        A(f's_cbranch_scc1 {l_wo}')
        A(f's_cmp_lg_u32 s{sLOFF}, 0')
        A('s_cbranch_scc1 L_fin')
        A(f's_cmp_eq_u32 s{sRT}, 1')
        A(f's_cbranch_scc1 {l_q}')
        A(f's_branch {l_qp}')
        self.lab(l_wo)
        self.gemm_pre(256, 1040)
        self.p_addr_pre(MB_P1)
        A('v_lshlrev_b32 v30, 4, v24')
        A(f's_lshl_b32 s{sA}, s{sX}, 13')
        A(f's_lshl_b32 s{sBb}, s{sWAVE}, 10')
        A(f's_add_u32 s{sA}, s{sA}, s{sBb}')
        A(f's_add_u32 s{sA}, s{sA}, s{sLOFF}')
        A(f's_add_u32 s{sD}, s{sA}, {MB_O}')
        A(f's_mul_i32 s{sA}, s{sWAVE}, 1040')
        A(f'v_add_u32 v28, s{sA}, v30')
        self.poll([f'buffer_load_dwordx4 v[0:3], v30, s[{S_WS}:{S_WS+3}], s{sD} offen sc1'], range(4))
        self.cstamp(1)
        A(f'ds_write_b128 v28, v[0:3] offset:{L_STAGE}')
        A('s_waitcnt lgkmcnt(0)')
        A('s_barrier')
        self.gemm(8)
        self.p_store()
        self.cstamp(2)
        A(f's_cmp_lg_u32 s{sLOFF}, 0')
        A('s_cbranch_scc1 L_fin')
        A(f's_branch {l_qp}')
        self.lab(l_m1)
        self.gemm_pre(320, 1296)
        A(f's_lshl_b32 s{sA}, s{sX}, 12')
        A(f's_lshl_b32 s{sBb}, s{sRU}, 3')
        A(f's_add_u32 s{sBb}, s{sBb}, s{sWAVE}')
        A(f's_lshl_b32 s{sBb}, s{sBb}, 7')
        A(f's_add_u32 s{sA}, s{sA}, s{sBb}')
        A(f's_add_u32 s{sA}, s{sA}, s{sLOFF}')
        A(f's_add_u32 s{sE}, s{sA}, {MB_H}')
        A('v_lshlrev_b32 v29, 4, v25')
        A('v_lshl_add_u32 v29, v26, 3, v29')
        A('v_and_b32 v28, 1, v26')
        A('v_lshlrev_b32 v28, 4, v28')
        A(f's_lshl_b32 s{sA}, s{sWAVE}, 5')
        A(f'v_add_u32 v28, s{sA}, v28')
        self.ln_gather(MB_X1, 2)
        self.astamp(9)
        A(f'ds_read_b128 v[20:23], v28 offset:{L_B1}')
        A('s_waitcnt lgkmcnt(0)')
        A('s_barrier')
        self.gemm(10, NT=4)
        self.astamp(10)
        A('v_cvt_pk_bf16_f32 v4, v0, v1')
        A('v_cvt_pk_bf16_f32 v5, v2, v3')
        A('v_lshlrev_b32 v0, 16, v4')
        A('v_and_b32 v1, 0xffff0000, v4')
        A('v_lshlrev_b32 v2, 16, v5')
        A('v_and_b32 v3, 0xffff0000, v5')
        for r in range(4):
            A(f'v_add_f32 v{r}, v{r}, v{20+r}')
        A('v_cvt_pk_bf16_f32 v4, v0, v1')
        A('v_cvt_pk_bf16_f32 v5, v2, v3')
        A('v_lshlrev_b32 v0, 16, v4')
        A('v_and_b32 v1, 0xffff0000, v4')
        A('v_lshlrev_b32 v2, 16, v5')
        A('v_and_b32 v3, 0xffff0000, v5')
        c1 = 2.0 * math.sqrt(2.0 / math.pi) * math.log2(math.e)
        c2 = c1 * 0.044715
        A(f'v_mov_b32 v12, 0x{f2u(c2):08x}')
        A(f'v_mov_b32 v13, 0x{f2u(c1):08x}')
        for r in range(4):
            A(f'v_mul_f32 v{4+r}, v{r}, v{r}')
        for r in range(4):
            A(f'v_fma_f32 v{4+r}, v{4+r}, v12, v13')
        for r in range(4):
            A(f'v_mul_f32 v{4+r}, v{4+r}, v{r}')
        for r in range(4):
            A(f'v_exp_f32 v{4+r}, -v{4+r}')
        A('s_nop 0')
        for r in range(4):
            A(f'v_add_f32 v{4+r}, 1.0, v{4+r}')
        for r in range(4):
            A(f'v_rcp_f32 v{4+r}, v{4+r}')
        A('s_nop 0')
        for r in range(4):
            A(f'v_mul_f32 v{r}, v{r}, v{4+r}')
        self.pack4()
        self.mask16()
        self.store_local(f'buffer_store_dwordx2 v[4:5], v29, s[{S_WS}:{S_WS+3}], s{sE} offen')
        self.unmask()
        self.cstamp(5)
        A(f's_cmp_lg_u32 s{sLOFF}, 0')
        A('s_cbranch_scc1 L_fin')
        A(f's_branch {l_qp}')
        self.lab(l_m2)
        self.reducer(1)
        self.cstamp(3)
        self.lane(24)
        A('v_and_b32 v25, 15, v24')
        A('v_lshrrev_b32 v26, 4, v24')
        A('v_and_b32 v27, 7, v25')
        A('v_lshrrev_b32 v28, 3, v25')
        A('v_mul_u32_u24 v27, 528, v27')
        A('v_lshl_add_u32 v27, v26, 4, v27')
        A(f's_lshl_b32 s{sA}, s{sNM1}, 6')
        A(f'v_mul_u32_u24 v28, s{sA}, v28')
        A('v_add_u32 v27, v27, v28')
        self.p_addr_pre(MB_P2)
        A('v_lshlrev_b32 v30, 3, v24')
        A('v_bfe_u32 v28, v24, 1, 3')
        A('v_mul_u32_u24 v28, 528, v28')
        A('v_lshl_add_u32 v28, v26, 4, v28')
        A('v_and_b32 v23, 1, v24')
        A('v_lshl_add_u32 v28, v23, 3, v28')
        A(f's_lshl_b32 s{sA}, s{sWAVE}, 6')
        A(f'v_add_u32 v28, s{sA}, v28')
        A(f's_lshl_b32 s{sA}, s{sX}, 12')
        A(f's_lshl_b32 s{sBb}, s{sWAVE}, 9')
        A(f's_add_u32 s{sA}, s{sA}, s{sBb}')
        A(f's_add_u32 s{sA}, s{sA}, s{sLOFF}')
        A(f's_add_u32 s{sD}, s{sA}, {MB_H}')
        lsk = self.nl('M2s')
        A(f's_lshl_b32 s{sA}, s{sNM1}, 1')
        A(f's_cmp_ge_u32 s{sWAVE}, s{sA}')
        A(f's_cbranch_scc1 {lsk}')
        self.poll([f'buffer_load_dwordx2 v[0:1], v30, s[{S_WS}:{S_WS+3}], s{sD} offen sc1'], range(2))
        self.cstamp(6)
        A(f'ds_write_b64 v28, v[0:1] offset:{L_STAGE}')
        A('s_waitcnt lgkmcnt(0)')
        self.lab(lsk)
        A('s_barrier')
        for j in range(4):
            A(f'ds_read_b128 v[{4+4*j}:{7+4*j}], v27 offset:{L_STAGE + 64*j}')
        lc = self.nl('M2c')
        for j in range(4):
            if j == 3:
                A(f's_cmp_eq_u32 s{sNM1}, 3')
                A(f's_cbranch_scc1 {lc}')
            A(f's_waitcnt lgkmcnt({3-j})')
            c = '0' if j == 0 else 'v[0:3]'
            A(f'v_mfma_f32_16x16x32_bf16 v[0:3], v[{VW+4*j}:{VW+4*j+3}], v[{4+4*j}:{7+4*j}], {c}')
        self.lab(lc)
        A('s_waitcnt lgkmcnt(0)')
        self.combine()
        self.p_store()
        self.cstamp(7)
        self.reducer(2)
        self.cstamp(8)
        A(f's_cmp_lg_u32 s{sLOFF}, 0')
        A('s_cbranch_scc1 L_fin')
        A(f's_branch {l_qp}')
        self.lab(l_q)
        self.gemm_pre(320, 1296)
        self.q_addr_pre(LSTRIDE)
        self.ln_gather(MB_X2, 1)
        A('s_barrier')
        self.gemm(10)
        self.pack4()
        self.mask16()
        self.store_local(f'buffer_store_dwordx2 v[4:5], v29, s[{S_WS}:{S_WS+3}], s{sE} offen')
        self.unmask()
        self.stamp(7)
        self.lab(l_qp)
        A(f's_mov_b32 s{sLOFF}, {LSTRIDE}')
        self.lane(30)
        lq = self.nl('QW')
        A(f's_cmp_lg_u32 s{sWAVE}, 0')
        A(f's_cbranch_scc1 {lq}')
        A('v_lshlrev_b32 v29, 7, v30')
        A('v_lshlrev_b32 v28, 4, v30')
        A(f's_lshl_b32 s{sA}, s{sH}, 11')
        A(f's_lshl_b32 s{sBb}, s{sB}, 4')
        A(f's_add_u32 s{sA}, s{sA}, s{sBb}')
        A(f's_add_u32 s{sD}, s{sA}, {MB_Q + LSTRIDE}')
        A('s_mov_b64 exec, 0xffff')
        self.poll([f'buffer_load_dwordx4 v[0:3], v29, s[{S_WS}:{S_WS+3}], s{sD} offen sc1'], range(4))
        A(f'ds_write_b128 v28, v[0:3] offset:{L_QB}')
        A('s_mov_b64 exec, -1')
        A('s_waitcnt lgkmcnt(0)')
        self.lab(lq)
        A('v_and_b32 v27, 1, v30')
        A('v_lshrrev_b32 v30, 4, v30')
        A('v_lshl_add_u32 v30, v27, 2, v30')
        A('v_lshlrev_b32 v30, 4, v30')
        A('v_xor_b32 v27, 64, v30')
        A('s_barrier')
        for j in range(4):
            A(f'ds_read_b128 v[{4*j}:{4*j+3}], v{30 if j < 2 else 27} offset:{L_QB + 128*(j & 1)}')
        self.stamp(8)
        A('s_branch L_att')


if __name__ == '__main__':
    ap = argparse.ArgumentParser()
    ap.add_argument('-o', default='cdna_kernels/' + NAME + '.s')
    ap.add_argument('--ts', action='store_true')
    ap.add_argument('--slow', action='store_true')
    for k, d in (('win', 12), ('n1', 12), ('n2', 4), ('nq', 44), ('tswave', 0), ('cmode', None), ('forcepar', None), ('nprobe', 2), ('sync', 0), ('n1win', 0), ('nln', 0), ('stop', 0), ('noclear', 0), ('nowt', 0), ('notable', 0), ('nqs', 36), ('nprb', 8), ('pure', 0), ('prio', 0), ('wl', 0), ('clr4', 0), ('amode', 0), ('rd2', 0), ('wtail', 0), ('synclim', 0), ('cpol', 0), ('syncat', 0), ('ntail', 0), ('k128', 0), ('dbgflag', 0), ('rd2d', 0), ('rd1d', None), ('k0', 0)):
        ap.add_argument('--' + k, type=int, default=d)
    a = ap.parse_args()
    o = vars(a).copy()
    out = o.pop('o')
    open(out, 'w').write(G(**o).build())
```

```python
import sys, argparse, struct, math
NAME = 'interleave_layers__sliding_block_cached__mixer_channel_mlp__decode'
HEADER = open('cdna_kernels/' + NAME + '.s.ref').read().split('; Override launch')[0]

LSTRIDE = 0xF0000
MB_P1 = 0x00000
MB_P2 = 0xA0000
MB_Q = 0x90000
MB_O = 0x50000
MB_X1 = 0x60000
MB_X2 = 0x74000
MB_H = 0x88000
WIN_BYTES = 0x200000
TS_OFF = 0x800000

L_STAGE = 0
L_OP = 10368
L_B1 = 14464
L_XCH = 14720
L_QB = 14848
L_V = 16384
L_STG = 81920
LDS_BYTES = 163840

VK = 32
VV = 160
VW = 216
VRES, VB2 = 248, 249

S_K, S_V, S_WS, S_DBG, S_OUT, S_T0, S_T1 = 16, 20, 24, 28, 32, 36, 40
sX, sS, sH, sB, sWAVE = 44, 45, 46, 47, 48
sRT, sRU = 49, 50
sFAST, sLOFF, sSPIN = 51, 52, 53
sRHO = 54
sNM1 = 55
sA, sBb, sC, sD = 56, 57, 58, 59
sM64, sM64b = 60, 62
sGX = 64
sMW = 65
sBLK = 66
sKLA, sKLB = 74, 75
sE, sF = 76, 77
sLIGHT = 100
sTS = 78
P_X, P_WQ, P_WO, P_W1, P_B1, P_W2 = 4, 6, 8, 10, 12, 14
sONE, sLO, sHI = 4, 5, 6
SPIN_MAX = 400000
f2u = lambda f: struct.unpack('<I', struct.pack('<f', f))[0]


class G:
    vtmp = 31

    def __init__(self, **o):
        self.L = []
        self.o = o
        self.ts = o.get('ts')
        self.nlab = 0

    def A(self, s):
        j = self.o.get('jitter')
        if j and not getattr(self, '_inj', False) and (s.startswith('s_barrier') or s.startswith('buffer_store') or s.startswith('ds_write') or s.startswith('buffer_atomic')):
            self._inj = True
            self.jit()
            self._inj = False
        self.L.append('  ' + s)
        if j and not getattr(self, '_inj', False) and s.startswith('s_barrier'):
            self._inj = True
            self.jit()
            self._inj = False

    def jit(self):
        lb = self.nl('JT')
        L = self.L
        L.append('  s_cselect_b32 s98, 1, 0')
        L.append('  s_memtime s[96:97]')
        L.append('  s_waitcnt lgkmcnt(0)')
        L.append('  s_lshr_b32 s96, s96, 4')
        L.append('  s_and_b32 s96, s96, 7')
        L.append('  s_cmp_lg_u32 s96, 0')
        L.append(f'  s_cbranch_scc1 {lb}')
        L.append(f'  s_sleep {self.o["jitter"]}')
        L.append(lb + ':')
        L.append('  s_cmp_lg_u32 s98, 0')

    def lab(self, name):
        self.L.append(name + ':')

    def nl(self, p='L'):
        self.nlab += 1
        return f'{p}_{self.nlab}'

    def stamp(self, k):
        if self.o.get('dbgflag') and k in (7, 8):
            return
        if self.ts and (self.o.get('cmode') is None or k == 0):
            self.A(f's_memrealtime s[{sTS+2*k}:{sTS+2*k+1}]')

    def lstamp(self, k0, k1):
        if self.ts and self.o.get('cmode') is None:
            l1, l2 = self.nl('LS'), self.nl('LS')
            self.A(f's_cmp_lg_u32 s{sLOFF}, 0')
            self.A(f's_cbranch_scc1 {l1}')
            self.stamp(k0)
            self.A(f's_branch {l2}')
            self.lab(l1)
            self.stamp(k1)
            self.lab(l2)

    def astamp(self, k):
        if self.o.get('amode'):
            self.cstamp(k, True)

    def cstamp(self, k, am=False):
        cm = self.o.get('cmode')
        if self.ts and cm is not None and bool(self.o.get('amode')) == am:
            lb = self.nl('CS')
            self.A(f's_cmp_lg_u32 s{sLOFF}, {cm * LSTRIDE}')
            self.A(f's_cbranch_scc1 {lb}')
            self.A(f's_memrealtime s[{sTS+2*k}:{sTS+2*k+1}]')
            self.lab(lb)

    def lane(self, v):
        self.A(f'v_mbcnt_lo_u32_b32 v{v}, -1, 0')
        self.A(f'v_mbcnt_hi_u32_b32 v{v}, -1, v{v}')

    @staticmethod
    def kplace():
        pl = {}
        n = r = 0
        for i in range(8):
            nl = 3 if i < 2 else 2
            for j in range(4):
                if j < nl:
                    pl[(i, j)] = ('L', n)
                    n += 1
                else:
                    pl[(i, j)] = ('R', VK + 4 * r)
                    r += 1
        assert n == 18 and r == 14
        return pl

    def spin_check(self, lab_retry):
        self.A(f's_add_u32 s{sSPIN}, s{sSPIN}, 1')
        self.A(f's_cmp_lt_u32 s{sSPIN}, {SPIN_MAX}')
        self.A(f's_cbranch_scc1 {lab_retry}')

    def sent_test(self, regs, t):
        A = self.A
        regs = list(regs)
        if len(regs) == 1:
            A(f'v_cmp_eq_u32 vcc, -1, v{regs[0]}')
            return
        if len(regs) == 2:
            A(f'v_max_u32 v{t}, v{regs[0]}, v{regs[1]}')
            rest = []
        else:
            A(f'v_max3_u32 v{t}, v{regs[0]}, v{regs[1]}, v{regs[2]}')
            rest = regs[3:]
        while rest:
            if len(rest) >= 2:
                A(f'v_max3_u32 v{t}, v{t}, v{rest[0]}, v{rest[1]}')
                rest = rest[2:]
            else:
                A(f'v_max_u32 v{t}, v{t}, v{rest[0]}')
                rest = rest[1:]
        A(f'v_cmp_eq_u32 vcc, -1, v{t}')

    def poll(self, loads, regs):
        A = self.A
        lr, ld = self.nl('P'), self.nl('PD')
        self.lab(lr)
        for l in loads:
            A(l)
        A('s_waitcnt vmcnt(0)')
        self.sent_test(regs, self.vtmp)
        A('s_cmp_eq_u64 vcc, 0')
        A(f's_cbranch_scc1 {ld}')
        self.spin_check(lr)
        self.lab(ld)

    def poll2(self, mk, regsA, regsB, consume):
        A = self.A
        if not self.o.get('p2'):
            self.poll(mk(regsA), regsA)
            consume(regsA)
            return
        n = len(mk(regsA))
        lr, la, lb, le = self.nl('PP'), self.nl('PA'), self.nl('PB'), self.nl('PE')
        for l in mk(regsA):
            A(l)
        A('s_nop 15')
        A('s_nop 7')
        self.lab(lr)
        for l in mk(regsB):
            A(l)
        A(f's_waitcnt vmcnt({n})')
        self.sent_test(regsA, self.vtmp)
        A('s_cmp_eq_u64 vcc, 0')
        A(f's_cbranch_scc1 {la}')
        for l in mk(regsA):
            A(l)
        A(f's_waitcnt vmcnt({n})')
        self.sent_test(regsB, self.vtmp)
        A('s_cmp_eq_u64 vcc, 0')
        A(f's_cbranch_scc1 {lb}')
        self.spin_check(lr)
        self.lab(lb)
        consume(regsB)
        A(f's_branch {le}')
        self.lab(la)
        consume(regsA)
        self.lab(le)

    def store_local(self, ins):
        A = self.A
        l1, l2 = self.nl('SL'), self.nl('SE')
        A(f's_cmp_eq_u32 s{sFAST}, 0')
        A(f's_cbranch_scc1 {l1}')
        A(ins)
        A(f's_branch {l2}')
        self.lab(l1)
        A(ins + ' sc1')
        self.lab(l2)

    def wave_reduce(self, items):
        A = self.A
        steps = ['row_shr:1', 'row_shr:2', 'row_shr:4', 'row_shr:8', 'row_bcast:15 row_mask:0xa', 'row_bcast:31 row_mask:0xc']
        for st in steps:
            pad = 2 - (len(items) - 1)
            if pad > 0:
                A(f's_nop {pad-1}')
            for (r, op) in items:
                m = st if 'row_mask' in st else st + ' row_mask:0xf'
                A(f'{op}_dpp v{r}, v{r}, v{r} {m} bank_mask:0xf')
        A('s_nop 1')

    def mask16(self):
        self.A('s_mov_b32 exec_lo, 0x00ff00ff')
        self.A('s_mov_b32 exec_hi, 0')

    def unmask(self):
        self.A('s_mov_b64 exec, -1')

    def layernorm(self, pk, f, t, shifted=True):
        A = self.A
        s1, s2, d0 = t, t + 2, t + 4
        if shifted:
            A(f'v_readfirstlane_b32 s{sA}, v{pk}')
            A(f's_lshl_b32 s{sA}, s{sA}, 16')
            A(f's_xor_b32 s{sBb}, s{sA}, 0x80000000')
            A(f'v_mov_b32 v{d0}, s{sBb}')
            for i in range(5):
                A(f'v_dot2_f32_bf16 v{f+2*i}, v{pk+i}, s{sLO}, v{d0}')
                A(f'v_dot2_f32_bf16 v{f+2*i+1}, v{pk+i}, s{sHI}, v{d0}')
            A(f'v_pk_add_f32 v[{s1}:{s1+1}], v[{f}:{f+1}], v[{f+2}:{f+3}]')
            A(f'v_pk_mul_f32 v[{s2}:{s2+1}], v[{f}:{f+1}], v[{f}:{f+1}]')
            for i in range(1, 5):
                if i >= 2:
                    A(f'v_pk_add_f32 v[{s1}:{s1+1}], v[{f+2*i}:{f+2*i+1}], v[{s1}:{s1+1}]')
                A(f'v_pk_fma_f32 v[{s2}:{s2+1}], v[{f+2*i}:{f+2*i+1}], v[{f+2*i}:{f+2*i+1}], v[{s2}:{s2+1}]')
            A(f'v_add_f32 v{s1}, v{s1}, v{s1+1}')
            A(f'v_add_f32 v{s2}, v{s2}, v{s2+1}')
        else:
            for i in range(5):
                c1 = '0' if i == 0 else f'v{s1}'
                c2 = '0' if i == 0 else f'v{s2}'
                A(f'v_dot2_f32_bf16 v{s1}, v{pk+i}, s{sONE}, {c1}')
                A(f'v_dot2_f32_bf16 v{s2}, v{pk+i}, v{pk+i}, {c2}')
            A('s_nop 1')
        self.wave_reduce([(s1, 'v_add_f32'), (s2, 'v_add_f32')])
        A(f'v_readlane_b32 s{sBb}, v{s1}, 63')
        A(f'v_readlane_b32 s{sC}, v{s2}, 63')
        A(f'v_mov_b32 v{d0}, 0x3acccccd')
        A('s_nop 0')
        A(f'v_mul_f32 v{s1}, s{sBb}, v{d0}')
        A(f'v_mul_f32 v{s2}, s{sC}, v{d0}')
        A(f'v_fma_f32 v{s2}, -v{s1}, v{s1}, v{s2}')
        if shifted:
            A(f'v_add_f32 v{s1}, s{sA}, v{s1}')
        A(f'v_max_f32 v{s2}, 0, v{s2}')
        A(f'v_cvt_pk_bf16_f32 v{d0}, v{s1}, v{s2}')
        A(f'v_and_b32 v{s2}, 0xffff0000, v{d0}')
        A(f'v_add_f32 v{s2}, 0x37280000, v{s2}')
        A(f'v_lshlrev_b32 v{s1}, 16, v{d0}')
        A(f'v_cvt_pk_bf16_f32 v{s2}, v{s2}, v{s2}')
        A(f'v_and_b32 v{s2}, 0xffff0000, v{s2}')
        A(f'v_sqrt_f32 v{s2}, v{s2}')
        if shifted:
            A(f'v_sub_f32 v{s1}, s{sA}, v{s1}')
        else:
            A(f'v_sub_f32 v{s1}, 0, v{s1}')
        A(f'v_cvt_pk_bf16_f32 v{s2}, v{s2}, v{s2}')
        A(f'v_and_b32 v{s2}, 0xffff0000, v{s2}')
        A(f'v_rcp_f32 v{s2}, v{s2}')
        if shifted:
            for i in range(5):
                A(f'v_pk_add_f32 v[{f+2*i}:{f+2*i+1}], v[{f+2*i}:{f+2*i+1}], v[{s1}:{s1+1}] op_sel_hi:[1,0]')
        else:
            for i in range(5):
                A(f'v_dot2_f32_bf16 v{f+2*i}, v{pk+i}, s{sLO}, v{s1}')
                A(f'v_dot2_f32_bf16 v{f+2*i+1}, v{pk+i}, s{sHI}, v{s1}')
        for i in range(5):
            A(f'v_cvt_pk_bf16_f32 v{pk+i}, v{f+2*i}, v{f+2*i+1}')
        for i in range(5):
            A(f'v_lshlrev_b32 v{f+2*i}, 16, v{pk+i}')
            A(f'v_and_b32 v{f+2*i+1}, 0xffff0000, v{pk+i}')
        for i in range(5):
            A(f'v_pk_mul_f32 v[{f+2*i}:{f+2*i+1}], v[{f+2*i}:{f+2*i+1}], v[{s2}:{s2+1}] op_sel_hi:[1,0]')
        for i in range(5):
            A(f'v_cvt_pk_bf16_f32 v{pk+i}, v{f+2*i}, v{f+2*i+1}')

    def ln_stage_write(self, pk, va4):
        A = self.A
        A(f's_mul_i32 s{sA}, s{sWAVE}, 1296')
        A(f'v_add_u32 v{va4}, s{sA}, v{va4}')
        for i in range(5):
            A(f'ds_write_b32 v{va4}, v{pk+i} offset:{L_STAGE + 256*i}')
        A('s_waitcnt lgkmcnt(0)')

    def gemm_pre(self, Kh, RS):
        A = self.A
        self.lane(24)
        A('v_and_b32 v25, 15, v24')
        A('v_lshrrev_b32 v26, 4, v24')
        A('v_and_b32 v27, 7, v25')
        A('v_lshrrev_b32 v28, 3, v25')
        A(f'v_mul_u32_u24 v27, {RS}, v27')
        A(f'v_mul_u32_u24 v28, {Kh*2}, v28')
        A('v_lshl_add_u32 v27, v26, 4, v27')
        A('v_add_u32 v27, v27, v28')

    def gemm(self, S, NT=5):
        A = self.A
        T = [4 + 4 * k for k in range(NT)]
        for j in range(min(NT, S)):
            A(f'ds_read_b128 v[{T[j]}:{T[j]+3}], v27 offset:{L_STAGE + 64*j}')
        for j in range(S):
            issued = min(S, j + NT)
            A(f's_waitcnt lgkmcnt({issued - j - 1})')
            c = '0' if j == 0 else 'v[0:3]'
            A(f'v_mfma_f32_16x16x32_bf16 v[0:3], v[{VW+4*j}:{VW+4*j+3}], v[{T[j%NT]}:{T[j%NT]+3}], {c}')
            if j + NT < S:
                A(f'ds_read_b128 v[{T[j%NT]}:{T[j%NT]+3}], v27 offset:{L_STAGE + 64*(j+NT)}')
        self.combine()

    def combine(self):
        A = self.A
        A('s_nop 7')
        A('s_nop 0')
        for r in range(4):
            A(f'v_mov_b32_dpp v{4+r}, v{r} row_ror:8 row_mask:0xf bank_mask:0xf')
        A('s_nop 0')
        for r in range(4):
            A(f'v_permlane32_swap_b32 v{4+r}, v{8+r}')
        A('s_nop 0')
        for r in range(4):
            A(f'v_add_f32 v{r}, v{r}, v{8+r}')

    def p_addr_pre(self, mb):
        A = self.A
        A(f's_mul_i32 s{sA}, s{sX}, 20480')
        A(f's_lshl_b32 s{sBb}, s{sRU}, 3')
        A(f's_add_u32 s{sBb}, s{sBb}, s{sWAVE}')
        A(f's_lshl_b32 s{sBb}, s{sBb}, 8')
        A(f's_add_u32 s{sA}, s{sA}, s{sBb}')
        A(f's_lshr_b32 s{sBb}, s{sA}, 13')
        A(f's_lshl_b32 s{sBb}, s{sBb}, 14')
        A(f's_and_b32 s{sA}, s{sA}, 8191')
        A(f's_add_u32 s{sA}, s{sA}, s{sBb}')
        A(f's_add_u32 s{sA}, s{sA}, s{sLOFF}')
        A(f's_add_u32 s{sA}, s{sA}, {mb}')
        A(f's_add_u32 s{sF}, s{sA}, s{sRHO}')
        A(f's_xor_b32 s{sE}, s{sF}, 8192')
        A('v_lshlrev_b32 v29, 5, v25')
        A('v_lshl_add_u32 v29, v26, 4, v29')

    def p_store(self):
        A = self.A
        for r in range(4):
            A(f'v_min_u32 v{r}, 0xfffffffe, v{r}')
        self.mask16()
        A(f'buffer_store_dwordx4 v[0:3], v29, s[{S_WS}:{S_WS+3}], s{sE} offen sc1')
        A(f'buffer_store_dwordx4 v[0:3], v29, s[{S_WS}:{S_WS+3}], s{sF} offen sc1')
        self.unmask()

    def q_addr_pre(self, loff):
        A = self.A
        A(f's_lshl_b32 s{sA}, s{sX}, 6')
        A(f's_lshl_b32 s{sBb}, s{sRU}, 3')
        A(f's_add_u32 s{sA}, s{sA}, s{sBb}')
        A(f's_add_u32 s{sA}, s{sA}, s{sWAVE}')
        A(f's_lshl_b32 s{sA}, s{sA}, 7')
        A(f's_add_u32 s{sE}, s{sA}, {MB_Q + loff}')
        A('v_lshlrev_b32 v29, 4, v25')
        A('v_lshl_add_u32 v29, v26, 3, v29')

    def pack4(self):
        A = self.A
        A('v_cvt_pk_bf16_f32 v4, v0, v1')
        A('v_cvt_pk_bf16_f32 v5, v2, v3')
        A('v_min_u32 v4, 0xfffffffe, v4')
        A('v_min_u32 v5, 0xfffffffe, v5')

    def q_lane_chunk(self, vc, vp, tmp):
        A = self.A
        self.lane(tmp)
        A(f'v_lshrrev_b32 v{vc}, 5, v{tmp}')
        A(f'v_lshlrev_b32 v{vc}, 3, v{vc}')
        A(f'v_bfe_u32 v{vp}, v{tmp}, 1, 1')
        A(f'v_lshl_add_u32 v{vc}, v{vp}, 2, v{vc}')
        A(f'v_bfe_u32 v{vp}, v{tmp}, 4, 1')
        A(f'v_lshl_add_u32 v{vc}, v{vp}, 1, v{vc}')
        A(f'v_and_b32 v{vp}, 1, v{tmp}')
        A(f'v_lshlrev_b32 v{vp}, 2, v{vp}')

    def q_loads(self, va):
        A = self.A
        self.q_lane_chunk(va, 27, 26)
        A(f'v_lshl_add_u32 v{va}, v{va}, 7, v27')
        A(f's_lshl_b32 s{sA}, s{sH}, 11')
        A(f's_lshl_b32 s{sBb}, s{sB}, 4')
        A(f's_add_u32 s{sA}, s{sA}, s{sBb}')
        A(f's_add_u32 s{sA}, s{sA}, s{sLOFF}')
        A(f's_add_u32 s{sD}, s{sA}, {MB_Q}')
        return [f'buffer_load_dword v{j}, v{va}, s[{S_WS}:{S_WS+3}], s{sD} offen offset:{128*(j >> 1) + 8*(j & 1)} sc1' for j in range(4)]

    def qk_part1(self):
        A = self.A
        C0, C1 = 28, 29
        self.lane(24)
        for r in range(8):
            A(f'v_mov_b32 v{16+r}, 0')
        A('v_and_b32 v24, 1, v24')
        A('v_mul_u32_u24 v24, 0xaaaa, v24')
        A('v_add_u32 v24, 0x4444, v24')
        A(f's_mov_b32 s{sM64}, 0x000f000f')
        A(f's_mov_b32 s{sM64+1}, 0x000f000f')
        A('s_waitcnt lgkmcnt(0)')
        for sl in (3, 2, 1, 0):
            A(f's_lshl_b64 s[{sM64b}:{sM64b+1}], s[{sM64}:{sM64+1}], {4*sl}')
            for d in range(4):
                A(f'v_cndmask_b32 v{4*sl+d}, 0, v{d}, s[{sM64b}:{sM64b+1}]')
        A(f's_mov_b32 s{sM64}, 0xff00ff00')
        A(f's_mov_b32 s{sM64+1}, 0xff00ff00')
        for half in range(2):
            for sl in (3, 2, 1, 0):
                for st in range(2):
                    i = 4 * (2 * half + st) + sl
                    k = VK + 8 * i
                    d = 16 + 4 * st
                    A(f'v_smfmac_f32_16x16x64_bf16 v[{d}:{d+3}], v[{4*sl}:{4*sl+3}], v[{k}:{k+7}], v24')
            A('s_nop 7')
            for st in range(2):
                d = 16 + 4 * st
                A(f'v_add_f32 v{d}, v{d}, v{d+1}')
                A(f'v_add_f32 v{d+2}, v{d+2}, v{d+3}')
            for st in range(2):
                d = 16 + 4 * st
                A(f'v_cndmask_b32 v{25 + st if half == 0 else d}, v{d}, v{d+2}, s[{sM64}:{sM64+1}]')
            if half == 0:
                for r in range(8):
                    A(f'v_mov_b32 v{16+r}, 0')
                A('s_nop 0')
        A('s_nop 0')
        for x in (25, 26, 16, 20):
            A(f'v_add_f32_dpp v{x}, v{x}, v{x} row_ror:8 row_mask:0xf bank_mask:0xf')
        A(f'v_cndmask_b32 v{C0}, v25, v26, s[{sM64}:{sM64+1}]')
        A(f'v_cndmask_b32 v{C1}, v16, v20, s[{sM64}:{sM64+1}]')
        self.astamp(2)
        a0, a1, t0, m = 2, 3, 4, 5
        A(f'v_cvt_pk_bf16_f32 v{t0}, v{C0}, v{C1}')
        A(f'v_lshlrev_b32 v{a0}, 16, v{t0}')
        A(f'v_and_b32 v{a1}, 0xffff0000, v{t0}')
        A(f'v_mul_f32 v{a0}, 0x3db504f3, v{a0}')
        A(f'v_mul_f32 v{a1}, 0x3db504f3, v{a1}')
        A(f'v_cvt_pk_bf16_f32 v{t0}, v{a0}, v{a1}')
        A(f'v_lshlrev_b32 v{a0}, 16, v{t0}')
        A(f'v_and_b32 v{a1}, 0xffff0000, v{t0}')
        A(f'v_mov_b32 v{t0}, 0xff7fffff')
        A(f'v_max3_f32 v{m}, v{a0}, v{a1}, v{t0}')
        self.wave_reduce([(m, 'v_max_f32')])
        A(f'v_readlane_b32 s{sMW}, v{m}, 63')
        A('s_nop 1')
        A(f'v_subrev_f32 v{a0}, s{sMW}, v{a0}')
        A(f'v_subrev_f32 v{a1}, s{sMW}, v{a1}')
        A(f'v_mul_f32 v{a0}, 0x3fb8aa3b, v{a0}')
        A(f'v_mul_f32 v{a1}, 0x3fb8aa3b, v{a1}')
        A(f'v_exp_f32 v{a0}, v{a0}')
        A(f'v_exp_f32 v{a1}, v{a1}')
        A('s_nop 0')
        A(f'v_add_f32 v{m}, v{a0}, v{a1}')
        self.wave_reduce([(m, 'v_add_f32')])
        A(f'v_readlane_b32 s{sBb}, v{m}, 63')
        A(f's_lshl_b32 s{sC}, s{sWAVE}, 3')
        A(f'v_mov_b32 v6, s{sMW}')
        A(f'v_mov_b32 v7, s{sBb}')
        A(f'v_mov_b32 v8, s{sC}')
        A('s_mov_b64 exec, 1')
        A(f'ds_write_b64 v8, v[6:7] offset:{L_XCH}')
        A('s_mov_b64 exec, -1')

    def softmax_part2(self):
        A = self.A
        a0, a1 = 2, 3
        self.lane(8)
        A('v_and_b32 v9, 7, v8')
        A('v_lshlrev_b32 v9, 3, v9')
        A('v_and_b32 v11, 3, v8')
        A('v_mul_u32_u24 v11, 0x5555, v11')
        A('v_bfe_u32 v8, v8, 2, 2')
        A('v_mov_b32 v4, 0xffff')
        for jj in range(2):
            A(f'v_cmp_eq_u32 vcc, {jj}, v8')
            A('s_nop 1')
            A(f'v_cndmask_b32 v{14+jj}, 0, v4, vcc')
        A('s_waitcnt lgkmcnt(0)')
        self.pv_pre()
        A('s_barrier')
        self.astamp(4)
        A(f'ds_read_b64 v[6:7], v9 offset:{L_XCH}')
        A('s_waitcnt lgkmcnt(0)')
        A('v_mov_b32 v8, v6')
        for k in (1, 2, 4):
            A('s_nop 1')
            A(f'v_max_f32_dpp v8, v8, v8 row_ror:{k} row_mask:0xf bank_mask:0xf')
        A('v_sub_f32 v6, v6, v8')
        A(f'v_sub_f32 v9, s{sMW}, v8')
        A('v_mul_f32 v6, 0x3fb8aa3b, v6')
        A('v_mul_f32 v9, 0x3fb8aa3b, v9')
        A('v_exp_f32 v6, v6')
        A('v_exp_f32 v9, v9')
        A('s_nop 0')
        A('v_mul_f32 v7, v7, v6')
        A(f'v_mul_f32 v{a0}, v{a0}, v9')
        A(f'v_mul_f32 v{a1}, v{a1}, v9')
        for k in (1, 2, 4):
            if k > 1:
                A('s_nop 1')
            A(f'v_add_f32_dpp v7, v7, v7 row_ror:{k} row_mask:0xf bank_mask:0xf')
        A('v_rcp_f32 v7, v7')
        A('s_nop 0')
        A(f'v_mul_f32 v{a0}, v{a0}, v7')
        A(f'v_mul_f32 v{a1}, v{a1}, v7')
        A(f'v_cvt_pk_bf16_f32 v12, v{a0}, v{a0}')
        A(f'v_cvt_pk_bf16_f32 v13, v{a1}, v{a1}')
        A('s_nop 1')

    def pv_build(self, nu):
        A = self.A
        A(f'v_and_b32_dpp v4, v12, v14 row_newbcast:{nu} row_mask:0xf bank_mask:0xf')
        A(f'v_and_b32_dpp v5, v12, v15 row_newbcast:{nu} row_mask:0xf bank_mask:0xf')
        A(f'v_and_b32_dpp v6, v13, v14 row_newbcast:{nu} row_mask:0xf bank_mask:0xf')
        A(f'v_and_b32_dpp v7, v13, v15 row_newbcast:{nu} row_mask:0xf bank_mask:0xf')

    def pv_pre(self):
        A = self.A
        T = [16, 24]
        self.lane(10)
        A('v_lshlrev_b32 v10, 4, v10')
        A(f'v_add_u32 v10, s{sKLA}, v10')
        A(f's_lshl_b32 s{sA}, s{sX}, 13')
        A(f's_lshl_b32 s{sBb}, s{sB}, 10')
        A(f's_add_u32 s{sA}, s{sA}, s{sBb}')
        A(f's_and_b32 s{sBb}, s{sH}, 3')
        A(f's_lshl_b32 s{sBb}, s{sBb}, 8')
        A(f's_add_u32 s{sA}, s{sA}, s{sBb}')
        A(f's_add_u32 s{sA}, s{sA}, s{sLOFF}')
        A(f's_add_u32 s{sE}, s{sA}, {MB_O}')
        A('s_waitcnt vmcnt(14)')
        order = [0, 9, 1, 10, 2, 3, 11, 4, 5, 12, 6, 7, 13, 8, 14, 15]
        lq = [nu for nu in order if nu < 9]
        issued = 0

        def issue():
            nonlocal issued
            if issued >= len(lq):
                return
            nu = lq[issued]
            t = T[issued % 2]
            A(f'ds_read_b128 v[{t}:{t+3}], v10 offset:{nu*2048}')
            A(f'ds_read_b128 v[{t+4}:{t+7}], v10 offset:{nu*2048 + 1024}')
            issued += 1
        for _ in range(2):
            issue()
        self._pv = (T, order, lq, issue, lambda: issued)

    def pv(self):
        A = self.A
        T, order, lq, issue, nissued = self._pv
        for r in range(4):
            A(f'v_mov_b32 v{r}, 0')
        li = 0
        for nu in order:
            self.pv_build(nu)
            if nu < 9:
                A(f's_waitcnt lgkmcnt({2 * (nissued() - li - 1)})')
                A('s_nop 0')
                t = T[li % 2]
                A(f'v_smfmac_f32_16x16x64_bf16 v[0:3], v[4:7], v[{t}:{t+7}], v11')
                li += 1
                issue()
            else:
                r = VV + 8 * (nu - 9)
                A(f's_waitcnt vmcnt({2 * (15 - nu)})')
                A('s_nop 0')
                A(f'v_smfmac_f32_16x16x64_bf16 v[0:3], v[4:7], v[{r}:{r+7}], v11')
        self.lane(31)
        A('v_and_b32 v29, 15, v31')
        A('v_lshrrev_b32 v30, 4, v31')
        A('v_lshlrev_b32 v29, 5, v29')
        A('v_lshl_add_u32 v29, v30, 4, v29')
        A(f's_lshl_b32 s{sA}, s{sWAVE}, 9')
        A(f'v_add_u32 v29, s{sA}, v29')
        A('v_lshlrev_b32 v30, 3, v31')
        A('v_lshlrev_b32 v31, 2, v31')

    def o_finish(self):
        A = self.A
        A('s_mov_b32 exec_hi, 0')
        A(f'ds_write_b128 v29, v[0:3] offset:{L_OP}')
        A('s_mov_b64 exec, -1')
        A('s_waitcnt lgkmcnt(0)')
        A('s_barrier')
        ld = self.nl('OF')
        A(f's_cmp_lg_u32 s{sWAVE}, 0')
        A(f's_cbranch_scc1 {ld}')
        for w in range(8):
            A(f'ds_read_b64 v[{2*w}:{2*w+1}], v30 offset:{L_OP + 512*w}')
        for w in range(1, 8):
            A(f's_waitcnt lgkmcnt({7-w})')
            A(f'v_pk_add_f32 v[0:1], v[0:1], v[{2*w}:{2*w+1}]')
        A('v_cvt_pk_bf16_f32 v0, v0, v1')
        A('v_min_u32 v0, 0xfffffffe, v0')
        self.store_local(f'buffer_store_dword v0, v31, s[{S_WS}:{S_WS+3}], s{sE} offen')
        self.lab(ld)

    def table_wait(self, v=16):
        A = self.A
        lr, ld = self.nl('TB'), self.nl('TBD')

        def chk():
            A(f's_and_b32 s{sA}, s8, s9')
            for k in range(10, 16):
                A(f's_and_b32 s{sA}, s{sA}, s{k}')
            A(f's_bitcmp1_b32 s{sA}, 30')
        A(f's_load_dwordx8 s[8:15], s[{S_DBG}:{S_DBG+1}], 0')
        A('s_waitcnt lgkmcnt(0)')
        chk()
        A(f's_cbranch_scc1 {ld}')
        self.lane(v)
        A(f'v_and_b32 v{v}, 7, v{v}')
        A(f'v_lshlrev_b32 v{v}, 2, v{v}')
        self.lab(lr)
        A('s_sleep 32')
        A(f'buffer_load_dword v{v+1}, v{v}, s[{S_DBG}:{S_DBG+3}], 0 offen sc1')
        A('s_waitcnt vmcnt(0)')
        A(f'v_cmp_gt_u32 vcc, 0x40000000, v{v+1}')
        l2 = self.nl('TBE')
        A('s_cmp_eq_u64 vcc, 0')
        A(f's_cbranch_scc1 {l2}')
        self.spin_check(lr)
        self.lab(l2)
        A(f's_load_dwordx8 s[8:15], s[{S_DBG}:{S_DBG+1}], 0 glc')
        A('s_waitcnt lgkmcnt(0)')
        self.lab(ld)

    def table_decode(self):
        A = self.A
        o = self.o
        A(f's_load_dword s7, s[{S_DBG}:{S_DBG+1}], 128')
        A(f's_mov_b32 s{sFAST}, 0')
        for k in range(8, 16):
            A(f's_bfe_u32 s{sA}, s{k}, {(8 << 16) | 17}')
            A(f's_bfe_u32 s{sBb}, s{k}, {(11 << 16) | 6}')
            A(f's_mul_i32 s{sA}, s{sA}, s{sA}')
            A(f's_lshl_b32 s{sBb}, s{sBb}, 5')
            A(f's_xor_b32 s{sA}, s{sA}, s{sBb}')
            A(f's_or_b32 s{sFAST}, s{sFAST}, s{sA}')
        A(f's_cmp_eq_u32 s{sFAST}, 0')
        A(f's_cselect_b32 s{sFAST}, 1, 0')
        if o.get('slow'):
            A(f's_mov_b32 s{sFAST}, 0')
        A('s_waitcnt lgkmcnt(0)')
        A(f's_and_b32 s{sE}, s7, 0xffff')
        A(f's_lshl_b32 s{sE}, s{sE}, 1')
        A('s_lshr_b32 s7, s7, 16')
        A(f's_cmp_ge_u32 s{sE}, s7')
        A(f's_cselect_b32 s{sE}, 0, 1')
        if o.get('forcepar') is not None:
            A(f's_mov_b32 s{sE}, {o["forcepar"]}')
        A(f's_getreg_b32 s{sA}, hwreg(HW_REG_XCC_ID)')
        A(f's_bfe_u32 s{sA}, s{sA}, {(1 << 16) | 2}')
        A(f's_xor_b32 s{sE}, s{sE}, s{sA}')
        A(f's_lshl_b32 s{sRHO}, s{sE}, 13')

    def probe(self):
        A = self.A
        o = self.o
        A('s_and_b32 s3, s2, 63')
        A('s_lshl_b32 s3, s3, 7')
        A(f's_lshr_b32 s{sA}, s2, 6')
        A(f's_lshl_b32 s{sA}, s{sA}, 14')
        A(f's_add_u32 s3, s3, s{sA}')
        A('s_add_u32 s3, s3, 0x1E0000')
        A(f's_add_u32 s{sM64}, s{S_WS}, s3')
        A(f's_addc_u32 s{sM64+1}, s{S_WS+1}, 0')
        A(f's_load_dword s{sA}, s[{sM64}:{sM64+1}], 0 glc')
        A(f's_load_dword s{sBb}, s[{sM64}:{sM64+1}], 0x2000 glc')
        A('s_waitcnt lgkmcnt(0)')
        A(f's_mov_b32 s{sE}, 0')
        for rep in range(o.get('nprobe', 2)):
            A(f's_memtime s[{sM64b}:{sM64b+1}]')
            A('s_waitcnt lgkmcnt(0)')
            A(f's_load_dword s{sA}, s[{sM64}:{sM64+1}], 0 glc')
            A('s_waitcnt lgkmcnt(0)')
            A(f's_memtime s[{sC}:{sC+1}]')
            A('s_waitcnt lgkmcnt(0)')
            A(f's_load_dword s{sA}, s[{sM64}:{sM64+1}], 0x2000 glc')
            A('s_waitcnt lgkmcnt(0)')
            A(f's_memtime s[{sA}:{sA+1}]')
            A('s_waitcnt lgkmcnt(0)')
            A(f's_lshl_b32 s{sC}, s{sC}, 1')
            A(f's_sub_u32 s{sC}, s{sC}, s{sM64b}')
            A(f's_sub_u32 s{sC}, s{sC}, s{sA}')
            A(f's_add_u32 s{sE}, s{sE}, s{sC}')
        A(f's_lshr_b32 s{sE}, s{sE}, 31')
        A(f's_getreg_b32 s{sA}, hwreg(HW_REG_XCC_ID)')
        A(f's_and_b32 s{sA}, s{sA}, 7')
        A(f's_lshr_b32 s{sF}, s{sA}, 2')
        A(f's_xor_b32 s{sE}, s{sE}, s{sF}')
        A(f's_or_b32 s{sE}, s{sE}, 0x10000')
        A(f'v_mov_b32 v8, s{sE}')
        A('v_mov_b32 v9, 128')
        A('s_mov_b64 exec, 1')
        A(f'buffer_atomic_add v8, v9, s[{S_DBG}:{S_DBG+3}], 0 offen sc1')
        A('s_mov_b64 exec, -1')

    def flag(self):
        A = self.A
        A(f's_lshl_b32 s{sBb}, s{sX}, 2')
        A('v_mov_b32 v8, s7')
        A(f'v_mov_b32 v9, s{sBb}')
        A('s_mov_b64 exec, 1')
        A(f'buffer_atomic_add v8, v9, s[{S_DBG}:{S_DBG+3}], 0 offen sc1')
        A('s_mov_b64 exec, -1')

    def stream_addr(self, vk, vl, vr, tmp):
        A = self.A
        self.lane(tmp)
        A(f's_lshl_b32 s{sA}, s{sWAVE}, 15')
        A(f'v_and_b32 v{vk}, 7, v{tmp}')
        A(f'v_lshlrev_b32 v{vk}, 8, v{vk}')
        A(f'v_bfe_u32 v{vl}, v{tmp}, 3, 1')
        A(f'v_lshl_add_u32 v{vk}, v{vl}, 6, v{vk}')
        A(f'v_lshrrev_b32 v{vl}, 4, v{tmp}')
        A(f'v_lshl_add_u32 v{vk}, v{vl}, 4, v{vk}')
        A(f'v_add_u32 v{vk}, s{sA}, v{vk}')
        A(f'v_and_b32 v{vl}, 15, v{tmp}')
        A(f'v_lshlrev_b32 v{vl}, 4, v{vl}')
        A(f'v_add_u32 v{vl}, s{sA}, v{vl}')
        A(f'v_bfe_u32 v{vr}, v{tmp}, 4, 1')
        A(f'v_lshl_add_u32 v{vl}, v{vr}, 14, v{vl}')
        A(f'v_lshrrev_b32 v{vr}, 5, v{tmp}')
        A(f'v_lshl_add_u32 v{vl}, v{vr}, 11, v{vl}')

    def build(self):
        A = self.A
        L = self.L
        o = self.o
        L.append(HEADER.rstrip('\n'))
        L.append(f'; @launch grid=(256,1,1) block=(512,1,1) lds={LDS_BYTES}')
        L.append('.amdgcn_target "amdgcn-amd-amdhsa--gfx950"')
        L.append('.text')
        L.append(f'.globl {NAME}_kernel')
        L.append('.p2align 8')
        L.append(f'.type {NAME}_kernel,@function')
        L.append(f'{NAME}_kernel:')
        A('s_cmp_ge_u32 s2, 256')
        A('s_cbranch_scc1 L_end')
        if self.ts:
            for k in range(1, 11):
                A(f's_mov_b64 s[{sTS+2*k}:{sTS+2*k+1}], 0')
        self.stamp(0)
        A(f's_load_dwordx2 s[{P_X}:{P_X+1}], s[0:1], 0')
        A(f's_load_dwordx4 s[{S_T0}:{S_T0+3}], s[0:1], 8')
        A(f's_load_dwordx4 s[{S_T1}:{S_T1+3}], s[0:1], 24')
        A('s_load_dwordx4 s[68:71], s[0:1], 48')
        A('s_load_dwordx4 s[72:75], s[0:1], 64')
        A('s_load_dwordx4 s[60:63], s[0:1], 80')
        A('s_load_dwordx2 s[64:65], s[0:1], 96')
        A(f's_and_b32 s{sX}, s2, 7')
        A(f's_lshr_b32 s{sS}, s2, 3')
        A(f's_and_b32 s{sH}, s{sS}, 3')
        A(f's_lshl_b32 s{sA}, s{sX}, 2')
        A(f's_add_u32 s{sH}, s{sH}, s{sA}')
        A(f's_lshr_b32 s{sB}, s{sS}, 2')
        A(f's_lshl_b32 s{sA}, s{sB}, 5')
        A(f's_add_u32 s{sA}, s{sA}, s{sH}')
        A(f's_lshl_b32 s{sA}, s{sA}, 20')
        A(f's_add_u32 s{sA}, s{sA}, 0xC0000')
        A('v_lshrrev_b32 v1, 6, v0')
        A('v_and_b32 v2, 63, v0')
        A(f'v_readfirstlane_b32 s{sWAVE}, v1')
        A(f's_mov_b32 s{sLOFF}, 0')
        A(f's_mov_b32 s{sSPIN}, 0')
        A('s_waitcnt lgkmcnt(0)')
        if o.get('dbgflag') == 2:
            A(f's_memrealtime s[{sTS+14}:{sTS+15}]')
        A(f's_add_u32 s{S_K}, s{S_T0}, s{sA}')
        A(f's_addc_u32 s{S_K+1}, s{S_T0+1}, 0')
        A(f's_mov_b32 s{S_K+2}, 0x40000')
        A(f's_mov_b32 s{S_K+3}, 0x20000')
        A(f's_add_u32 s{S_V}, s{S_T0+2}, s{sA}')
        A(f's_addc_u32 s{S_V+1}, s{S_T0+3}, 0')
        A(f's_mov_b32 s{S_V+2}, 0x40000')
        A(f's_mov_b32 s{S_V+3}, 0x20000')
        K0 = o.get('k0', 0)
        if K0:
            self.stream_addr(30, 31, 28, 29)
            lk0 = self.nl('K0')
            A(f's_cmp_eq_u32 s{sWAVE}, 7')
            A(f's_cbranch_scc1 {lk0}')
            for j in range(K0):
                A(f'buffer_load_dwordx4 v[{VK+4*j}:{VK+4*j+3}], v30, s[{S_K}:{S_K+3}], 0 offen offset:{(j >> 1) * 2048 + (j & 1) * 128} nt')
            self.lab(lk0)
        A(f's_add_u32 s{S_WS}, s64, 0x1fffff')
        A(f's_addc_u32 s{S_WS+1}, s65, 0')
        A(f's_and_b32 s{S_WS}, s{S_WS}, 0xffe00000')
        A(f's_mov_b32 s{S_WS+2}, {0x1000000 if self.ts else WIN_BYTES}')
        A(f's_mov_b32 s{S_WS+3}, 0x20000')
        A(f's_mov_b64 s[{S_DBG}:{S_DBG+1}], s[62:63]')
        A(f's_mov_b32 s{S_DBG+2}, 256')
        A(f's_mov_b32 s{S_DBG+3}, 0x20000')
        A(f's_mov_b64 s[{S_OUT}:{S_OUT+1}], s[60:61]')
        A(f's_mov_b32 s{S_OUT+2}, 10240')
        A(f's_mov_b32 s{S_OUT+3}, 0x20000')
        A(f's_mov_b64 s[{P_WQ}:{P_WQ+1}], s[{S_T1}:{S_T1+1}]')
        A(f's_mov_b64 s[{P_WO}:{P_WO+1}], s[{S_T1+2}:{S_T1+3}]')
        A(f's_mov_b64 s[{P_W1}:{P_W1+1}], s[68:69]')
        A(f's_mov_b64 s[{P_B1}:{P_B1+1}], s[70:71]')
        A(f's_mov_b64 s[{P_W2}:{P_W2+1}], s[72:73]')
        A('s_mov_b64 s[0:1], s[74:75]')
        for i in range(8):
            A(f's_mov_b32 s{sBLK+i}, {i*4096}')
        A(f's_mul_i32 s{sKLA}, s{sWAVE}, 18432')
        A(f's_add_u32 s{sKLA}, s{sKLA}, {L_V}')
        A(f's_cmp_lt_u32 s{sX}, 3')
        A(f's_cselect_b32 s{sNM1}, 4, 3')
        A(f's_lshl_b32 s{sGX}, s{sX}, 2')
        A(f's_mul_i32 s{sA}, s{sX}, 3')
        A(f's_add_u32 s{sA}, s{sA}, 3')
        A(f's_min_u32 s{sGX}, s{sGX}, s{sA}')
        A(f's_mov_b32 s{sRT}, 1')
        A(f's_mov_b32 s{sRU}, s{sS}')
        for lo, typ in ((8, 2), (18, 4), (28, 3)):
            A(f's_sub_u32 s{sA}, s{sS}, {lo}')
            A(f's_cmp_ge_u32 s{sS}, {lo}')
            A(f's_cselect_b32 s{sRT}, {typ}, s{sRT}')
            A(f's_cselect_b32 s{sRU}, s{sA}, s{sRU}')
        lb = self.nl('RN')
        A(f's_cmp_lg_u32 s{sRT}, 3')
        A(f's_cbranch_scc1 {lb}')
        A(f's_cmp_ge_u32 s{sRU}, s{sNM1}')
        A(f's_cselect_b32 s{sRT}, 0, s{sRT}')
        self.lab(lb)
        A(f's_mov_b32 s{S_T0+3}, 0x20000')
        A(f's_mov_b32 s{S_T1+3}, 0x20000')
        A(f's_and_b32 s{sA}, s{sRT}, 3')
        A(f's_cmp_eq_u32 s{sA}, 0')
        A(f's_cselect_b32 s{sLIGHT}, 1, 0')

        CPOL = {0: ' sc1', 1: ' sc1 nt', 2: ' nt', 3: '', 4: ' sc0 sc1'}[o.get('cpol', 0)]
        l_w7, l_small = self.nl('W7'), self.nl('SM')
        A(f's_cmp_eq_u32 s{sWAVE}, 7')
        A(f's_cbranch_scc1 {l_w7}')
        A('v_lshrrev_b32 v3, 3, v2')
        A(f's_lshl_b32 s{sA}, s{sWAVE}, 3')
        A(f'v_add_u32 v3, s{sA}, v3')
        A('v_and_b32 v4, 7, v2')
        A('v_bfe_u32 v6, v2, 4, 1')
        A('v_xor_b32 v4, v4, v6')
        A(f's_and_b32 s{sA}, s{sWAVE}, 1')
        A(f's_lshl_b32 s{sA}, s{sA}, 1')
        A(f'v_xor_b32 v4, s{sA}, v4')
        A('v_lshlrev_b32 v4, 4, v4')

        def dma(ptr, size, stride, offcode, ninstr, khi):
            A(f's_mov_b64 s[{S_T0}:{S_T0+1}], s[{ptr}:{ptr+1}]')
            A(f's_mov_b32 s{S_T0+2}, {size}')
            offcode()
            A(f'v_mul_u32_u24 v5, {stride}, v3')
            A(f'v_add3_u32 v5, v5, v4, s{sC}')
            A(f's_lshl_b32 s{sD}, s{sWAVE}, 10')
            nmax = ninstr if isinstance(ninstr, int) else 32
            kmax = (nmax + 6) // 7
            for k in range(kmax):
                if isinstance(ninstr, int):
                    if 7 * k + 6 >= ninstr:
                        A(f's_cmp_ge_u32 s{sWAVE}, {ninstr - 7*k}')
                        A(f's_cbranch_scc1 {l_small}')
                elif 7 * k + 6 >= 24:
                    A(f's_add_u32 s{sA}, s{sWAVE}, {7*k}')
                    A(f's_cmp_ge_u32 s{sA}, s{ninstr[0]}')
                    A(f's_cbranch_scc1 {l_small}')
                A(f's_add_u32 s{sA}, s{sWAVE}, {7*k}')
                A(f's_cmp_ge_u32 s{sA}, {khi if isinstance(khi, int) else "s%d" % khi[0]}')
                A(f's_cselect_b32 s{sA}, {64 + 32*(k & 1)}, {32*(k & 1)}')
                A(f'v_xor_b32 v6, s{sA}, v5')
                A(f's_add_u32 m0, s{sD}, {L_STG + 7168*k}')
                A(f's_mov_b32 s{sC}, {k*56*stride}')
                A(f'buffer_load_dwordx4 v6, s[{S_T0}:{S_T0+3}], s{sC} offen nt lds')
            A(f's_branch {l_small}')

        def q_off():
            A(f's_lshl_b32 s{sC}, s{sX}, 10')
            A(f's_lshl_b32 s{sD}, s{sRU}, 7')
            A(f's_add_u32 s{sC}, s{sC}, s{sD}')

        def m1_off():
            A(f's_add_u32 s{sC}, s{sGX}, s{sRU}')
            A(f's_lshl_b32 s{sC}, s{sC}, 7')

        def wo_off():
            A(f's_mul_i32 s{sC}, s{sX}, {512*1280}')
            A(f's_lshl_b32 s{sD}, s{sRU}, 7')
            A(f's_add_u32 s{sC}, s{sC}, s{sD}')

        def m2_off():
            A(f's_mul_i32 s{sC}, s{sGX}, {64*1280}')
            A(f's_lshl_b32 s{sD}, s{sRU}, 7')
            A(f's_add_u32 s{sC}, s{sC}, s{sD}')
            A(f's_lshl_b32 s{sE}, s{sNM1}, 3')
            A(f's_lshl_b32 s{sF}, s{sNM1}, 2')
        l2, l3, l4 = self.nl('D2'), self.nl('D3'), self.nl('D4')
        if o.get('nowt'):
            A(f's_branch {l_small}')
        A(f's_cmp_eq_u32 s{sRT}, 0')
        A(f's_cbranch_scc1 {l_small}')
        A(f's_cmp_eq_u32 s{sRT}, 2')
        A(f's_cbranch_scc1 {l2}')
        A(f's_cmp_eq_u32 s{sRT}, 3')
        A(f's_cbranch_scc1 {l3}')
        A(f's_cmp_eq_u32 s{sRT}, 4')
        A(f's_cbranch_scc1 {l4}')
        dma(P_WQ, 640 * 8192, 8192, q_off, 80, 40)
        self.lab(l2)
        dma(P_WO, 4096 * 1280, 1280, wo_off, 64, 32)
        self.lab(l3)
        dma(P_W1, 640 * 3456, 3456, m1_off, 80, 40)
        self.lab(l4)
        dma(P_W2, 1728 * 1280, 1280, m2_off, (sE,), (sF,))

        self.lab(l_w7)
        for r in range(4):
            A(f'v_mov_b32 v{4+r}, -1')
        A('v_lshlrev_b32 v3, 4, v2')
        lq0 = self.nl('CQ0')
        A(f's_cmp_lg_u32 s{sRT}, 1')
        A(f's_cbranch_scc1 {lq0}')
        A(f's_lshl_b32 s3, s{sX}, 3')
        A(f's_add_u32 s3, s3, s{sRU}')
        A('s_lshl_b32 s3, s3, 10')
        A(f's_add_u32 s3, s3, {MB_Q}')
        A(f'buffer_store_dwordx4 v[4:7], v3, s[{S_WS}:{S_WS+3}], s3 offen sc1')
        self.lab(lq0)
        A('s_mul_i32 s3, s2, 2304')
        A(f'buffer_store_dwordx4 v[4:7], v3, s[{S_WS}:{S_WS+3}], s3 offen sc1')
        A(f'buffer_store_dwordx4 v[4:7], v3, s[{S_WS}:{S_WS+3}], s3 offen offset:1024 sc1')
        A('s_mov_b64 exec, 0xffff')
        A(f'buffer_store_dwordx4 v[4:7], v3, s[{S_WS}:{S_WS+3}], s3 offen offset:2048 sc1')
        A('s_lshl_b32 s3, s2, 8')
        A(f's_add_u32 s3, s3, {LSTRIDE + MB_Q}')
        A(f'buffer_store_dwordx4 v[4:7], v3, s[{S_WS}:{S_WS+3}], s3 offen sc1')
        A('s_mov_b64 exec, -1')
        A(f's_getreg_b32 s{sA}, hwreg(HW_REG_XCC_ID)')
        A(f's_and_b32 s{sA}, s{sA}, 7')
        A(f's_mul_i32 s{sBb}, s{sA}, s{sA}')
        A(f's_lshl_b32 s{sBb}, s{sBb}, 6')
        A(f's_lshl_b32 s{sA}, s{sA}, 17')
        A(f's_or_b32 s{sA}, s{sA}, s{sBb}')
        A(f's_or_b32 s{sA}, s{sA}, {1 << 25}')
        A(f's_lshl_b32 s{sBb}, s{sX}, 2')
        A(f'v_mov_b32 v8, s{sA}')
        A(f'v_mov_b32 v9, s{sBb}')
        A('s_waitcnt vmcnt(0)')
        if o.get('dbgflag') == 1:
            A(f's_memrealtime s[{sTS+14}:{sTS+15}]')
        A('s_mov_b64 exec, 1')
        A(f'buffer_atomic_add v8, v9, s[{S_DBG}:{S_DBG+3}], 0 offen sc1')
        A('s_mov_b64 exec, -1')
        if o.get('dbgflag') == 1:
            A('s_waitcnt vmcnt(0)')
            A(f's_memrealtime s[{sTS+16}:{sTS+17}]')
        for j in range(K0):
            A(f'buffer_load_dwordx4 v[{VK+4*j}:{VK+4*j+3}], v30, s[{S_K}:{S_K+3}], 0 offen offset:{(j >> 1) * 2048 + (j & 1) * 128} nt')

        self.lab(l_small)
        A(f's_mov_b64 s[{S_T0}:{S_T0+1}], s[{P_X}:{P_X+1}]')
        A(f's_mov_b32 s{S_T0+2}, 10240')
        lq, lr4, lm, le = self.nl('SQ'), self.nl('SR'), self.nl('SMM'), self.nl('SEnd')
        A(f's_cmp_eq_u32 s{sRT}, 4')
        A(f's_cbranch_scc1 {lr4}')
        A(f's_cmp_eq_u32 s{sRT}, 3')
        A(f's_cbranch_scc1 {lm}')
        A(f's_cmp_lg_u32 s{sRT}, 1')
        A(f's_cbranch_scc1 {le}')
        A(f's_mul_i32 s{sA}, s{sWAVE}, 1280')
        A('v_lshlrev_b32 v5, 2, v2')
        for i in range(5):
            A(f'buffer_load_dword v{10+i}, v5, s[{S_T0}:{S_T0+3}], s{sA} offen offset:{256*i}')
        A(f's_branch {le}')
        self.lab(lr4)
        A('v_lshrrev_b32 v5, 3, v2')
        A('v_and_b32 v6, 7, v2')
        A(f's_lshl_b32 s{sA}, s{sRU}, 3')
        A(f's_add_u32 s{sA}, s{sA}, s{sWAVE}')
        A(f's_lshl_b32 s{sA}, s{sA}, 4')
        A('v_lshlrev_b32 v6, 1, v6')
        A('v_mul_u32_u24 v5, 1280, v5')
        A('v_add_u32 v5, v5, v6')
        A(f'buffer_load_ushort v{VRES}, v5, s[{S_T0}:{S_T0+3}], s{sA} offen')
        A(f's_mov_b64 s[{S_T1}:{S_T1+1}], s[0:1]')
        A(f's_mov_b32 s{S_T1+2}, 1280')
        A(f'buffer_load_ushort v{VB2}, v6, s[{S_T1}:{S_T1+3}], s{sA} offen')
        A(f's_branch {le}')
        self.lab(lm)
        A(f's_mov_b64 s[{S_T1}:{S_T1+1}], s[{P_B1}:{P_B1+1}]')
        A(f's_mov_b32 s{S_T1+2}, 3456')
        A(f's_add_u32 s{sA}, s{sGX}, s{sRU}')
        A(f's_lshl_b32 s{sA}, s{sA}, 7')
        A('v_lshlrev_b32 v6, 1, v2')
        A(f'buffer_load_ushort v15, v6, s[{S_T1}:{S_T1+3}], s{sA} offen')
        self.lab(le)
        A(f's_mov_b32 s{sONE}, 0x3f803f80')
        A(f's_mov_b32 s{sLO}, 0x00003f80')
        A(f's_mov_b32 s{sHI}, 0x3f800000')

        if not K0:
            self.stream_addr(30, 31, 28, 29)

        def kload(q):
            i, j = q
            val = VK + 16 * i + 4 * j
            ko = (j >> 1) * 2048 + (j & 1) * 128
            A(f'buffer_load_dwordx4 v[{val}:{val+3}], v30, s[{S_K}:{S_K+3}], s{sBLK+i} offen offset:{ko} nt')

        def vlds(q):
            nu, j = q
            imm = (nu & 7) * 256
            A(f's_add_u32 m0, s{sKLA}, {nu*2048 + j*1024 - imm}')
            A('s_nop 0')
            A(f'buffer_load_dwordx4 v31, s[{S_V}:{S_V+3}], s{sBLK + (nu >> 3)*2 + j} offen offset:{imm} nt lds')

        def vreg(q):
            nu, j = q
            r = VV + 8 * (nu - 9) + 4 * j
            A(f'buffer_load_dwordx4 v[{r}:{r+3}], v31, s[{S_V}:{S_V+3}], s{sBLK + (nu >> 3)*2 + j} offen offset:{(nu & 7)*256} nt')

        if o.get('dbgflag') == 2:
            A(f's_memrealtime s[{sTS+16}:{sTS+17}]')
        W = o.get('win', 12)
        N1 = o.get('n1', 12)
        if o.get('pure'):
            N1 = 78
        if o.get('prio') == 2:
            lbq = self.nl('PRI')
            A(f's_cmp_lt_u32 s{sWAVE}, 4')
            A(f's_cbranch_scc1 {lbq}')
            A('s_setprio 1')
            self.lab(lbq)
        if o.get('prio') == 1:
            for pw in range(1, 4):
                lbq = self.nl('PRI')
                A(f's_cmp_lt_u32 s{sWAVE}, {2*pw}')
                A(f's_cbranch_scc1 {lbq}')
                A(f's_setprio {pw}')
                self.lab(lbq)
        seq = [(kload, (i, j)) for i in range(8) for j in range(4)] + [(vlds, (oc, a)) for oc in range(9) for a in range(2)] + \
              [(vreg, (oc, j)) for oc in range(9, 16) for j in range(2)]
        NTOT = len(seq)
        n = K0

        def issue_next(extra=0, nowait=False):
            nonlocal n
            WL = o.get('wl')
            if WL and n >= WL and not nowait:
                lw = self.nl('WL')
                A(f's_cmp_eq_u32 s{sLIGHT}, 0')
                A(f's_cbranch_scc1 {lw}')
                A(f's_waitcnt vmcnt({WL-1+extra})')
                self.lab(lw)
            nt0 = o.get('ntail') or 50
            Wn = W
            if n >= nt0 and o.get('wtail'):
                Wn = min(W + (n - nt0 + 1), o['wtail'])
            if n >= Wn and not nowait:
                A(f's_waitcnt vmcnt({Wn-1+extra})')
            kind, q = seq[n]
            kind(q)
            n += 1
            if o.get('syncat') and n in [int(z) for z in str(o['syncat']).split('0') if False] + [int(str(o['syncat'])[i:i+2]) for i in range(0, len(str(o['syncat'])), 2)]:
                A('s_barrier')
            if o.get('sync') and (n > N1 + o.get('nln', 0) + o.get('n2', 4) or n < N1 - 2) and n % o['sync'] == 0 and n < (o.get('synclim') or NTOT - 2):
                A('s_barrier')
        for _ in range(N1 - K0):
            issue_next(nowait=not o.get('n1win'))
            if n == o.get('nprb', 8):
                lbp = self.nl('PRB')
                A(f's_cmp_lg_u32 s{sWAVE}, 7')
                A(f's_cbranch_scc1 {lbp}')
                A(f's_cmp_lg_u32 s{sRT}, 4')
                A(f's_cbranch_scc1 {lbp}')
                self.probe()
                self.lab(lbp)
        A(f's_waitcnt vmcnt({min(N1, W) if o.get("n1win") else N1 - K0})')
        if o.get('pure'):
            A('s_waitcnt vmcnt(0)')
        A('s_waitcnt lgkmcnt(0)')
        A('s_barrier')
        self.stamp(1)
        if o.get('pure'):
            A('s_branch L_fin')
            seq += seq
        self.lane(2)
        lb_tr = self.nl('TR')
        A(f's_cmp_eq_u32 s{sRT}, 0')
        A(f's_cbranch_scc1 {lb_tr}')
        A(f's_mov_b32 s{sA}, 320')
        A(f's_cmp_eq_u32 s{sRT}, 2')
        A(f's_cselect_b32 s{sA}, 256, s{sA}')
        A(f's_lshl_b32 s{sBb}, s{sNM1}, 5')
        A(f's_cmp_eq_u32 s{sRT}, 4')
        A(f's_cselect_b32 s{sA}, s{sBb}, s{sA}')
        A('v_and_b32 v3, 3, v2')
        A('v_bfe_u32 v4, v2, 2, 2')
        A('v_lshrrev_b32 v5, 4, v2')
        A('v_lshrrev_b32 v6, 1, v3')
        A('v_lshrrev_b32 v7, 1, v4')
        A('v_and_b32 v8, 1, v5')
        A('v_lshl_or_b32 v7, v8, 1, v7')
        A('v_lshl_or_b32 v7, v6, 2, v7')
        A(f'v_xor_b32 v7, s{sWAVE}, v7')
        A(f'v_mul_u32_u24 v6, s{sA}, v6')
        A('v_lshl_add_u32 v6, v5, 3, v6')
        A('v_add_u32 v6, v6, v4')
        A('v_and_b32 v3, 1, v3')
        A('v_lshlrev_b32 v3, 3, v3')
        A('v_lshl_add_u32 v6, v6, 7, v3')
        A('v_lshl_add_u32 v6, v7, 4, v6')
        A(f'v_add_u32 v6, {L_STG}, v6')
        for j in range(10):
            if j == 4:
                A(f's_cmp_eq_u32 s{sRT}, 4')
                A(f's_cbranch_scc1 {lb_tr}')
            if j == 8:
                A(f's_cmp_eq_u32 s{sRT}, 2')
                A(f's_cbranch_scc1 {lb_tr}')
            A(f'ds_read_b64_tr_b16 v[{VW+4*j}:{VW+4*j+1}], v6 offset:{4096*j}')
            A(f'ds_read_b64_tr_b16 v[{VW+4*j+2}:{VW+4*j+3}], v6 offset:{4096*j+512}')
        self.lab(lb_tr)
        A('s_waitcnt lgkmcnt(0)')
        for _ in range(o.get('nln', 0)):
            issue_next()
        l4, l3, le = self.nl('T4'), self.nl('T3'), self.nl('TE')
        A(f's_cmp_eq_u32 s{sRT}, 4')
        A(f's_cbranch_scc1 {l4}')
        A(f's_cmp_eq_u32 s{sRT}, 3')
        A(f's_cbranch_scc1 {l3}')
        A(f's_cmp_lg_u32 s{sRT}, 1')
        A(f's_cbranch_scc1 {le}')
        self.layernorm(10, 16, 0)
        self.lane(2)
        A('v_lshlrev_b32 v2, 2, v2')
        self.ln_stage_write(10, 2)
        A(f's_branch {le}')
        self.lab(l4)
        A(f'v_lshlrev_b32 v{VRES}, 16, v{VRES}')
        A(f'v_lshlrev_b32 v{VB2}, 16, v{VB2}')
        A(f's_branch {le}')
        self.lab(l3)
        A('v_lshlrev_b32 v15, 16, v15')
        A('v_lshlrev_b32 v3, 2, v2')
        A(f'ds_write_b32 v3, v15 offset:{L_B1}')
        self.lab(le)
        A('s_waitcnt lgkmcnt(0)')
        A('s_barrier')
        self.stamp(2)
        for _ in range(o.get('n2', 4)):
            issue_next(nowait=not o.get('n1win'))
        lb = self.nl('Q0')
        A(f's_cmp_lg_u32 s{sRT}, 1')
        A(f's_cbranch_scc1 {lb}')
        self.gemm_pre(320, 1296)
        self.q_addr_pre(0)
        self.gemm(10)
        self.pack4()
        self.lab(lb)
        while n < o.get('nqs', 36):
            issue_next()
        lb = self.nl('Q0s')
        A(f's_cmp_lg_u32 s{sRT}, 1')
        A(f's_cbranch_scc1 {lb}')
        self.mask16()
        A(f'buffer_store_dwordx2 v[4:5], v29, s[{S_WS}:{S_WS+3}], s{sE} offen sc1')
        self.unmask()
        self.lab(lb)
        self.stamp(3)
        NQ = o.get('nq', 44)
        while n < NQ:
            issue_next()
        self.table_wait()
        qls = self.q_loads(29)
        for l in qls:
            A(l)
        for _ in range(8):
            issue_next(4)
        A('s_waitcnt vmcnt(8)')
        lr, ld, lchk = self.nl('QP'), self.nl('QPD'), self.nl('QC')
        A(f's_branch {lchk}')
        self.lab(lr)
        for l in qls:
            A(l)
        A('s_waitcnt vmcnt(0)')
        self.lab(lchk)
        self.sent_test(range(4), 28)
        A('s_cmp_eq_u64 vcc, 0')
        if o.get('stop'):
            A(f's_branch {ld}')
        A(f's_cbranch_scc1 {ld}')
        self.spin_check(lr)
        self.lab(ld)
        self.table_decode()
        self.stamp(4)
        self.lab('L_att')
        self.astamp(1)
        self.qk_part1()
        self.astamp(3)
        lb = self.nl('VR')
        A(f's_cmp_lg_u32 s{sLOFF}, 0')
        A(f's_cbranch_scc1 {lb}')
        self.stamp(5)
        self.stream_addr(30, 31, 28, 29)
        while n < NTOT:
            issue_next()
        self.lab(lb)
        self.softmax_part2()
        self.astamp(5)
        self.pv()
        self.lstamp(6, 9)
        self.astamp(6)
        lpc = self.nl('PCL')
        A(f's_cmp_lg_u32 s{sRT}, 4')
        A(f's_cbranch_scc1 {lpc}')
        A(f's_cmp_lg_u32 s{sLOFF}, 0')
        A(f's_cbranch_scc1 {lpc}')
        for r in range(4):
            A(f'v_mov_b32 v{24+r}, -1')
        A('v_lshlrev_b32 v23, 2, v31')
        A(f's_mul_i32 s3, s{sX}, 10')
        A(f's_add_u32 s3, s3, s{sRU}')
        A('s_lshl_b32 s3, s3, 3')
        A(f's_add_u32 s3, s3, s{sWAVE}')
        A('s_lshl_b32 s3, s3, 11')
        A(f's_add_u32 s3, s3, {MB_P2}')
        A(f'buffer_store_dwordx4 v[24:27], v23, s[{S_WS}:{S_WS+3}], s3 offen sc1')
        A(f'buffer_store_dwordx4 v[24:27], v23, s[{S_WS}:{S_WS+3}], s3 offen offset:1024 sc1')
        A('s_waitcnt vmcnt(0)')
        self.lab(lpc)
        self.o_finish()
        self.astamp(7)
        self.cstamp(10)
        if o.get('stop'):
            A('s_branch L_fin')
        self.chain()
        self.lab('L_fin')
        if self.ts:
            self.stamp(10)
            A('s_waitcnt lgkmcnt(0)')
            lb = self.nl('TSK')
            A(f's_cmp_lg_u32 s{sWAVE}, {o.get("tswave", 0)}')
            A(f's_cbranch_scc1 {lb}')
            A('s_lshl_b32 s3, s2, 7')
            A(f's_add_u32 s3, s3, {TS_OFF}')
            A('v_mov_b32 v1, 0')
            A('s_mov_b64 exec, 1')
            for k in range(11):
                A(f'v_mov_b32 v2, s{sTS+2*k}')
                A(f'v_mov_b32 v3, s{sTS+2*k+1}')
                A(f'buffer_store_dwordx2 v[2:3], v1, s[{S_WS}:{S_WS+3}], s3 offen offset:{8*k}')
                A('s_nop 1')
            A('s_mov_b64 exec, -1')
            self.lab(lb)
        self.lab('L_end')
        A('s_endpgm')
        L.append('.section .rodata,"a"')
        L.append('.p2align 6')
        L.append(f'.amdhsa_kernel {NAME}_kernel')
        for d in ['next_free_vgpr 256', 'next_free_sgpr 102', 'accum_offset 256', 'group_segment_fixed_size 0',
                  'kernarg_size 104', 'user_sgpr_count 2', 'user_sgpr_kernarg_segment_ptr 1',
                  'system_sgpr_workgroup_id_x 1', 'float_denorm_mode_32 3']:
            L.append('  .amdhsa_' + d)
        L.append('.end_amdhsa_kernel')
        return '\n'.join(L) + '\n'

    def reducer(self, which):
        A = self.A
        self.lane(10)
        A('v_lshlrev_b32 v11, 2, v10')
        A(f's_lshl_b32 s{sC}, s{sRU}, 3')
        A(f's_add_u32 s{sC}, s{sC}, s{sWAVE}')
        A(f's_lshl_b32 s{sD}, s{sC}, 8')
        A(f's_add_u32 s{sE}, s{sLOFF}, s{sRHO}')
        A(f's_add_u32 s{sE}, s{sE}, {MB_P1 if which == 1 else MB_P2}')
        for xs in range(8):
            A(f's_add_u32 s{sA}, s{sD}, {xs*20480}')
            A(f's_lshr_b32 s{sBb}, s{sA}, 13')
            A(f's_lshl_b32 s{sBb}, s{sBb}, 14')
            A(f's_and_b32 s{sA}, s{sA}, 8191')
            A(f's_add_u32 s{sA}, s{sA}, s{sBb}')
            A(f's_add_u32 s{sBLK+xs}, s{sA}, s{sE}')
        A('v_and_b32 v16, 7, v10')
        A('v_lshlrev_b32 v16, 1, v16')
        A('v_lshrrev_b32 v17, 3, v10')
        A('v_mul_u32_u24 v17, 1280, v17')
        A('v_add_u32 v17, v17, v16')
        A(f's_mul_i32 s{sE}, s{sX}, 10240')
        A(f's_lshl_b32 s{sBb}, s{sC}, 4')
        A(f's_add_u32 s{sE}, s{sE}, s{sBb}')
        A(f's_add_u32 s{sE}, s{sE}, s{sLOFF}')
        A(f's_add_u32 s{sE}, s{sE}, {MB_X1 if which == 1 else MB_X2}')
        if which == 2:
            lf = self.nl('RF')
            A(f's_cmp_eq_u32 s{sLOFF}, 0')
            A(f's_cbranch_scc1 {lf}')
            A(f's_mul_i32 s{sE}, s{sX}, 1280')
            A(f's_add_u32 s{sE}, s{sE}, s{sBb}')
            A(f's_lshl_b32 s{sA}, s{sX}, 3')
            A(f's_lshl_b64 exec, 0xff, s{sA}')
            self.lab(lf)
        A(f's_mov_b32 s{sM64}, 0x55555555')
        A(f's_mov_b32 s{sM64+1}, 0x55555555')
        loads = [f'buffer_load_dword v{xs}, v11, s[{S_WS}:{S_WS+3}], s{sBLK+xs} offen sc1' for xs in range(8)]
        if which == 2 and self.o.get('rd2d'):
            A(f's_sleep {self.o["rd2d"]}')
        if which == 1 and self.o.get('rd1d') is not None:
            A('v_lshlrev_b32 v12, 4, v10')
            A(f's_lshl_b32 s{sA}, s{sX}, 13')
            A(f's_lshl_b32 s{sBb}, s{sWAVE}, 10')
            A(f's_add_u32 s{sA}, s{sA}, s{sBb}')
            A(f's_add_u32 s{sA}, s{sA}, s{sLOFF}')
            A(f's_add_u32 s{sD}, s{sA}, {MB_O}')
            self.poll([f'buffer_load_dwordx4 v[0:3], v12, s[{S_WS}:{S_WS+3}], s{sD} offen sc1'], range(4))
            A('s_barrier')
            if self.o['rd1d']:
                A(f's_sleep {self.o["rd1d"]}')
        def csum(r):
            A(f'v_add_f32 v8, v{r[0]}, v{r[1]}')
            A(f'v_add_f32 v9, v{r[2]}, v{r[3]}')
            A(f'v_add_f32 v12, v{r[4]}, v{r[5]}')
            A(f'v_add_f32 v13, v{r[6]}, v{r[7]}')
        self.poll2(lambda r: [f'buffer_load_dword v{r[xs]}, v11, s[{S_WS}:{S_WS+3}], s{sBLK+xs} offen sc1' for xs in range(8)],
                   list(range(8)), list(range(20, 28)), csum)
        A('v_add_f32 v8, v8, v9')
        A('v_add_f32 v12, v12, v13')
        A('v_add_f32 v8, v8, v12')
        A('v_cvt_pk_bf16_f32 v8, v8, v8')
        A('v_and_b32 v8, 0xffff0000, v8')
        if which == 2:
            A(f'v_add_f32 v8, v8, v{VB2}')
            A('v_cvt_pk_bf16_f32 v8, v8, v8')
            A('v_and_b32 v8, 0xffff0000, v8')
        A(f'v_add_f32 v8, v8, v{VRES}')
        A('v_cvt_pk_bf16_f32 v8, v8, v8')
        A(f'v_and_b32 v{VRES}, 0xffff0000, v8')
        A('v_and_b32 v9, 0xffff, v8')
        A('s_nop 0')
        A(f'v_or_b32_dpp v9, v{VRES}, v9 quad_perm:[1,1,3,3] row_mask:0xf bank_mask:0xf')
        A(f's_and_b64 exec, exec, s[{sM64}:{sM64+1}]')
        if which == 2:
            lf, le = self.nl('RO'), self.nl('ROE')
            A(f's_cmp_eq_u32 s{sLOFF}, 0')
            A(f's_cbranch_scc1 {lf}')
            A(f'buffer_store_dword v9, v16, s[{S_OUT}:{S_OUT+3}], s{sE} offen')
            A(f's_branch {le}')
            self.lab(lf)
        A('v_min_u32 v9, 0xfffffffe, v9')
        self.store_local(f'buffer_store_dword v9, v17, s[{S_WS}:{S_WS+3}], s{sE} offen')
        if which == 2:
            self.lab(le)
        A('s_mov_b64 exec, -1')
        A('s_waitcnt vmcnt(1)')

    def ln_gather(self, mb, nln):
        A = self.A
        A('v_lshlrev_b32 v30, 2, v24')
        A(f's_mul_i32 s{sD}, s{sX}, 10240')
        A(f's_mul_i32 s{sBb}, s{sWAVE}, 1280')
        A(f's_add_u32 s{sD}, s{sD}, s{sBb}')
        A(f's_add_u32 s{sD}, s{sD}, s{sLOFF}')
        A(f's_add_u32 s{sD}, s{sD}, {mb}')
        loads = [f'buffer_load_dword v{i}, v30, s[{S_WS}:{S_WS+3}], s{sD} offen offset:{256*i} sc1' for i in range(5)]
        self.poll(loads, range(5))
        self.cstamp(4 if nln == 2 else 9)
        if nln == 2:
            self.astamp(8)
        self.layernorm(0, 6, 16, True)
        if nln == 2:
            self.layernorm(0, 6, 16, False)
        self.ln_stage_write(0, 30)

    def chain(self):
        A = self.A
        l_wo, l_m1, l_m2, l_q, l_qp = 'C_wo', 'C_m1', 'C_m2', 'C_q', 'C_qp'
        A(f's_cmp_eq_u32 s{sRT}, 4')
        A(f's_cbranch_scc1 {l_m2}')
        A(f's_cmp_eq_u32 s{sRT}, 3')
        A(f's_cbranch_scc1 {l_m1}')
        A(f's_cmp_eq_u32 s{sRT}, 2')
        A(f's_cbranch_scc1 {l_wo}')
        A(f's_cmp_lg_u32 s{sLOFF}, 0')
        A('s_cbranch_scc1 L_fin')
        A(f's_cmp_eq_u32 s{sRT}, 1')
        A(f's_cbranch_scc1 {l_q}')
        A(f's_branch {l_qp}')
        self.lab(l_wo)
        self.gemm_pre(256, 1040)
        self.p_addr_pre(MB_P1)
        A('v_lshlrev_b32 v30, 4, v24')
        A(f's_lshl_b32 s{sA}, s{sX}, 13')
        A(f's_lshl_b32 s{sBb}, s{sWAVE}, 10')
        A(f's_add_u32 s{sA}, s{sA}, s{sBb}')
        A(f's_add_u32 s{sA}, s{sA}, s{sLOFF}')
        A(f's_add_u32 s{sD}, s{sA}, {MB_O}')
        A(f's_mul_i32 s{sA}, s{sWAVE}, 1040')
        A(f'v_add_u32 v28, s{sA}, v30')
        self.poll2(lambda r: [f'buffer_load_dwordx4 v[{r[0]}:{r[3]}], v30, s[{S_WS}:{S_WS+3}], s{sD} offen sc1'], [0, 1, 2, 3], [4, 5, 6, 7],
                   lambda r: A(f'ds_write_b128 v28, v[{r[0]}:{r[3]}] offset:{L_STAGE}'))
        self.cstamp(1)
        A('s_waitcnt lgkmcnt(0)')
        A('s_barrier')
        A('s_waitcnt vmcnt(0)')
        self.gemm(8)
        self.p_store()
        self.cstamp(2)
        A(f's_cmp_lg_u32 s{sLOFF}, 0')
        A('s_cbranch_scc1 L_fin')
        A(f's_branch {l_qp}')
        self.lab(l_m1)
        self.gemm_pre(320, 1296)
        A(f's_lshl_b32 s{sA}, s{sX}, 12')
        A(f's_lshl_b32 s{sBb}, s{sRU}, 3')
        A(f's_add_u32 s{sBb}, s{sBb}, s{sWAVE}')
        A(f's_lshl_b32 s{sBb}, s{sBb}, 7')
        A(f's_add_u32 s{sA}, s{sA}, s{sBb}')
        A(f's_add_u32 s{sA}, s{sA}, s{sLOFF}')
        A(f's_add_u32 s{sE}, s{sA}, {MB_H}')
        A('v_lshlrev_b32 v29, 4, v25')
        A('v_lshl_add_u32 v29, v26, 3, v29')
        A('v_and_b32 v28, 1, v26')
        A('v_lshlrev_b32 v28, 4, v28')
        A(f's_lshl_b32 s{sA}, s{sWAVE}, 5')
        A(f'v_add_u32 v28, s{sA}, v28')
        self.ln_gather(MB_X1, 2)
        self.astamp(9)
        A(f'ds_read_b128 v[20:23], v28 offset:{L_B1}')
        A('s_waitcnt lgkmcnt(0)')
        A('s_barrier')
        self.gemm(10, NT=4)
        self.astamp(10)
        A('v_cvt_pk_bf16_f32 v4, v0, v1')
        A('v_cvt_pk_bf16_f32 v5, v2, v3')
        A('v_lshlrev_b32 v0, 16, v4')
        A('v_and_b32 v1, 0xffff0000, v4')
        A('v_lshlrev_b32 v2, 16, v5')
        A('v_and_b32 v3, 0xffff0000, v5')
        for r in range(4):
            A(f'v_add_f32 v{r}, v{r}, v{20+r}')
        A('v_cvt_pk_bf16_f32 v4, v0, v1')
        A('v_cvt_pk_bf16_f32 v5, v2, v3')
        A('v_lshlrev_b32 v0, 16, v4')
        A('v_and_b32 v1, 0xffff0000, v4')
        A('v_lshlrev_b32 v2, 16, v5')
        A('v_and_b32 v3, 0xffff0000, v5')
        c1 = 2.0 * math.sqrt(2.0 / math.pi) * math.log2(math.e)
        c2 = c1 * 0.044715
        A(f'v_mov_b32 v12, 0x{f2u(c2):08x}')
        A(f'v_mov_b32 v13, 0x{f2u(c1):08x}')
        for r in range(4):
            A(f'v_mul_f32 v{4+r}, v{r}, v{r}')
        for r in range(4):
            A(f'v_fma_f32 v{4+r}, v{4+r}, v12, v13')
        for r in range(4):
            A(f'v_mul_f32 v{4+r}, v{4+r}, v{r}')
        for r in range(4):
            A(f'v_exp_f32 v{4+r}, -v{4+r}')
        A('s_nop 0')
        for r in range(4):
            A(f'v_add_f32 v{4+r}, 1.0, v{4+r}')
        for r in range(4):
            A(f'v_rcp_f32 v{4+r}, v{4+r}')
        A('s_nop 0')
        for r in range(4):
            A(f'v_mul_f32 v{r}, v{r}, v{4+r}')
        self.pack4()
        self.mask16()
        self.store_local(f'buffer_store_dwordx2 v[4:5], v29, s[{S_WS}:{S_WS+3}], s{sE} offen')
        self.unmask()
        self.cstamp(5)
        A(f's_cmp_lg_u32 s{sLOFF}, 0')
        A('s_cbranch_scc1 L_fin')
        A(f's_branch {l_qp}')
        self.lab(l_m2)
        self.reducer(1)
        self.cstamp(3)
        self.lane(24)
        A('v_and_b32 v25, 15, v24')
        A('v_lshrrev_b32 v26, 4, v24')
        A('v_and_b32 v27, 7, v25')
        A('v_lshrrev_b32 v28, 3, v25')
        A('v_mul_u32_u24 v27, 528, v27')
        A('v_lshl_add_u32 v27, v26, 4, v27')
        A(f's_lshl_b32 s{sA}, s{sNM1}, 6')
        A(f'v_mul_u32_u24 v28, s{sA}, v28')
        A('v_add_u32 v27, v27, v28')
        self.p_addr_pre(MB_P2)
        A('v_lshlrev_b32 v30, 3, v24')
        A('v_bfe_u32 v28, v24, 1, 3')
        A('v_mul_u32_u24 v28, 528, v28')
        A('v_lshl_add_u32 v28, v26, 4, v28')
        A('v_and_b32 v23, 1, v24')
        A('v_lshl_add_u32 v28, v23, 3, v28')
        A(f's_lshl_b32 s{sA}, s{sWAVE}, 6')
        A(f'v_add_u32 v28, s{sA}, v28')
        A(f's_lshl_b32 s{sA}, s{sX}, 12')
        A(f's_lshl_b32 s{sBb}, s{sWAVE}, 9')
        A(f's_add_u32 s{sA}, s{sA}, s{sBb}')
        A(f's_add_u32 s{sA}, s{sA}, s{sLOFF}')
        A(f's_add_u32 s{sD}, s{sA}, {MB_H}')
        lsk = self.nl('M2s')
        A(f's_lshl_b32 s{sA}, s{sNM1}, 1')
        A(f's_cmp_ge_u32 s{sWAVE}, s{sA}')
        A(f's_cbranch_scc1 {lsk}')
        self.poll2(lambda r: [f'buffer_load_dwordx2 v[{r[0]}:{r[1]}], v30, s[{S_WS}:{S_WS+3}], s{sD} offen sc1'], [0, 1], [2, 3],
                   lambda r: A(f'ds_write_b64 v28, v[{r[0]}:{r[1]}] offset:{L_STAGE}'))
        self.cstamp(6)
        A('s_waitcnt lgkmcnt(0)')
        self.lab(lsk)
        A('s_barrier')
        for j in range(4):
            A(f'ds_read_b128 v[{4+4*j}:{7+4*j}], v27 offset:{L_STAGE + 64*j}')
        A('s_waitcnt vmcnt(0)')
        lc = self.nl('M2c')
        for j in range(4):
            if j == 3:
                A(f's_cmp_eq_u32 s{sNM1}, 3')
                A(f's_cbranch_scc1 {lc}')
            A(f's_waitcnt lgkmcnt({3-j})')
            c = '0' if j == 0 else 'v[0:3]'
            A(f'v_mfma_f32_16x16x32_bf16 v[0:3], v[{VW+4*j}:{VW+4*j+3}], v[{4+4*j}:{7+4*j}], {c}')
        self.lab(lc)
        A('s_waitcnt lgkmcnt(0)')
        self.combine()
        self.p_store()
        self.cstamp(7)
        self.reducer(2)
        self.cstamp(8)
        A(f's_cmp_lg_u32 s{sLOFF}, 0')
        A('s_cbranch_scc1 L_fin')
        A(f's_branch {l_qp}')
        self.lab(l_q)
        self.gemm_pre(320, 1296)
        self.q_addr_pre(LSTRIDE)
        self.ln_gather(MB_X2, 1)
        A('s_barrier')
        self.gemm(10)
        self.pack4()
        self.mask16()
        self.store_local(f'buffer_store_dwordx2 v[4:5], v29, s[{S_WS}:{S_WS+3}], s{sE} offen')
        self.unmask()
        self.stamp(7)
        self.lab(l_qp)
        A(f's_mov_b32 s{sLOFF}, {LSTRIDE}')
        self.lane(30)
        lq = self.nl('QW')
        A(f's_cmp_lg_u32 s{sWAVE}, 0')
        A(f's_cbranch_scc1 {lq}')
        A('v_lshlrev_b32 v29, 7, v30')
        A('v_lshlrev_b32 v28, 4, v30')
        A(f's_lshl_b32 s{sA}, s{sH}, 11')
        A(f's_lshl_b32 s{sBb}, s{sB}, 4')
        A(f's_add_u32 s{sA}, s{sA}, s{sBb}')
        A(f's_add_u32 s{sD}, s{sA}, {MB_Q + LSTRIDE}')
        A('s_mov_b64 exec, 0xffff')
        self.poll2(lambda r: [f'buffer_load_dwordx4 v[{r[0]}:{r[3]}], v29, s[{S_WS}:{S_WS+3}], s{sD} offen sc1'], [16, 17, 18, 19], [20, 21, 22, 23],
                   lambda r: A(f'ds_write_b128 v28, v[{r[0]}:{r[3]}] offset:{L_QB}'))
        A('s_mov_b64 exec, -1')
        A('s_waitcnt lgkmcnt(0)')
        self.lab(lq)
        self.q_lane_chunk(30, 27, 26)
        A('v_lshl_add_u32 v30, v30, 4, v27')
        A(f'v_add_u32 v30, {L_QB}, v30')
        A('s_barrier')
        A('ds_read2_b32 v[0:1], v30 offset0:0 offset1:2')
        A('ds_read2_b32 v[2:3], v30 offset0:4 offset1:6')
        A('s_waitcnt vmcnt(0)')
        self.stamp(8)
        A('s_branch L_att')


if __name__ == '__main__':
    ap = argparse.ArgumentParser()
    ap.add_argument('-o', default='cdna_kernels/' + NAME + '.s')
    ap.add_argument('--ts', action='store_true')
    ap.add_argument('--slow', action='store_true')
    for k, d in (('win', 12), ('n1', 12), ('n2', 4), ('nq', 44), ('tswave', 0), ('cmode', None), ('forcepar', None), ('nprobe', 2), ('sync', 0), ('n1win', 0), ('nln', 0), ('stop', 0), ('noclear', 0), ('nowt', 0), ('notable', 0), ('nqs', 36), ('nprb', 8), ('pure', 0), ('prio', 0), ('wl', 0), ('clr4', 0), ('amode', 0), ('rd2', 0), ('wtail', 0), ('synclim', 0), ('cpol', 0), ('syncat', 0), ('ntail', 0), ('k128', 0), ('dbgflag', 0), ('rd2d', 0), ('rd1d', None), ('k0', 0), ('jitter', 0), ('p2', 0)):
        ap.add_argument('--' + k, type=int, default=d)
    a = ap.parse_args()
    o = vars(a).copy()
    out = o.pop('o')
    open(out, 'w').write(G(**o).build())
```

```python
import sys, argparse, struct, math
NAME = 'interleave_layers__sliding_block_cached__mixer_channel_mlp__decode'
HEADER = open('cdna_kernels/' + NAME + '.s.ref').read().split('; Override launch')[0]

LSTRIDE = 0xF0000
MB_P1 = 0x00000
MB_P2 = 0xA0000
MB_Q = 0x90000
MB_O = 0x50000
MB_X1 = 0x60000
MB_X2 = 0x74000
MB_H = 0x88000
WIN_BYTES = 0x200000
TS_OFF = 0x800000

L_STAGE = 0
L_OP = 10368
L_B1 = 14464
L_XCH = 14720
L_QB = 14848
L_V = 16384
L_STG = 81920
LDS_BYTES = 163840

VK = 32
VV = 160
VW = 216
VRES, VB2 = 248, 249

S_K, S_V, S_WS, S_DBG, S_OUT, S_T0, S_T1 = 16, 20, 24, 28, 32, 36, 40
sX, sS, sH, sB, sWAVE = 44, 45, 46, 47, 48
sRT, sRU = 49, 50
sFAST, sLOFF, sSPIN = 51, 52, 53
sRHO = 54
sNM1 = 55
sA, sBb, sC, sD = 56, 57, 58, 59
sM64, sM64b = 60, 62
sGX = 64
sMW = 65
sBLK = 66
sKLA, sKLB = 74, 75
sE, sF = 76, 77
sLIGHT = 100
sTS = 78
P_X, P_WQ, P_WO, P_W1, P_B1, P_W2 = 4, 6, 8, 10, 12, 14
sONE, sLO, sHI = 4, 5, 6
SPIN_MAX = 400000
f2u = lambda f: struct.unpack('<I', struct.pack('<f', f))[0]


class G:
    vtmp = 31

    def __init__(self, **o):
        self.L = []
        self.o = o
        self.ts = o.get('ts')
        self.nlab = 0

    def A(self, s):
        j = self.o.get('jitter')
        if j and not getattr(self, '_inj', False) and (s.startswith('s_barrier') or s.startswith('buffer_store') or s.startswith('ds_write') or s.startswith('buffer_atomic')):
            self._inj = True
            self.jit()
            self._inj = False
        self.L.append('  ' + s)
        if j and not getattr(self, '_inj', False) and s.startswith('s_barrier'):
            self._inj = True
            self.jit()
            self._inj = False

    def jit(self):
        lb = self.nl('JT')
        L = self.L
        L.append('  s_cselect_b32 s98, 1, 0')
        L.append('  s_memtime s[96:97]')
        L.append('  s_waitcnt lgkmcnt(0)')
        L.append('  s_lshr_b32 s96, s96, 4')
        L.append('  s_and_b32 s96, s96, 7')
        L.append('  s_cmp_lg_u32 s96, 0')
        L.append(f'  s_cbranch_scc1 {lb}')
        L.append(f'  s_sleep {self.o["jitter"]}')
        L.append(lb + ':')
        L.append('  s_cmp_lg_u32 s98, 0')

    def lab(self, name):
        self.L.append(name + ':')

    def nl(self, p='L'):
        self.nlab += 1
        return f'{p}_{self.nlab}'

    def stamp(self, k):
        if self.o.get('dbgflag') and k in (7, 8):
            return
        if self.ts and (self.o.get('cmode') is None or k == 0):
            self.A(f's_memrealtime s[{sTS+2*k}:{sTS+2*k+1}]')

    def lstamp(self, k0, k1):
        if self.ts and self.o.get('cmode') is None:
            l1, l2 = self.nl('LS'), self.nl('LS')
            self.A(f's_cmp_lg_u32 s{sLOFF}, 0')
            self.A(f's_cbranch_scc1 {l1}')
            self.stamp(k0)
            self.A(f's_branch {l2}')
            self.lab(l1)
            self.stamp(k1)
            self.lab(l2)

    def astamp(self, k):
        if self.o.get('amode'):
            self.cstamp(k, True)

    def cstamp(self, k, am=False):
        cm = self.o.get('cmode')
        if self.ts and cm is not None and bool(self.o.get('amode')) == am:
            lb = self.nl('CS')
            self.A(f's_cmp_lg_u32 s{sLOFF}, {cm * LSTRIDE}')
            self.A(f's_cbranch_scc1 {lb}')
            self.A(f's_memrealtime s[{sTS+2*k}:{sTS+2*k+1}]')
            self.lab(lb)

    def lane(self, v):
        self.A(f'v_mbcnt_lo_u32_b32 v{v}, -1, 0')
        self.A(f'v_mbcnt_hi_u32_b32 v{v}, -1, v{v}')

    @staticmethod
    def kplace():
        pl = {}
        n = r = 0
        for i in range(8):
            nl = 3 if i < 2 else 2
            for j in range(4):
                if j < nl:
                    pl[(i, j)] = ('L', n)
                    n += 1
                else:
                    pl[(i, j)] = ('R', VK + 4 * r)
                    r += 1
        assert n == 18 and r == 14
        return pl

    def spin_check(self, lab_retry):
        self.A(f's_add_u32 s{sSPIN}, s{sSPIN}, 1')
        self.A(f's_cmp_lt_u32 s{sSPIN}, {SPIN_MAX}')
        self.A(f's_cbranch_scc1 {lab_retry}')

    def sent_test(self, regs, t):
        A = self.A
        regs = list(regs)
        if len(regs) == 1:
            A(f'v_cmp_eq_u32 vcc, -1, v{regs[0]}')
            return
        if len(regs) == 2:
            A(f'v_max_u32 v{t}, v{regs[0]}, v{regs[1]}')
            rest = []
        else:
            A(f'v_max3_u32 v{t}, v{regs[0]}, v{regs[1]}, v{regs[2]}')
            rest = regs[3:]
        while rest:
            if len(rest) >= 2:
                A(f'v_max3_u32 v{t}, v{t}, v{rest[0]}, v{rest[1]}')
                rest = rest[2:]
            else:
                A(f'v_max_u32 v{t}, v{t}, v{rest[0]}')
                rest = rest[1:]
        A(f'v_cmp_eq_u32 vcc, -1, v{t}')

    def poll(self, loads, regs):
        A = self.A
        lr, ld = self.nl('P'), self.nl('PD')
        self.lab(lr)
        for l in loads:
            A(l)
        A('s_waitcnt vmcnt(0)')
        self.sent_test(regs, self.vtmp)
        A('s_cmp_eq_u64 vcc, 0')
        A(f's_cbranch_scc1 {ld}')
        sl = getattr(self, '_psl', None)
        if sl is None:
            sl = self.o.get('psl')
        if sl:
            A(f's_sleep {sl}')
        self.spin_check(lr)
        self.lab(ld)

    def poll2(self, mk, regsA, regsB, consume):
        A = self.A
        if not self.o.get('p2'):
            self.poll(mk(regsA), regsA)
            consume(regsA)
            return
        n = len(mk(regsA))
        lr, la, lb, le = self.nl('PP'), self.nl('PA'), self.nl('PB'), self.nl('PE')
        for l in mk(regsA):
            A(l)
        A('s_nop 15')
        A('s_nop 7')
        self.lab(lr)
        for l in mk(regsB):
            A(l)
        A(f's_waitcnt vmcnt({n})')
        self.sent_test(regsA, self.vtmp)
        A('s_cmp_eq_u64 vcc, 0')
        A(f's_cbranch_scc1 {la}')
        for l in mk(regsA):
            A(l)
        A(f's_waitcnt vmcnt({n})')
        self.sent_test(regsB, self.vtmp)
        A('s_cmp_eq_u64 vcc, 0')
        A(f's_cbranch_scc1 {lb}')
        self.spin_check(lr)
        self.lab(lb)
        consume(regsB)
        A(f's_branch {le}')
        self.lab(la)
        consume(regsA)
        self.lab(le)

    def store_local(self, ins):
        A = self.A
        l1, l2 = self.nl('SL'), self.nl('SE')
        A(f's_cmp_eq_u32 s{sFAST}, 0')
        A(f's_cbranch_scc1 {l1}')
        A(ins)
        A(f's_branch {l2}')
        self.lab(l1)
        A(ins + ' sc1')
        self.lab(l2)

    def wave_reduce(self, items):
        A = self.A
        steps = ['row_shr:1', 'row_shr:2', 'row_shr:4', 'row_shr:8', 'row_bcast:15 row_mask:0xa', 'row_bcast:31 row_mask:0xc']
        for st in steps:
            pad = 2 - (len(items) - 1)
            if pad > 0:
                A(f's_nop {pad-1}')
            for (r, op) in items:
                m = st if 'row_mask' in st else st + ' row_mask:0xf'
                A(f'{op}_dpp v{r}, v{r}, v{r} {m} bank_mask:0xf')
        A('s_nop 1')

    def mask16(self):
        self.A('s_mov_b32 exec_lo, 0x00ff00ff')
        self.A('s_mov_b32 exec_hi, 0')

    def unmask(self):
        self.A('s_mov_b64 exec, -1')

    def layernorm(self, pk, f, t, shifted=True):
        A = self.A
        s1, s2, d0 = t, t + 2, t + 4
        if shifted:
            A(f'v_readfirstlane_b32 s{sA}, v{pk}')
            A(f's_lshl_b32 s{sA}, s{sA}, 16')
            A(f's_xor_b32 s{sBb}, s{sA}, 0x80000000')
            A(f'v_mov_b32 v{d0}, s{sBb}')
            for i in range(5):
                A(f'v_dot2_f32_bf16 v{f+2*i}, v{pk+i}, s{sLO}, v{d0}')
                A(f'v_dot2_f32_bf16 v{f+2*i+1}, v{pk+i}, s{sHI}, v{d0}')
            A(f'v_pk_add_f32 v[{s1}:{s1+1}], v[{f}:{f+1}], v[{f+2}:{f+3}]')
            A(f'v_pk_mul_f32 v[{s2}:{s2+1}], v[{f}:{f+1}], v[{f}:{f+1}]')
            for i in range(1, 5):
                if i >= 2:
                    A(f'v_pk_add_f32 v[{s1}:{s1+1}], v[{f+2*i}:{f+2*i+1}], v[{s1}:{s1+1}]')
                A(f'v_pk_fma_f32 v[{s2}:{s2+1}], v[{f+2*i}:{f+2*i+1}], v[{f+2*i}:{f+2*i+1}], v[{s2}:{s2+1}]')
            A(f'v_add_f32 v{s1}, v{s1}, v{s1+1}')
            A(f'v_add_f32 v{s2}, v{s2}, v{s2+1}')
        else:
            for i in range(5):
                c1 = '0' if i == 0 else f'v{s1}'
                c2 = '0' if i == 0 else f'v{s2}'
                A(f'v_dot2_f32_bf16 v{s1}, v{pk+i}, s{sONE}, {c1}')
                A(f'v_dot2_f32_bf16 v{s2}, v{pk+i}, v{pk+i}, {c2}')
            A('s_nop 1')
        self.wave_reduce([(s1, 'v_add_f32'), (s2, 'v_add_f32')])
        A(f'v_readlane_b32 s{sBb}, v{s1}, 63')
        A(f'v_readlane_b32 s{sC}, v{s2}, 63')
        A(f'v_mov_b32 v{d0}, 0x3acccccd')
        A('s_nop 0')
        A(f'v_mul_f32 v{s1}, s{sBb}, v{d0}')
        A(f'v_mul_f32 v{s2}, s{sC}, v{d0}')
        A(f'v_fma_f32 v{s2}, -v{s1}, v{s1}, v{s2}')
        if shifted:
            A(f'v_add_f32 v{s1}, s{sA}, v{s1}')
        A(f'v_max_f32 v{s2}, 0, v{s2}')
        A(f'v_cvt_pk_bf16_f32 v{d0}, v{s1}, v{s2}')
        A(f'v_and_b32 v{s2}, 0xffff0000, v{d0}')
        A(f'v_add_f32 v{s2}, 0x37280000, v{s2}')
        A(f'v_lshlrev_b32 v{s1}, 16, v{d0}')
        A(f'v_cvt_pk_bf16_f32 v{s2}, v{s2}, v{s2}')
        A(f'v_and_b32 v{s2}, 0xffff0000, v{s2}')
        A(f'v_sqrt_f32 v{s2}, v{s2}')
        if shifted:
            A(f'v_sub_f32 v{s1}, s{sA}, v{s1}')
        else:
            A(f'v_sub_f32 v{s1}, 0, v{s1}')
        A(f'v_cvt_pk_bf16_f32 v{s2}, v{s2}, v{s2}')
        A(f'v_and_b32 v{s2}, 0xffff0000, v{s2}')
        A(f'v_rcp_f32 v{s2}, v{s2}')
        if shifted:
            for i in range(5):
                A(f'v_pk_add_f32 v[{f+2*i}:{f+2*i+1}], v[{f+2*i}:{f+2*i+1}], v[{s1}:{s1+1}] op_sel_hi:[1,0]')
        else:
            for i in range(5):
                A(f'v_dot2_f32_bf16 v{f+2*i}, v{pk+i}, s{sLO}, v{s1}')
                A(f'v_dot2_f32_bf16 v{f+2*i+1}, v{pk+i}, s{sHI}, v{s1}')
        for i in range(5):
            A(f'v_cvt_pk_bf16_f32 v{pk+i}, v{f+2*i}, v{f+2*i+1}')
        for i in range(5):
            A(f'v_lshlrev_b32 v{f+2*i}, 16, v{pk+i}')
            A(f'v_and_b32 v{f+2*i+1}, 0xffff0000, v{pk+i}')
        for i in range(5):
            A(f'v_pk_mul_f32 v[{f+2*i}:{f+2*i+1}], v[{f+2*i}:{f+2*i+1}], v[{s2}:{s2+1}] op_sel_hi:[1,0]')
        for i in range(5):
            A(f'v_cvt_pk_bf16_f32 v{pk+i}, v{f+2*i}, v{f+2*i+1}')

    def ln_stage_write(self, pk, va4):
        A = self.A
        A(f's_mul_i32 s{sA}, s{sWAVE}, 1296')
        A(f'v_add_u32 v{va4}, s{sA}, v{va4}')
        for i in range(5):
            A(f'ds_write_b32 v{va4}, v{pk+i} offset:{L_STAGE + 256*i}')
        A('s_waitcnt lgkmcnt(0)')

    def gemm_pre(self, Kh, RS):
        A = self.A
        self.lane(24)
        A('v_and_b32 v25, 15, v24')
        A('v_lshrrev_b32 v26, 4, v24')
        A('v_and_b32 v27, 7, v25')
        A('v_lshrrev_b32 v28, 3, v25')
        A(f'v_mul_u32_u24 v27, {RS}, v27')
        A(f'v_mul_u32_u24 v28, {Kh*2}, v28')
        A('v_lshl_add_u32 v27, v26, 4, v27')
        A('v_add_u32 v27, v27, v28')

    def gemm(self, S, NT=5):
        A = self.A
        T = [4 + 4 * k for k in range(NT)]
        for j in range(min(NT, S)):
            A(f'ds_read_b128 v[{T[j]}:{T[j]+3}], v27 offset:{L_STAGE + 64*j}')
        for j in range(S):
            issued = min(S, j + NT)
            A(f's_waitcnt lgkmcnt({issued - j - 1})')
            c = '0' if j == 0 else 'v[0:3]'
            A(f'v_mfma_f32_16x16x32_bf16 v[0:3], v[{VW+4*j}:{VW+4*j+3}], v[{T[j%NT]}:{T[j%NT]+3}], {c}')
            if j + NT < S:
                A(f'ds_read_b128 v[{T[j%NT]}:{T[j%NT]+3}], v27 offset:{L_STAGE + 64*(j+NT)}')
        self.combine()

    def combine(self):
        A = self.A
        A('s_nop 7')
        A('s_nop 0')
        for r in range(4):
            A(f'v_mov_b32_dpp v{4+r}, v{r} row_ror:8 row_mask:0xf bank_mask:0xf')
        A('s_nop 0')
        for r in range(4):
            A(f'v_permlane32_swap_b32 v{4+r}, v{8+r}')
        A('s_nop 0')
        for r in range(4):
            A(f'v_add_f32 v{r}, v{r}, v{8+r}')

    def p_addr_pre(self, mb):
        A = self.A
        A(f's_mul_i32 s{sA}, s{sX}, 20480')
        A(f's_lshl_b32 s{sBb}, s{sRU}, 3')
        A(f's_add_u32 s{sBb}, s{sBb}, s{sWAVE}')
        A(f's_lshl_b32 s{sBb}, s{sBb}, 8')
        A(f's_add_u32 s{sA}, s{sA}, s{sBb}')
        A(f's_lshr_b32 s{sBb}, s{sA}, 13')
        A(f's_lshl_b32 s{sBb}, s{sBb}, 14')
        A(f's_and_b32 s{sA}, s{sA}, 8191')
        A(f's_add_u32 s{sA}, s{sA}, s{sBb}')
        A(f's_add_u32 s{sA}, s{sA}, s{sLOFF}')
        A(f's_add_u32 s{sA}, s{sA}, {mb}')
        A(f's_add_u32 s{sF}, s{sA}, s{sRHO}')
        A(f's_xor_b32 s{sE}, s{sF}, 8192')
        A('v_lshlrev_b32 v29, 5, v25')
        A('v_lshl_add_u32 v29, v26, 4, v29')

    def p_store(self):
        A = self.A
        for r in range(4):
            A(f'v_min_u32 v{r}, 0xfffffffe, v{r}')
        self.mask16()
        A(f'buffer_store_dwordx4 v[0:3], v29, s[{S_WS}:{S_WS+3}], s{sE} offen sc1')
        A(f'buffer_store_dwordx4 v[0:3], v29, s[{S_WS}:{S_WS+3}], s{sF} offen sc1')
        self.unmask()

    def q_addr_pre(self, loff):
        A = self.A
        A(f's_lshl_b32 s{sA}, s{sX}, 6')
        A(f's_lshl_b32 s{sBb}, s{sRU}, 3')
        A(f's_add_u32 s{sA}, s{sA}, s{sBb}')
        A(f's_add_u32 s{sA}, s{sA}, s{sWAVE}')
        A(f's_lshl_b32 s{sA}, s{sA}, 7')
        A(f's_add_u32 s{sE}, s{sA}, {MB_Q + loff}')
        A('v_lshlrev_b32 v29, 4, v25')
        A('v_lshl_add_u32 v29, v26, 3, v29')

    def pack4(self):
        A = self.A
        A('v_cvt_pk_bf16_f32 v4, v0, v1')
        A('v_cvt_pk_bf16_f32 v5, v2, v3')
        A('v_min_u32 v4, 0xfffffffe, v4')
        A('v_min_u32 v5, 0xfffffffe, v5')

    def q_lane_chunk(self, vc, vp, tmp):
        A = self.A
        self.lane(tmp)
        A(f'v_lshrrev_b32 v{vc}, 5, v{tmp}')
        A(f'v_lshlrev_b32 v{vc}, 3, v{vc}')
        A(f'v_bfe_u32 v{vp}, v{tmp}, 1, 1')
        A(f'v_lshl_add_u32 v{vc}, v{vp}, 2, v{vc}')
        A(f'v_bfe_u32 v{vp}, v{tmp}, 4, 1')
        A(f'v_lshl_add_u32 v{vc}, v{vp}, 1, v{vc}')
        A(f'v_and_b32 v{vp}, 1, v{tmp}')
        A(f'v_lshlrev_b32 v{vp}, 2, v{vp}')

    def q_loads(self, va):
        A = self.A
        self.q_lane_chunk(va, 27, 26)
        A(f'v_lshl_add_u32 v{va}, v{va}, 7, v27')
        A(f's_lshl_b32 s{sA}, s{sH}, 11')
        A(f's_lshl_b32 s{sBb}, s{sB}, 4')
        A(f's_add_u32 s{sA}, s{sA}, s{sBb}')
        A(f's_add_u32 s{sA}, s{sA}, s{sLOFF}')
        A(f's_add_u32 s{sD}, s{sA}, {MB_Q}')
        return [f'buffer_load_dword v{j}, v{va}, s[{S_WS}:{S_WS+3}], s{sD} offen offset:{128*(j >> 1) + 8*(j & 1)} sc1' for j in range(4)]

    def qk_part1(self):
        A = self.A
        C0, C1 = 28, 29
        self.lane(24)
        for r in range(8):
            A(f'v_mov_b32 v{16+r}, 0')
        A('v_and_b32 v24, 1, v24')
        A('v_mul_u32_u24 v24, 0xaaaa, v24')
        A('v_add_u32 v24, 0x4444, v24')
        A(f's_mov_b32 s{sM64}, 0x000f000f')
        A(f's_mov_b32 s{sM64+1}, 0x000f000f')
        A('s_waitcnt lgkmcnt(0)')
        for sl in (3, 2, 1, 0):
            A(f's_lshl_b64 s[{sM64b}:{sM64b+1}], s[{sM64}:{sM64+1}], {4*sl}')
            for d in range(4):
                A(f'v_cndmask_b32 v{4*sl+d}, 0, v{d}, s[{sM64b}:{sM64b+1}]')
        A(f's_mov_b32 s{sM64}, 0xff00ff00')
        A(f's_mov_b32 s{sM64+1}, 0xff00ff00')
        for half in range(2):
            for sl in (3, 2, 1, 0):
                for st in range(2):
                    i = 4 * (2 * half + st) + sl
                    k = VK + 8 * i
                    d = 16 + 4 * st
                    A(f'v_smfmac_f32_16x16x64_bf16 v[{d}:{d+3}], v[{4*sl}:{4*sl+3}], v[{k}:{k+7}], v24')
            A('s_nop 7')
            for st in range(2):
                d = 16 + 4 * st
                A(f'v_add_f32 v{d}, v{d}, v{d+1}')
                A(f'v_add_f32 v{d+2}, v{d+2}, v{d+3}')
            for st in range(2):
                d = 16 + 4 * st
                A(f'v_cndmask_b32 v{25 + st if half == 0 else d}, v{d}, v{d+2}, s[{sM64}:{sM64+1}]')
            if half == 0:
                for r in range(8):
                    A(f'v_mov_b32 v{16+r}, 0')
                A('s_nop 0')
        A('s_nop 0')
        for x in (25, 26, 16, 20):
            A(f'v_add_f32_dpp v{x}, v{x}, v{x} row_ror:8 row_mask:0xf bank_mask:0xf')
        A(f'v_cndmask_b32 v{C0}, v25, v26, s[{sM64}:{sM64+1}]')
        A(f'v_cndmask_b32 v{C1}, v16, v20, s[{sM64}:{sM64+1}]')
        self.astamp(2)
        a0, a1, t0, m = 2, 3, 4, 5
        A(f'v_cvt_pk_bf16_f32 v{t0}, v{C0}, v{C1}')
        A(f'v_lshlrev_b32 v{a0}, 16, v{t0}')
        A(f'v_and_b32 v{a1}, 0xffff0000, v{t0}')
        A(f'v_mul_f32 v{a0}, 0x3db504f3, v{a0}')
        A(f'v_mul_f32 v{a1}, 0x3db504f3, v{a1}')
        A(f'v_cvt_pk_bf16_f32 v{t0}, v{a0}, v{a1}')
        A(f'v_lshlrev_b32 v{a0}, 16, v{t0}')
        A(f'v_and_b32 v{a1}, 0xffff0000, v{t0}')
        A(f'v_mov_b32 v{t0}, 0xff7fffff')
        A(f'v_max3_f32 v{m}, v{a0}, v{a1}, v{t0}')
        self.wave_reduce([(m, 'v_max_f32')])
        A(f'v_readlane_b32 s{sMW}, v{m}, 63')
        A('s_nop 1')
        A(f'v_subrev_f32 v{a0}, s{sMW}, v{a0}')
        A(f'v_subrev_f32 v{a1}, s{sMW}, v{a1}')
        A(f'v_mul_f32 v{a0}, 0x3fb8aa3b, v{a0}')
        A(f'v_mul_f32 v{a1}, 0x3fb8aa3b, v{a1}')
        A(f'v_exp_f32 v{a0}, v{a0}')
        A(f'v_exp_f32 v{a1}, v{a1}')
        A('s_nop 0')
        A(f'v_add_f32 v{m}, v{a0}, v{a1}')
        self.wave_reduce([(m, 'v_add_f32')])
        A(f'v_readlane_b32 s{sBb}, v{m}, 63')
        A(f's_lshl_b32 s{sC}, s{sWAVE}, 3')
        A(f'v_mov_b32 v6, s{sMW}')
        A(f'v_mov_b32 v7, s{sBb}')
        A(f'v_mov_b32 v8, s{sC}')
        A('s_mov_b64 exec, 1')
        A(f'ds_write_b64 v8, v[6:7] offset:{L_XCH}')
        A('s_mov_b64 exec, -1')

    def softmax_part2(self):
        A = self.A
        a0, a1 = 2, 3
        self.lane(8)
        A('v_and_b32 v9, 7, v8')
        A('v_lshlrev_b32 v9, 3, v9')
        A('v_and_b32 v11, 3, v8')
        A('v_mul_u32_u24 v11, 0x5555, v11')
        A('v_bfe_u32 v8, v8, 2, 2')
        A('v_mov_b32 v4, 0xffff')
        for jj in range(2):
            A(f'v_cmp_eq_u32 vcc, {jj}, v8')
            A('s_nop 1')
            A(f'v_cndmask_b32 v{14+jj}, 0, v4, vcc')
        A('s_waitcnt lgkmcnt(0)')
        self.pv_pre()
        A('s_barrier')
        self.astamp(4)
        A(f'ds_read_b64 v[6:7], v9 offset:{L_XCH}')
        A('s_waitcnt lgkmcnt(0)')
        A('v_mov_b32 v8, v6')
        for k in (1, 2, 4):
            A('s_nop 1')
            A(f'v_max_f32_dpp v8, v8, v8 row_ror:{k} row_mask:0xf bank_mask:0xf')
        A('v_sub_f32 v6, v6, v8')
        A(f'v_sub_f32 v9, s{sMW}, v8')
        A('v_mul_f32 v6, 0x3fb8aa3b, v6')
        A('v_mul_f32 v9, 0x3fb8aa3b, v9')
        A('v_exp_f32 v6, v6')
        A('v_exp_f32 v9, v9')
        A('s_nop 0')
        A('v_mul_f32 v7, v7, v6')
        A(f'v_mul_f32 v{a0}, v{a0}, v9')
        A(f'v_mul_f32 v{a1}, v{a1}, v9')
        for k in (1, 2, 4):
            if k > 1:
                A('s_nop 1')
            A(f'v_add_f32_dpp v7, v7, v7 row_ror:{k} row_mask:0xf bank_mask:0xf')
        A('v_rcp_f32 v7, v7')
        A('s_nop 0')
        A(f'v_mul_f32 v{a0}, v{a0}, v7')
        A(f'v_mul_f32 v{a1}, v{a1}, v7')
        A(f'v_cvt_pk_bf16_f32 v12, v{a0}, v{a0}')
        A(f'v_cvt_pk_bf16_f32 v13, v{a1}, v{a1}')
        A('s_nop 1')

    def pv_build(self, nu):
        A = self.A
        A(f'v_and_b32_dpp v4, v12, v14 row_newbcast:{nu} row_mask:0xf bank_mask:0xf')
        A(f'v_and_b32_dpp v5, v12, v15 row_newbcast:{nu} row_mask:0xf bank_mask:0xf')
        A(f'v_and_b32_dpp v6, v13, v14 row_newbcast:{nu} row_mask:0xf bank_mask:0xf')
        A(f'v_and_b32_dpp v7, v13, v15 row_newbcast:{nu} row_mask:0xf bank_mask:0xf')

    def pv_pre(self):
        A = self.A
        T = [16, 24]
        self.lane(10)
        A('v_lshlrev_b32 v10, 4, v10')
        A(f'v_add_u32 v10, s{sKLA}, v10')
        A(f's_lshl_b32 s{sA}, s{sX}, 13')
        A(f's_lshl_b32 s{sBb}, s{sB}, 10')
        A(f's_add_u32 s{sA}, s{sA}, s{sBb}')
        A(f's_and_b32 s{sBb}, s{sH}, 3')
        A(f's_lshl_b32 s{sBb}, s{sBb}, 8')
        A(f's_add_u32 s{sA}, s{sA}, s{sBb}')
        A(f's_add_u32 s{sA}, s{sA}, s{sLOFF}')
        A(f's_add_u32 s{sE}, s{sA}, {MB_O}')
        A('s_waitcnt vmcnt(14)')
        order = [0, 9, 1, 10, 2, 3, 11, 4, 5, 12, 6, 7, 13, 8, 14, 15]
        lq = [nu for nu in order if nu < 9]
        issued = 0

        def issue():
            nonlocal issued
            if issued >= len(lq):
                return
            nu = lq[issued]
            t = T[issued % 2]
            A(f'ds_read_b128 v[{t}:{t+3}], v10 offset:{nu*2048}')
            A(f'ds_read_b128 v[{t+4}:{t+7}], v10 offset:{nu*2048 + 1024}')
            issued += 1
        for _ in range(2):
            issue()
        self._pv = (T, order, lq, issue, lambda: issued)

    def pv(self):
        A = self.A
        T, order, lq, issue, nissued = self._pv
        for r in range(4):
            A(f'v_mov_b32 v{r}, 0')
        li = 0
        for nu in order:
            self.pv_build(nu)
            if nu < 9:
                A(f's_waitcnt lgkmcnt({2 * (nissued() - li - 1)})')
                A('s_nop 0')
                t = T[li % 2]
                A(f'v_smfmac_f32_16x16x64_bf16 v[0:3], v[4:7], v[{t}:{t+7}], v11')
                li += 1
                issue()
            else:
                r = VV + 8 * (nu - 9)
                A(f's_waitcnt vmcnt({2 * (15 - nu)})')
                A('s_nop 0')
                A(f'v_smfmac_f32_16x16x64_bf16 v[0:3], v[4:7], v[{r}:{r+7}], v11')
        self.lane(31)
        A('v_and_b32 v29, 15, v31')
        A('v_lshrrev_b32 v30, 4, v31')
        A('v_lshlrev_b32 v29, 5, v29')
        A('v_lshl_add_u32 v29, v30, 4, v29')
        A(f's_lshl_b32 s{sA}, s{sWAVE}, 9')
        A(f'v_add_u32 v29, s{sA}, v29')
        A('v_lshlrev_b32 v30, 3, v31')
        A('v_lshlrev_b32 v31, 2, v31')

    def o_finish(self):
        A = self.A
        A('s_mov_b32 exec_hi, 0')
        A(f'ds_write_b128 v29, v[0:3] offset:{L_OP}')
        A('s_mov_b64 exec, -1')
        A('s_waitcnt lgkmcnt(0)')
        A('s_barrier')
        ld = self.nl('OF')
        A(f's_cmp_lg_u32 s{sWAVE}, 0')
        A(f's_cbranch_scc1 {ld}')
        for w in range(8):
            A(f'ds_read_b64 v[{2*w}:{2*w+1}], v30 offset:{L_OP + 512*w}')
        for w in range(1, 8):
            A(f's_waitcnt lgkmcnt({7-w})')
            A(f'v_pk_add_f32 v[0:1], v[0:1], v[{2*w}:{2*w+1}]')
        A('v_cvt_pk_bf16_f32 v0, v0, v1')
        A('v_min_u32 v0, 0xfffffffe, v0')
        self.store_local(f'buffer_store_dword v0, v31, s[{S_WS}:{S_WS+3}], s{sE} offen')
        self.lab(ld)

    def table_wait(self, v=16):
        A = self.A
        lr, ld = self.nl('TB'), self.nl('TBD')

        def chk():
            A(f's_and_b32 s{sA}, s8, s9')
            for k in range(10, 16):
                A(f's_and_b32 s{sA}, s{sA}, s{k}')
            A(f's_bitcmp1_b32 s{sA}, 30')
        A(f's_load_dwordx8 s[8:15], s[{S_DBG}:{S_DBG+1}], 0')
        A('s_waitcnt lgkmcnt(0)')
        chk()
        A(f's_cbranch_scc1 {ld}')
        self.lane(v)
        A(f'v_and_b32 v{v}, 7, v{v}')
        A(f'v_lshlrev_b32 v{v}, 2, v{v}')
        self.lab(lr)
        A('s_sleep 32')
        A(f'buffer_load_dword v{v+1}, v{v}, s[{S_DBG}:{S_DBG+3}], 0 offen sc1')
        A('s_waitcnt vmcnt(0)')
        A(f'v_cmp_gt_u32 vcc, 0x40000000, v{v+1}')
        l2 = self.nl('TBE')
        A('s_cmp_eq_u64 vcc, 0')
        A(f's_cbranch_scc1 {l2}')
        self.spin_check(lr)
        self.lab(l2)
        A(f's_load_dwordx8 s[8:15], s[{S_DBG}:{S_DBG+1}], 0 glc')
        A('s_waitcnt lgkmcnt(0)')
        self.lab(ld)

    def table_decode(self):
        A = self.A
        o = self.o
        A(f's_load_dword s7, s[{S_DBG}:{S_DBG+1}], 128')
        A(f's_mov_b32 s{sFAST}, 0')
        for k in range(8, 16):
            A(f's_bfe_u32 s{sA}, s{k}, {(8 << 16) | 17}')
            A(f's_bfe_u32 s{sBb}, s{k}, {(11 << 16) | 6}')
            A(f's_mul_i32 s{sA}, s{sA}, s{sA}')
            A(f's_lshl_b32 s{sBb}, s{sBb}, 5')
            A(f's_xor_b32 s{sA}, s{sA}, s{sBb}')
            A(f's_or_b32 s{sFAST}, s{sFAST}, s{sA}')
        A(f's_cmp_eq_u32 s{sFAST}, 0')
        A(f's_cselect_b32 s{sFAST}, 1, 0')
        if o.get('slow'):
            A(f's_mov_b32 s{sFAST}, 0')
        A('s_waitcnt lgkmcnt(0)')
        A(f's_and_b32 s{sE}, s7, 0xffff')
        A(f's_lshl_b32 s{sE}, s{sE}, 1')
        A('s_lshr_b32 s7, s7, 16')
        A(f's_cmp_ge_u32 s{sE}, s7')
        A(f's_cselect_b32 s{sE}, 0, 1')
        if o.get('forcepar') is not None:
            A(f's_mov_b32 s{sE}, {o["forcepar"]}')
        A(f's_getreg_b32 s{sA}, hwreg(HW_REG_XCC_ID)')
        A(f's_bfe_u32 s{sA}, s{sA}, {(1 << 16) | 2}')
        A(f's_xor_b32 s{sE}, s{sE}, s{sA}')
        A(f's_lshl_b32 s{sRHO}, s{sE}, 13')

    def probe(self):
        A = self.A
        o = self.o
        A('s_and_b32 s3, s2, 63')
        A('s_lshl_b32 s3, s3, 7')
        A(f's_lshr_b32 s{sA}, s2, 6')
        A(f's_lshl_b32 s{sA}, s{sA}, 14')
        A(f's_add_u32 s3, s3, s{sA}')
        A('s_add_u32 s3, s3, 0x1E0000')
        A(f's_add_u32 s{sM64}, s{S_WS}, s3')
        A(f's_addc_u32 s{sM64+1}, s{S_WS+1}, 0')
        A(f's_load_dword s{sA}, s[{sM64}:{sM64+1}], 0 glc')
        A(f's_load_dword s{sBb}, s[{sM64}:{sM64+1}], 0x2000 glc')
        A('s_waitcnt lgkmcnt(0)')
        A(f's_mov_b32 s{sE}, 0')
        for rep in range(o.get('nprobe', 2)):
            A(f's_memtime s[{sM64b}:{sM64b+1}]')
            A('s_waitcnt lgkmcnt(0)')
            A(f's_load_dword s{sA}, s[{sM64}:{sM64+1}], 0 glc')
            A('s_waitcnt lgkmcnt(0)')
            A(f's_memtime s[{sC}:{sC+1}]')
            A('s_waitcnt lgkmcnt(0)')
            A(f's_load_dword s{sA}, s[{sM64}:{sM64+1}], 0x2000 glc')
            A('s_waitcnt lgkmcnt(0)')
            A(f's_memtime s[{sA}:{sA+1}]')
            A('s_waitcnt lgkmcnt(0)')
            A(f's_lshl_b32 s{sC}, s{sC}, 1')
            A(f's_sub_u32 s{sC}, s{sC}, s{sM64b}')
            A(f's_sub_u32 s{sC}, s{sC}, s{sA}')
            A(f's_add_u32 s{sE}, s{sE}, s{sC}')
        A(f's_lshr_b32 s{sE}, s{sE}, 31')
        A(f's_getreg_b32 s{sA}, hwreg(HW_REG_XCC_ID)')
        A(f's_and_b32 s{sA}, s{sA}, 7')
        A(f's_lshr_b32 s{sF}, s{sA}, 2')
        A(f's_xor_b32 s{sE}, s{sE}, s{sF}')
        A(f's_or_b32 s{sE}, s{sE}, 0x10000')
        A(f'v_mov_b32 v8, s{sE}')
        A('v_mov_b32 v9, 128')
        A('s_mov_b64 exec, 1')
        A(f'buffer_atomic_add v8, v9, s[{S_DBG}:{S_DBG+3}], 0 offen sc1')
        A('s_mov_b64 exec, -1')

    def flag(self):
        A = self.A
        A(f's_lshl_b32 s{sBb}, s{sX}, 2')
        A('v_mov_b32 v8, s7')
        A(f'v_mov_b32 v9, s{sBb}')
        A('s_mov_b64 exec, 1')
        A(f'buffer_atomic_add v8, v9, s[{S_DBG}:{S_DBG+3}], 0 offen sc1')
        A('s_mov_b64 exec, -1')

    def stream_addr(self, vk, vl, vr, tmp):
        A = self.A
        self.lane(tmp)
        A(f's_lshl_b32 s{sA}, s{sWAVE}, 15')
        A(f'v_and_b32 v{vk}, 7, v{tmp}')
        A(f'v_lshlrev_b32 v{vk}, 8, v{vk}')
        A(f'v_bfe_u32 v{vl}, v{tmp}, 3, 1')
        A(f'v_lshl_add_u32 v{vk}, v{vl}, 6, v{vk}')
        A(f'v_lshrrev_b32 v{vl}, 4, v{tmp}')
        A(f'v_lshl_add_u32 v{vk}, v{vl}, 4, v{vk}')
        A(f'v_add_u32 v{vk}, s{sA}, v{vk}')
        A(f'v_and_b32 v{vl}, 15, v{tmp}')
        A(f'v_lshlrev_b32 v{vl}, 4, v{vl}')
        A(f'v_add_u32 v{vl}, s{sA}, v{vl}')
        A(f'v_bfe_u32 v{vr}, v{tmp}, 4, 1')
        A(f'v_lshl_add_u32 v{vl}, v{vr}, 14, v{vl}')
        A(f'v_lshrrev_b32 v{vr}, 5, v{tmp}')
        A(f'v_lshl_add_u32 v{vl}, v{vr}, 11, v{vl}')

    def build(self):
        A = self.A
        L = self.L
        o = self.o
        L.append(HEADER.rstrip('\n'))
        L.append(f'; @launch grid=(256,1,1) block=(512,1,1) lds={LDS_BYTES}')
        L.append('.amdgcn_target "amdgcn-amd-amdhsa--gfx950"')
        L.append('.text')
        L.append(f'.globl {NAME}_kernel')
        L.append('.p2align 8')
        L.append(f'.type {NAME}_kernel,@function')
        L.append(f'{NAME}_kernel:')
        A('s_cmp_ge_u32 s2, 256')
        A('s_cbranch_scc1 L_end')
        if self.ts:
            for k in range(1, 11):
                A(f's_mov_b64 s[{sTS+2*k}:{sTS+2*k+1}], 0')
        self.stamp(0)
        A(f's_load_dwordx2 s[{P_X}:{P_X+1}], s[0:1], 0')
        A(f's_load_dwordx4 s[{S_T0}:{S_T0+3}], s[0:1], 8')
        A(f's_load_dwordx4 s[{S_T1}:{S_T1+3}], s[0:1], 24')
        A('s_load_dwordx4 s[68:71], s[0:1], 48')
        A('s_load_dwordx4 s[72:75], s[0:1], 64')
        A('s_load_dwordx4 s[60:63], s[0:1], 80')
        A('s_load_dwordx2 s[64:65], s[0:1], 96')
        A(f's_and_b32 s{sX}, s2, 7')
        A(f's_lshr_b32 s{sS}, s2, 3')
        A(f's_and_b32 s{sH}, s{sS}, 3')
        A(f's_lshl_b32 s{sA}, s{sX}, 2')
        A(f's_add_u32 s{sH}, s{sH}, s{sA}')
        A(f's_lshr_b32 s{sB}, s{sS}, 2')
        A(f's_lshl_b32 s{sA}, s{sB}, 5')
        A(f's_add_u32 s{sA}, s{sA}, s{sH}')
        A(f's_lshl_b32 s{sA}, s{sA}, 20')
        A(f's_add_u32 s{sA}, s{sA}, 0xC0000')
        A('v_lshrrev_b32 v1, 6, v0')
        A('v_and_b32 v2, 63, v0')
        A(f'v_readfirstlane_b32 s{sWAVE}, v1')
        A(f's_mov_b32 s{sLOFF}, 0')
        A(f's_mov_b32 s{sSPIN}, 0')
        A('s_waitcnt lgkmcnt(0)')
        if o.get('dbgflag') == 2:
            A(f's_memrealtime s[{sTS+14}:{sTS+15}]')
        A(f's_add_u32 s{S_K}, s{S_T0}, s{sA}')
        A(f's_addc_u32 s{S_K+1}, s{S_T0+1}, 0')
        A(f's_mov_b32 s{S_K+2}, 0x40000')
        A(f's_mov_b32 s{S_K+3}, 0x20000')
        A(f's_add_u32 s{S_V}, s{S_T0+2}, s{sA}')
        A(f's_addc_u32 s{S_V+1}, s{S_T0+3}, 0')
        A(f's_mov_b32 s{S_V+2}, 0x40000')
        A(f's_mov_b32 s{S_V+3}, 0x20000')
        K0 = o.get('k0', 0)
        if K0:
            self.stream_addr(30, 31, 28, 29)
            lk0 = self.nl('K0')
            A(f's_cmp_eq_u32 s{sWAVE}, 7')
            A(f's_cbranch_scc1 {lk0}')
            for j in range(K0):
                A(f'buffer_load_dwordx4 v[{VK+4*j}:{VK+4*j+3}], v30, s[{S_K}:{S_K+3}], 0 offen offset:{(j >> 1) * 2048 + (j & 1) * 128} nt')
            self.lab(lk0)
        A(f's_add_u32 s{S_WS}, s64, 0x1fffff')
        A(f's_addc_u32 s{S_WS+1}, s65, 0')
        A(f's_and_b32 s{S_WS}, s{S_WS}, 0xffe00000')
        A(f's_mov_b32 s{S_WS+2}, {0x1000000 if self.ts else WIN_BYTES}')
        A(f's_mov_b32 s{S_WS+3}, 0x20000')
        A(f's_mov_b64 s[{S_DBG}:{S_DBG+1}], s[62:63]')
        A(f's_mov_b32 s{S_DBG+2}, 256')
        A(f's_mov_b32 s{S_DBG+3}, 0x20000')
        A(f's_mov_b64 s[{S_OUT}:{S_OUT+1}], s[60:61]')
        A(f's_mov_b32 s{S_OUT+2}, 10240')
        A(f's_mov_b32 s{S_OUT+3}, 0x20000')
        A(f's_mov_b64 s[{P_WQ}:{P_WQ+1}], s[{S_T1}:{S_T1+1}]')
        A(f's_mov_b64 s[{P_WO}:{P_WO+1}], s[{S_T1+2}:{S_T1+3}]')
        A(f's_mov_b64 s[{P_W1}:{P_W1+1}], s[68:69]')
        A(f's_mov_b64 s[{P_B1}:{P_B1+1}], s[70:71]')
        A(f's_mov_b64 s[{P_W2}:{P_W2+1}], s[72:73]')
        A('s_mov_b64 s[0:1], s[74:75]')
        for i in range(8):
            A(f's_mov_b32 s{sBLK+i}, {i*4096}')
        A(f's_mul_i32 s{sKLA}, s{sWAVE}, 18432')
        A(f's_add_u32 s{sKLA}, s{sKLA}, {L_V}')
        A(f's_cmp_lt_u32 s{sX}, 3')
        A(f's_cselect_b32 s{sNM1}, 4, 3')
        A(f's_lshl_b32 s{sGX}, s{sX}, 2')
        A(f's_mul_i32 s{sA}, s{sX}, 3')
        A(f's_add_u32 s{sA}, s{sA}, 3')
        A(f's_min_u32 s{sGX}, s{sGX}, s{sA}')
        A(f's_mov_b32 s{sRT}, 1')
        A(f's_mov_b32 s{sRU}, s{sS}')
        for lo, typ in ((8, 2), (18, 4), (28, 3)):
            A(f's_sub_u32 s{sA}, s{sS}, {lo}')
            A(f's_cmp_ge_u32 s{sS}, {lo}')
            A(f's_cselect_b32 s{sRT}, {typ}, s{sRT}')
            A(f's_cselect_b32 s{sRU}, s{sA}, s{sRU}')
        lb = self.nl('RN')
        A(f's_cmp_lg_u32 s{sRT}, 3')
        A(f's_cbranch_scc1 {lb}')
        A(f's_cmp_ge_u32 s{sRU}, s{sNM1}')
        A(f's_cselect_b32 s{sRT}, 0, s{sRT}')
        self.lab(lb)
        A(f's_mov_b32 s{S_T0+3}, 0x20000')
        A(f's_mov_b32 s{S_T1+3}, 0x20000')
        A(f's_and_b32 s{sA}, s{sRT}, 3')
        A(f's_cmp_eq_u32 s{sA}, 0')
        A(f's_cselect_b32 s{sLIGHT}, 1, 0')

        CPOL = {0: ' sc1', 1: ' sc1 nt', 2: ' nt', 3: '', 4: ' sc0 sc1'}[o.get('cpol', 0)]
        l_w7, l_small = self.nl('W7'), self.nl('SM')
        A(f's_cmp_eq_u32 s{sWAVE}, 7')
        A(f's_cbranch_scc1 {l_w7}')
        A('v_lshrrev_b32 v3, 3, v2')
        A(f's_lshl_b32 s{sA}, s{sWAVE}, 3')
        A(f'v_add_u32 v3, s{sA}, v3')
        A('v_and_b32 v4, 7, v2')
        A('v_bfe_u32 v6, v2, 4, 1')
        A('v_xor_b32 v4, v4, v6')
        A(f's_and_b32 s{sA}, s{sWAVE}, 1')
        A(f's_lshl_b32 s{sA}, s{sA}, 1')
        A(f'v_xor_b32 v4, s{sA}, v4')
        A('v_lshlrev_b32 v4, 4, v4')

        def dma(ptr, size, stride, offcode, ninstr, khi):
            A(f's_mov_b64 s[{S_T0}:{S_T0+1}], s[{ptr}:{ptr+1}]')
            A(f's_mov_b32 s{S_T0+2}, {size}')
            offcode()
            A(f'v_mul_u32_u24 v5, {stride}, v3')
            A(f'v_add3_u32 v5, v5, v4, s{sC}')
            A(f's_lshl_b32 s{sD}, s{sWAVE}, 10')
            nmax = ninstr if isinstance(ninstr, int) else 32
            kmax = (nmax + 6) // 7
            for k in range(kmax):
                if isinstance(ninstr, int):
                    if 7 * k + 6 >= ninstr:
                        A(f's_cmp_ge_u32 s{sWAVE}, {ninstr - 7*k}')
                        A(f's_cbranch_scc1 {l_small}')
                elif 7 * k + 6 >= 24:
                    A(f's_add_u32 s{sA}, s{sWAVE}, {7*k}')
                    A(f's_cmp_ge_u32 s{sA}, s{ninstr[0]}')
                    A(f's_cbranch_scc1 {l_small}')
                A(f's_add_u32 s{sA}, s{sWAVE}, {7*k}')
                A(f's_cmp_ge_u32 s{sA}, {khi if isinstance(khi, int) else "s%d" % khi[0]}')
                A(f's_cselect_b32 s{sA}, {64 + 32*(k & 1)}, {32*(k & 1)}')
                A(f'v_xor_b32 v6, s{sA}, v5')
                A(f's_add_u32 m0, s{sD}, {L_STG + 7168*k}')
                A(f's_mov_b32 s{sC}, {k*56*stride}')
                A(f'buffer_load_dwordx4 v6, s[{S_T0}:{S_T0+3}], s{sC} offen nt lds')
            A(f's_branch {l_small}')

        def q_off():
            A(f's_lshl_b32 s{sC}, s{sX}, 10')
            A(f's_lshl_b32 s{sD}, s{sRU}, 7')
            A(f's_add_u32 s{sC}, s{sC}, s{sD}')

        def m1_off():
            A(f's_add_u32 s{sC}, s{sGX}, s{sRU}')
            A(f's_lshl_b32 s{sC}, s{sC}, 7')

        def wo_off():
            A(f's_mul_i32 s{sC}, s{sX}, {512*1280}')
            A(f's_lshl_b32 s{sD}, s{sRU}, 7')
            A(f's_add_u32 s{sC}, s{sC}, s{sD}')

        def m2_off():
            A(f's_mul_i32 s{sC}, s{sGX}, {64*1280}')
            A(f's_lshl_b32 s{sD}, s{sRU}, 7')
            A(f's_add_u32 s{sC}, s{sC}, s{sD}')
            A(f's_lshl_b32 s{sE}, s{sNM1}, 3')
            A(f's_lshl_b32 s{sF}, s{sNM1}, 2')
        l2, l3, l4 = self.nl('D2'), self.nl('D3'), self.nl('D4')
        if o.get('nowt'):
            A(f's_branch {l_small}')
        A(f's_cmp_eq_u32 s{sRT}, 0')
        A(f's_cbranch_scc1 {l_small}')
        A(f's_cmp_eq_u32 s{sRT}, 2')
        A(f's_cbranch_scc1 {l2}')
        A(f's_cmp_eq_u32 s{sRT}, 3')
        A(f's_cbranch_scc1 {l3}')
        A(f's_cmp_eq_u32 s{sRT}, 4')
        A(f's_cbranch_scc1 {l4}')
        dma(P_WQ, 640 * 8192, 8192, q_off, o.get('bq') or 80, 40)
        self.lab(l2)
        dma(P_WO, 4096 * 1280, 1280, wo_off, o.get('bo') or 64, 32)
        self.lab(l3)
        dma(P_W1, 640 * 3456, 3456, m1_off, o.get('bq') or 80, 40)
        self.lab(l4)
        dma(P_W2, 1728 * 1280, 1280, m2_off, (sE,), (sF,)) if not o.get('b2') else dma(P_WO, 4096 * 1280, 1280, wo_off, o['b2'], 32)

        self.lab(l_w7)
        for r in range(4):
            A(f'v_mov_b32 v{4+r}, -1')
        A('v_lshlrev_b32 v3, 4, v2')
        lq0 = self.nl('CQ0')
        A(f's_cmp_lg_u32 s{sRT}, 1')
        A(f's_cbranch_scc1 {lq0}')
        A(f's_lshl_b32 s3, s{sX}, 3')
        A(f's_add_u32 s3, s3, s{sRU}')
        A('s_lshl_b32 s3, s3, 10')
        A(f's_add_u32 s3, s3, {MB_Q}')
        A(f'buffer_store_dwordx4 v[4:7], v3, s[{S_WS}:{S_WS+3}], s3 offen sc1')
        self.lab(lq0)
        A('s_mul_i32 s3, s2, 2304')
        A(f'buffer_store_dwordx4 v[4:7], v3, s[{S_WS}:{S_WS+3}], s3 offen sc1')
        A(f'buffer_store_dwordx4 v[4:7], v3, s[{S_WS}:{S_WS+3}], s3 offen offset:1024 sc1')
        A('s_mov_b64 exec, 0xffff')
        A(f'buffer_store_dwordx4 v[4:7], v3, s[{S_WS}:{S_WS+3}], s3 offen offset:2048 sc1')
        A('s_lshl_b32 s3, s2, 8')
        A(f's_add_u32 s3, s3, {LSTRIDE + MB_Q}')
        A(f'buffer_store_dwordx4 v[4:7], v3, s[{S_WS}:{S_WS+3}], s3 offen sc1')
        A('s_mov_b64 exec, -1')
        A(f's_getreg_b32 s{sA}, hwreg(HW_REG_XCC_ID)')
        A(f's_and_b32 s{sA}, s{sA}, 7')
        A(f's_mul_i32 s{sBb}, s{sA}, s{sA}')
        A(f's_lshl_b32 s{sBb}, s{sBb}, 6')
        A(f's_lshl_b32 s{sA}, s{sA}, 17')
        A(f's_or_b32 s{sA}, s{sA}, s{sBb}')
        A(f's_or_b32 s{sA}, s{sA}, {1 << 25}')
        A(f's_lshl_b32 s{sBb}, s{sX}, 2')
        A(f'v_mov_b32 v8, s{sA}')
        A(f'v_mov_b32 v9, s{sBb}')
        A('s_waitcnt vmcnt(0)')
        if o.get('dbgflag') == 1:
            A(f's_memrealtime s[{sTS+14}:{sTS+15}]')
        A('s_mov_b64 exec, 1')
        A(f'buffer_atomic_add v8, v9, s[{S_DBG}:{S_DBG+3}], 0 offen sc1')
        A('s_mov_b64 exec, -1')
        if o.get('dbgflag') == 1:
            A('s_waitcnt vmcnt(0)')
            A(f's_memrealtime s[{sTS+16}:{sTS+17}]')
        for j in range(K0):
            A(f'buffer_load_dwordx4 v[{VK+4*j}:{VK+4*j+3}], v30, s[{S_K}:{S_K+3}], 0 offen offset:{(j >> 1) * 2048 + (j & 1) * 128} nt')

        self.lab(l_small)
        A(f's_mov_b64 s[{S_T0}:{S_T0+1}], s[{P_X}:{P_X+1}]')
        A(f's_mov_b32 s{S_T0+2}, 10240')
        lq, lr4, lm, le = self.nl('SQ'), self.nl('SR'), self.nl('SMM'), self.nl('SEnd')
        A(f's_cmp_eq_u32 s{sRT}, 4')
        A(f's_cbranch_scc1 {lr4}')
        A(f's_cmp_eq_u32 s{sRT}, 3')
        A(f's_cbranch_scc1 {lm}')
        A(f's_cmp_lg_u32 s{sRT}, 1')
        A(f's_cbranch_scc1 {le}')
        A(f's_mul_i32 s{sA}, s{sWAVE}, 1280')
        A('v_lshlrev_b32 v5, 2, v2')
        for i in range(5):
            A(f'buffer_load_dword v{10+i}, v5, s[{S_T0}:{S_T0+3}], s{sA} offen offset:{256*i}')
        A(f's_branch {le}')
        self.lab(lr4)
        A('v_lshrrev_b32 v5, 3, v2')
        A('v_and_b32 v6, 7, v2')
        A(f's_lshl_b32 s{sA}, s{sRU}, 3')
        A(f's_add_u32 s{sA}, s{sA}, s{sWAVE}')
        A(f's_lshl_b32 s{sA}, s{sA}, 4')
        A('v_lshlrev_b32 v6, 1, v6')
        A('v_mul_u32_u24 v5, 1280, v5')
        A('v_add_u32 v5, v5, v6')
        A(f'buffer_load_ushort v{VRES}, v5, s[{S_T0}:{S_T0+3}], s{sA} offen')
        A(f's_mov_b64 s[{S_T1}:{S_T1+1}], s[0:1]')
        A(f's_mov_b32 s{S_T1+2}, 1280')
        A(f'buffer_load_ushort v{VB2}, v6, s[{S_T1}:{S_T1+3}], s{sA} offen')
        A(f's_branch {le}')
        self.lab(lm)
        A(f's_mov_b64 s[{S_T1}:{S_T1+1}], s[{P_B1}:{P_B1+1}]')
        A(f's_mov_b32 s{S_T1+2}, 3456')
        A(f's_add_u32 s{sA}, s{sGX}, s{sRU}')
        A(f's_lshl_b32 s{sA}, s{sA}, 7')
        A('v_lshlrev_b32 v6, 1, v2')
        A(f'buffer_load_ushort v15, v6, s[{S_T1}:{S_T1+3}], s{sA} offen')
        self.lab(le)
        A(f's_mov_b32 s{sONE}, 0x3f803f80')
        A(f's_mov_b32 s{sLO}, 0x00003f80')
        A(f's_mov_b32 s{sHI}, 0x3f800000')

        if not K0:
            self.stream_addr(30, 31, 28, 29)

        def kload(q):
            i, j = q
            val = VK + 16 * i + 4 * j
            ko = (j >> 1) * 2048 + (j & 1) * 128
            A(f'buffer_load_dwordx4 v[{val}:{val+3}], v30, s[{S_K}:{S_K+3}], s{sBLK+i} offen offset:{ko} nt')

        def vlds(q):
            nu, j = q
            imm = (nu & 7) * 256
            A(f's_add_u32 m0, s{sKLA}, {nu*2048 + j*1024 - imm}')
            A('s_nop 0')
            A(f'buffer_load_dwordx4 v31, s[{S_V}:{S_V+3}], s{sBLK + (nu >> 3)*2 + j} offen offset:{imm} nt lds')

        def vreg(q):
            nu, j = q
            r = VV + 8 * (nu - 9) + 4 * j
            A(f'buffer_load_dwordx4 v[{r}:{r+3}], v31, s[{S_V}:{S_V+3}], s{sBLK + (nu >> 3)*2 + j} offen offset:{(nu & 7)*256} nt')

        if o.get('dbgflag') == 2:
            A(f's_memrealtime s[{sTS+16}:{sTS+17}]')
        W = o.get('win', 12)
        N1 = o.get('n1', 12)
        if o.get('pure'):
            N1 = 78
        if o.get('prio') == 2:
            lbq = self.nl('PRI')
            A(f's_cmp_lt_u32 s{sWAVE}, 4')
            A(f's_cbranch_scc1 {lbq}')
            A('s_setprio 1')
            self.lab(lbq)
        if o.get('prio') == 1:
            for pw in range(1, 4):
                lbq = self.nl('PRI')
                A(f's_cmp_lt_u32 s{sWAVE}, {2*pw}')
                A(f's_cbranch_scc1 {lbq}')
                A(f's_setprio {pw}')
                self.lab(lbq)
        seq = [(kload, (i, j)) for i in range(8) for j in range(4)] + [(vlds, (oc, a)) for oc in range(9) for a in range(2)] + \
              [(vreg, (oc, j)) for oc in range(9, 16) for j in range(2)]
        NTOT = len(seq)
        n = K0

        def issue_next(extra=0, nowait=False):
            nonlocal n
            WL = o.get('wl')
            if WL and n >= WL and not nowait:
                lw = self.nl('WL')
                A(f's_cmp_eq_u32 s{sLIGHT}, 0')
                A(f's_cbranch_scc1 {lw}')
                A(f's_waitcnt vmcnt({WL-1+extra})')
                self.lab(lw)
            nt0 = o.get('ntail') or 50
            Wn = W
            if n >= nt0 and o.get('wtail'):
                Wn = min(W + (n - nt0 + 1), o['wtail'])
            if n >= Wn and not nowait:
                A(f's_waitcnt vmcnt({Wn-1+extra})')
            kind, q = seq[n]
            kind(q)
            n += 1
            if o.get('syncat') and n in [int(z) for z in str(o['syncat']).split('0') if False] + [int(str(o['syncat'])[i:i+2]) for i in range(0, len(str(o['syncat'])), 2)]:
                A('s_barrier')
            if o.get('sync') and (n > N1 + o.get('nln', 0) + o.get('n2', 4) or n < N1 - 2) and n % o['sync'] == 0 and n < (o.get('synclim') or NTOT - 2):
                A('s_barrier')
        for _ in range(N1 - K0):
            issue_next(nowait=not o.get('n1win'))
            if n == o.get('nprb', 8):
                lbp = self.nl('PRB')
                A(f's_cmp_lg_u32 s{sWAVE}, 7')
                A(f's_cbranch_scc1 {lbp}')
                A(f's_cmp_lg_u32 s{sRT}, 4')
                A(f's_cbranch_scc1 {lbp}')
                self.probe()
                self.lab(lbp)
        A(f's_waitcnt vmcnt({min(N1, W) if o.get("n1win") else N1 - K0})')
        if o.get('pure'):
            A('s_waitcnt vmcnt(0)')
        A('s_waitcnt lgkmcnt(0)')
        A('s_barrier')
        self.stamp(1)
        if o.get('pure'):
            A('s_branch L_fin')
            seq += seq
        self.lane(2)
        lb_tr = self.nl('TR')
        A(f's_cmp_eq_u32 s{sRT}, 0')
        A(f's_cbranch_scc1 {lb_tr}')
        A(f's_mov_b32 s{sA}, 320')
        A(f's_cmp_eq_u32 s{sRT}, 2')
        A(f's_cselect_b32 s{sA}, 256, s{sA}')
        A(f's_lshl_b32 s{sBb}, s{sNM1}, 5')
        A(f's_cmp_eq_u32 s{sRT}, 4')
        A(f's_cselect_b32 s{sA}, s{sBb}, s{sA}')
        A('v_and_b32 v3, 3, v2')
        A('v_bfe_u32 v4, v2, 2, 2')
        A('v_lshrrev_b32 v5, 4, v2')
        A('v_lshrrev_b32 v6, 1, v3')
        A('v_lshrrev_b32 v7, 1, v4')
        A('v_and_b32 v8, 1, v5')
        A('v_lshl_or_b32 v7, v8, 1, v7')
        A('v_lshl_or_b32 v7, v6, 2, v7')
        A(f'v_xor_b32 v7, s{sWAVE}, v7')
        A(f'v_mul_u32_u24 v6, s{sA}, v6')
        A('v_lshl_add_u32 v6, v5, 3, v6')
        A('v_add_u32 v6, v6, v4')
        A('v_and_b32 v3, 1, v3')
        A('v_lshlrev_b32 v3, 3, v3')
        A('v_lshl_add_u32 v6, v6, 7, v3')
        A('v_lshl_add_u32 v6, v7, 4, v6')
        A(f'v_add_u32 v6, {L_STG}, v6')
        for j in range(10):
            if j == 4:
                A(f's_cmp_eq_u32 s{sRT}, 4')
                A(f's_cbranch_scc1 {lb_tr}')
            if j == 8:
                A(f's_cmp_eq_u32 s{sRT}, 2')
                A(f's_cbranch_scc1 {lb_tr}')
            A(f'ds_read_b64_tr_b16 v[{VW+4*j}:{VW+4*j+1}], v6 offset:{4096*j}')
            A(f'ds_read_b64_tr_b16 v[{VW+4*j+2}:{VW+4*j+3}], v6 offset:{4096*j+512}')
        self.lab(lb_tr)
        A('s_waitcnt lgkmcnt(0)')
        for _ in range(o.get('nln', 0)):
            issue_next()
        l4, l3, le = self.nl('T4'), self.nl('T3'), self.nl('TE')
        A(f's_cmp_eq_u32 s{sRT}, 4')
        A(f's_cbranch_scc1 {l4}')
        A(f's_cmp_eq_u32 s{sRT}, 3')
        A(f's_cbranch_scc1 {l3}')
        A(f's_cmp_lg_u32 s{sRT}, 1')
        A(f's_cbranch_scc1 {le}')
        self.layernorm(10, 16, 0)
        self.lane(2)
        A('v_lshlrev_b32 v2, 2, v2')
        self.ln_stage_write(10, 2)
        A(f's_branch {le}')
        self.lab(l4)
        A(f'v_lshlrev_b32 v{VRES}, 16, v{VRES}')
        A(f'v_lshlrev_b32 v{VB2}, 16, v{VB2}')
        A(f's_branch {le}')
        self.lab(l3)
        A('v_lshlrev_b32 v15, 16, v15')
        A('v_lshlrev_b32 v3, 2, v2')
        A(f'ds_write_b32 v3, v15 offset:{L_B1}')
        self.lab(le)
        A('s_waitcnt lgkmcnt(0)')
        A('s_barrier')
        self.stamp(2)
        for _ in range(o.get('n2', 4)):
            issue_next(nowait=not o.get('n1win'))
        lb = self.nl('Q0')
        A(f's_cmp_lg_u32 s{sRT}, 1')
        A(f's_cbranch_scc1 {lb}')
        self.gemm_pre(320, 1296)
        self.q_addr_pre(0)
        self.gemm(10)
        self.pack4()
        self.lab(lb)
        while n < o.get('nqs', 36):
            issue_next()
        lb = self.nl('Q0s')
        A(f's_cmp_lg_u32 s{sRT}, 1')
        A(f's_cbranch_scc1 {lb}')
        self.mask16()
        A(f'buffer_store_dwordx2 v[4:5], v29, s[{S_WS}:{S_WS+3}], s{sE} offen sc1')
        self.unmask()
        self.lab(lb)
        self.stamp(3)
        NQ = o.get('nq', 44)
        while n < NQ:
            issue_next()
        self.table_wait()
        qls = self.q_loads(29)
        for l in qls:
            A(l)
        for _ in range(8):
            issue_next(4)
        A('s_waitcnt vmcnt(8)')
        lr, ld, lchk = self.nl('QP'), self.nl('QPD'), self.nl('QC')
        A(f's_branch {lchk}')
        self.lab(lr)
        for l in qls:
            A(l)
        A('s_waitcnt vmcnt(0)')
        self.lab(lchk)
        self.sent_test(range(4), 28)
        A('s_cmp_eq_u64 vcc, 0')
        if o.get('stop'):
            A(f's_branch {ld}')
        A(f's_cbranch_scc1 {ld}')
        self.spin_check(lr)
        self.lab(ld)
        self.table_decode()
        self.stamp(4)
        self.lab('L_att')
        self.astamp(1)
        self.qk_part1()
        self.astamp(3)
        lb = self.nl('VR')
        A(f's_cmp_lg_u32 s{sLOFF}, 0')
        A(f's_cbranch_scc1 {lb}')
        self.stamp(5)
        self.stream_addr(30, 31, 28, 29)
        while n < NTOT:
            issue_next()
        self.lab(lb)
        self.softmax_part2()
        self.astamp(5)
        self.pv()
        self.lstamp(6, 9)
        self.astamp(6)
        lpc = self.nl('PCL')
        A(f's_cmp_lg_u32 s{sRT}, 4')
        A(f's_cbranch_scc1 {lpc}')
        A(f's_cmp_lg_u32 s{sLOFF}, 0')
        A(f's_cbranch_scc1 {lpc}')
        for r in range(4):
            A(f'v_mov_b32 v{24+r}, -1')
        A('v_lshlrev_b32 v23, 2, v31')
        A(f's_mul_i32 s3, s{sX}, 10')
        A(f's_add_u32 s3, s3, s{sRU}')
        A('s_lshl_b32 s3, s3, 3')
        A(f's_add_u32 s3, s3, s{sWAVE}')
        A('s_lshl_b32 s3, s3, 11')
        A(f's_add_u32 s3, s3, {MB_P2}')
        A(f'buffer_store_dwordx4 v[24:27], v23, s[{S_WS}:{S_WS+3}], s3 offen sc1')
        A(f'buffer_store_dwordx4 v[24:27], v23, s[{S_WS}:{S_WS+3}], s3 offen offset:1024 sc1')
        A('s_waitcnt vmcnt(0)')
        self.lab(lpc)
        self.o_finish()
        self.astamp(7)
        self.cstamp(10)
        if o.get('stop'):
            A('s_branch L_fin')
        self.chain()
        self.lab('L_fin')
        if self.ts:
            self.stamp(10)
            A('s_waitcnt lgkmcnt(0)')
            lb = self.nl('TSK')
            A(f's_cmp_lg_u32 s{sWAVE}, {o.get("tswave", 0)}')
            A(f's_cbranch_scc1 {lb}')
            A('s_lshl_b32 s3, s2, 7')
            A(f's_add_u32 s3, s3, {TS_OFF}')
            A('v_mov_b32 v1, 0')
            A('s_mov_b64 exec, 1')
            for k in range(11):
                A(f'v_mov_b32 v2, s{sTS+2*k}')
                A(f'v_mov_b32 v3, s{sTS+2*k+1}')
                A(f'buffer_store_dwordx2 v[2:3], v1, s[{S_WS}:{S_WS+3}], s3 offen offset:{8*k}')
                A('s_nop 1')
            A('s_mov_b64 exec, -1')
            self.lab(lb)
        self.lab('L_end')
        A('s_endpgm')
        L.append('.section .rodata,"a"')
        L.append('.p2align 6')
        L.append(f'.amdhsa_kernel {NAME}_kernel')
        for d in ['next_free_vgpr 256', 'next_free_sgpr 102', 'accum_offset 256', 'group_segment_fixed_size 0',
                  'kernarg_size 104', 'user_sgpr_count 2', 'user_sgpr_kernarg_segment_ptr 1',
                  'system_sgpr_workgroup_id_x 1', 'float_denorm_mode_32 3']:
            L.append('  .amdhsa_' + d)
        L.append('.end_amdhsa_kernel')
        return '\n'.join(L) + '\n'

    def reducer(self, which):
        A = self.A
        self.lane(10)
        A('v_lshlrev_b32 v11, 2, v10')
        A(f's_lshl_b32 s{sC}, s{sRU}, 3')
        A(f's_add_u32 s{sC}, s{sC}, s{sWAVE}')
        A(f's_lshl_b32 s{sD}, s{sC}, 8')
        A(f's_add_u32 s{sE}, s{sLOFF}, s{sRHO}')
        A(f's_add_u32 s{sE}, s{sE}, {MB_P1 if which == 1 else MB_P2}')
        for xs in range(8):
            A(f's_add_u32 s{sA}, s{sD}, {xs*20480}')
            A(f's_lshr_b32 s{sBb}, s{sA}, 13')
            A(f's_lshl_b32 s{sBb}, s{sBb}, 14')
            A(f's_and_b32 s{sA}, s{sA}, 8191')
            A(f's_add_u32 s{sA}, s{sA}, s{sBb}')
            A(f's_add_u32 s{sBLK+xs}, s{sA}, s{sE}')
        A('v_and_b32 v16, 7, v10')
        A('v_lshlrev_b32 v16, 1, v16')
        A('v_lshrrev_b32 v17, 3, v10')
        A('v_mul_u32_u24 v17, 1280, v17')
        A('v_add_u32 v17, v17, v16')
        A(f's_mul_i32 s{sE}, s{sX}, 10240')
        A(f's_lshl_b32 s{sBb}, s{sC}, 4')
        A(f's_add_u32 s{sE}, s{sE}, s{sBb}')
        A(f's_add_u32 s{sE}, s{sE}, s{sLOFF}')
        A(f's_add_u32 s{sE}, s{sE}, {MB_X1 if which == 1 else MB_X2}')
        if which == 2:
            lf = self.nl('RF')
            A(f's_cmp_eq_u32 s{sLOFF}, 0')
            A(f's_cbranch_scc1 {lf}')
            A(f's_mul_i32 s{sE}, s{sX}, 1280')
            A(f's_add_u32 s{sE}, s{sE}, s{sBb}')
            A(f's_lshl_b32 s{sA}, s{sX}, 3')
            A(f's_lshl_b64 exec, 0xff, s{sA}')
            self.lab(lf)
        A(f's_mov_b32 s{sM64}, 0x55555555')
        A(f's_mov_b32 s{sM64+1}, 0x55555555')
        loads = [f'buffer_load_dword v{xs}, v11, s[{S_WS}:{S_WS+3}], s{sBLK+xs} offen sc1' for xs in range(8)]
        if which == 2 and self.o.get('rd2d'):
            A(f's_sleep {self.o["rd2d"]}')
        if which == 1 and self.o.get('rd1d') is not None:
            A('v_lshlrev_b32 v12, 4, v10')
            A(f's_lshl_b32 s{sA}, s{sX}, 13')
            A(f's_lshl_b32 s{sBb}, s{sWAVE}, 10')
            A(f's_add_u32 s{sA}, s{sA}, s{sBb}')
            A(f's_add_u32 s{sA}, s{sA}, s{sLOFF}')
            A(f's_add_u32 s{sD}, s{sA}, {MB_O}')
            self.poll([f'buffer_load_dwordx4 v[0:3], v12, s[{S_WS}:{S_WS+3}], s{sD} offen sc1'], range(4))
            A('s_barrier')
            if self.o['rd1d']:
                A(f's_sleep {self.o["rd1d"]}')
        def csum(r):
            A(f'v_add_f32 v8, v{r[0]}, v{r[1]}')
            A(f'v_add_f32 v9, v{r[2]}, v{r[3]}')
            A(f'v_add_f32 v12, v{r[4]}, v{r[5]}')
            A(f'v_add_f32 v13, v{r[6]}, v{r[7]}')
        self.poll2(lambda r: [f'buffer_load_dword v{r[xs]}, v11, s[{S_WS}:{S_WS+3}], s{sBLK+xs} offen sc1' for xs in range(8)],
                   list(range(8)), list(range(20, 28)), csum)
        A('v_add_f32 v8, v8, v9')
        A('v_add_f32 v12, v12, v13')
        A('v_add_f32 v8, v8, v12')
        A('v_cvt_pk_bf16_f32 v8, v8, v8')
        A('v_and_b32 v8, 0xffff0000, v8')
        if which == 2:
            A(f'v_add_f32 v8, v8, v{VB2}')
            A('v_cvt_pk_bf16_f32 v8, v8, v8')
            A('v_and_b32 v8, 0xffff0000, v8')
        A(f'v_add_f32 v8, v8, v{VRES}')
        A('v_cvt_pk_bf16_f32 v8, v8, v8')
        A(f'v_and_b32 v{VRES}, 0xffff0000, v8')
        A('v_and_b32 v9, 0xffff, v8')
        A('s_nop 0')
        A(f'v_or_b32_dpp v9, v{VRES}, v9 quad_perm:[1,1,3,3] row_mask:0xf bank_mask:0xf')
        A(f's_and_b64 exec, exec, s[{sM64}:{sM64+1}]')
        if which == 2:
            lf, le = self.nl('RO'), self.nl('ROE')
            A(f's_cmp_eq_u32 s{sLOFF}, 0')
            A(f's_cbranch_scc1 {lf}')
            A(f'buffer_store_dword v9, v16, s[{S_OUT}:{S_OUT+3}], s{sE} offen')
            A(f's_branch {le}')
            self.lab(lf)
        A('v_min_u32 v9, 0xfffffffe, v9')
        self.store_local(f'buffer_store_dword v9, v17, s[{S_WS}:{S_WS+3}], s{sE} offen')
        if which == 2:
            self.lab(le)
        A('s_mov_b64 exec, -1')
        A('s_waitcnt vmcnt(1)')

    def ln_gather(self, mb, nln):
        A = self.A
        A('v_lshlrev_b32 v30, 2, v24')
        A(f's_mul_i32 s{sD}, s{sX}, 10240')
        A(f's_mul_i32 s{sBb}, s{sWAVE}, 1280')
        A(f's_add_u32 s{sD}, s{sD}, s{sBb}')
        A(f's_add_u32 s{sD}, s{sD}, s{sLOFF}')
        A(f's_add_u32 s{sD}, s{sD}, {mb}')
        loads = [f'buffer_load_dword v{i}, v30, s[{S_WS}:{S_WS+3}], s{sD} offen offset:{256*i} sc1' for i in range(5)]
        self.poll(loads, range(5))
        self.cstamp(4 if nln == 2 else 9)
        if nln == 2:
            self.astamp(8)
        self.layernorm(0, 6, 16, True)
        if nln == 2:
            self.layernorm(0, 6, 16, False)
        self.ln_stage_write(0, 30)

    def chain(self):
        A = self.A
        l_wo, l_m1, l_m2, l_q, l_qp = 'C_wo', 'C_m1', 'C_m2', 'C_q', 'C_qp'
        A(f's_cmp_eq_u32 s{sRT}, 4')
        A(f's_cbranch_scc1 {l_m2}')
        A(f's_cmp_eq_u32 s{sRT}, 3')
        A(f's_cbranch_scc1 {l_m1}')
        A(f's_cmp_eq_u32 s{sRT}, 2')
        A(f's_cbranch_scc1 {l_wo}')
        A(f's_cmp_lg_u32 s{sLOFF}, 0')
        A('s_cbranch_scc1 L_fin')
        A(f's_cmp_eq_u32 s{sRT}, 1')
        A(f's_cbranch_scc1 {l_q}')
        A(f's_branch {l_qp}')
        self.lab(l_wo)
        self.gemm_pre(256, 1040)
        self.p_addr_pre(MB_P1)
        A('v_lshlrev_b32 v30, 4, v24')
        A(f's_lshl_b32 s{sA}, s{sX}, 13')
        A(f's_lshl_b32 s{sBb}, s{sWAVE}, 10')
        A(f's_add_u32 s{sA}, s{sA}, s{sBb}')
        A(f's_add_u32 s{sA}, s{sA}, s{sLOFF}')
        A(f's_add_u32 s{sD}, s{sA}, {MB_O}')
        A(f's_mul_i32 s{sA}, s{sWAVE}, 1040')
        A(f'v_add_u32 v28, s{sA}, v30')
        self.poll2(lambda r: [f'buffer_load_dwordx4 v[{r[0]}:{r[3]}], v30, s[{S_WS}:{S_WS+3}], s{sD} offen sc1'], [0, 1, 2, 3], [4, 5, 6, 7],
                   lambda r: A(f'ds_write_b128 v28, v[{r[0]}:{r[3]}] offset:{L_STAGE}'))
        self.cstamp(1)
        A('s_waitcnt lgkmcnt(0)')
        A('s_barrier')
        A('s_waitcnt vmcnt(0)')
        self.gemm(8)
        self.p_store()
        self.cstamp(2)
        A(f's_cmp_lg_u32 s{sLOFF}, 0')
        A('s_cbranch_scc1 L_fin')
        A(f's_branch {l_qp}')
        self.lab(l_m1)
        self.gemm_pre(320, 1296)
        A(f's_lshl_b32 s{sA}, s{sX}, 12')
        A(f's_lshl_b32 s{sBb}, s{sRU}, 3')
        A(f's_add_u32 s{sBb}, s{sBb}, s{sWAVE}')
        A(f's_lshl_b32 s{sBb}, s{sBb}, 7')
        A(f's_add_u32 s{sA}, s{sA}, s{sBb}')
        A(f's_add_u32 s{sA}, s{sA}, s{sLOFF}')
        A(f's_add_u32 s{sE}, s{sA}, {MB_H}')
        A('v_lshlrev_b32 v29, 4, v25')
        A('v_lshl_add_u32 v29, v26, 3, v29')
        A('v_and_b32 v28, 1, v26')
        A('v_lshlrev_b32 v28, 4, v28')
        A(f's_lshl_b32 s{sA}, s{sWAVE}, 5')
        A(f'v_add_u32 v28, s{sA}, v28')
        self.ln_gather(MB_X1, 2)
        self.astamp(9)
        A(f'ds_read_b128 v[20:23], v28 offset:{L_B1}')
        A('s_barrier')
        self.gemm(10, NT=4)
        self.astamp(10)
        A('v_cvt_pk_bf16_f32 v4, v0, v1')
        A('v_cvt_pk_bf16_f32 v5, v2, v3')
        A('v_lshlrev_b32 v0, 16, v4')
        A('v_and_b32 v1, 0xffff0000, v4')
        A('v_lshlrev_b32 v2, 16, v5')
        A('v_and_b32 v3, 0xffff0000, v5')
        for r in range(4):
            A(f'v_add_f32 v{r}, v{r}, v{20+r}')
        A('v_cvt_pk_bf16_f32 v4, v0, v1')
        A('v_cvt_pk_bf16_f32 v5, v2, v3')
        A('v_lshlrev_b32 v0, 16, v4')
        A('v_and_b32 v1, 0xffff0000, v4')
        A('v_lshlrev_b32 v2, 16, v5')
        A('v_and_b32 v3, 0xffff0000, v5')
        c1 = 2.0 * math.sqrt(2.0 / math.pi) * math.log2(math.e)
        c2 = c1 * 0.044715
        A(f'v_mov_b32 v12, 0x{f2u(c2):08x}')
        A(f'v_mov_b32 v13, 0x{f2u(c1):08x}')
        for r in range(4):
            A(f'v_mul_f32 v{4+r}, v{r}, v{r}')
        for r in range(4):
            A(f'v_fma_f32 v{4+r}, v{4+r}, v12, v13')
        for r in range(4):
            A(f'v_mul_f32 v{4+r}, v{4+r}, v{r}')
        for r in range(4):
            A(f'v_exp_f32 v{4+r}, -v{4+r}')
        A('s_nop 0')
        for r in range(4):
            A(f'v_add_f32 v{4+r}, 1.0, v{4+r}')
        for r in range(4):
            A(f'v_rcp_f32 v{4+r}, v{4+r}')
        A('s_nop 0')
        for r in range(4):
            A(f'v_mul_f32 v{r}, v{r}, v{4+r}')
        self.pack4()
        self.mask16()
        self.store_local(f'buffer_store_dwordx2 v[4:5], v29, s[{S_WS}:{S_WS+3}], s{sE} offen')
        self.unmask()
        self.cstamp(5)
        A(f's_cmp_lg_u32 s{sLOFF}, 0')
        A('s_cbranch_scc1 L_fin')
        A(f's_branch {l_qp}')
        self.lab(l_m2)
        self.reducer(1)
        self.cstamp(3)
        self.lane(24)
        A('v_and_b32 v25, 15, v24')
        A('v_lshrrev_b32 v26, 4, v24')
        A('v_and_b32 v27, 7, v25')
        A('v_lshrrev_b32 v28, 3, v25')
        A('v_mul_u32_u24 v27, 528, v27')
        A('v_lshl_add_u32 v27, v26, 4, v27')
        A(f's_lshl_b32 s{sA}, s{sNM1}, 6')
        A(f'v_mul_u32_u24 v28, s{sA}, v28')
        A('v_add_u32 v27, v27, v28')
        self.p_addr_pre(MB_P2)
        A('v_lshlrev_b32 v30, 3, v24')
        A('v_bfe_u32 v28, v24, 1, 3')
        A('v_mul_u32_u24 v28, 528, v28')
        A('v_lshl_add_u32 v28, v26, 4, v28')
        A('v_and_b32 v23, 1, v24')
        A('v_lshl_add_u32 v28, v23, 3, v28')
        A(f's_lshl_b32 s{sA}, s{sWAVE}, 6')
        A(f'v_add_u32 v28, s{sA}, v28')
        A(f's_lshl_b32 s{sA}, s{sX}, 12')
        A(f's_lshl_b32 s{sBb}, s{sWAVE}, 9')
        A(f's_add_u32 s{sA}, s{sA}, s{sBb}')
        A(f's_add_u32 s{sA}, s{sA}, s{sLOFF}')
        A(f's_add_u32 s{sD}, s{sA}, {MB_H}')
        lsk = self.nl('M2s')
        A(f's_lshl_b32 s{sA}, s{sNM1}, 1')
        A(f's_cmp_ge_u32 s{sWAVE}, s{sA}')
        A(f's_cbranch_scc1 {lsk}')
        self.poll2(lambda r: [f'buffer_load_dwordx2 v[{r[0]}:{r[1]}], v30, s[{S_WS}:{S_WS+3}], s{sD} offen sc1'], [0, 1], [2, 3],
                   lambda r: A(f'ds_write_b64 v28, v[{r[0]}:{r[1]}] offset:{L_STAGE}'))
        self.cstamp(6)
        A('s_waitcnt lgkmcnt(0)')
        self.lab(lsk)
        A('s_barrier')
        for j in range(4):
            A(f'ds_read_b128 v[{4+4*j}:{7+4*j}], v27 offset:{L_STAGE + 64*j}')
        A('s_waitcnt vmcnt(0)')
        lc = self.nl('M2c')
        for j in range(4):
            if j == 3:
                A(f's_cmp_eq_u32 s{sNM1}, 3')
                A(f's_cbranch_scc1 {lc}')
            A(f's_waitcnt lgkmcnt({3-j})')
            c = '0' if j == 0 else 'v[0:3]'
            A(f'v_mfma_f32_16x16x32_bf16 v[0:3], v[{VW+4*j}:{VW+4*j+3}], v[{4+4*j}:{7+4*j}], {c}')
        self.lab(lc)
        A('s_waitcnt lgkmcnt(0)')
        self.combine()
        self.p_store()
        self.cstamp(7)
        self.reducer(2)
        self.cstamp(8)
        A(f's_cmp_lg_u32 s{sLOFF}, 0')
        A('s_cbranch_scc1 L_fin')
        A(f's_branch {l_qp}')
        self.lab(l_q)
        self.gemm_pre(320, 1296)
        self.q_addr_pre(LSTRIDE)
        self.ln_gather(MB_X2, 1)
        A('s_barrier')
        self.gemm(10)
        self.pack4()
        self.mask16()
        self.store_local(f'buffer_store_dwordx2 v[4:5], v29, s[{S_WS}:{S_WS+3}], s{sE} offen')
        self.unmask()
        self.stamp(7)
        self.lab(l_qp)
        A(f's_mov_b32 s{sLOFF}, {LSTRIDE}')
        if self.o.get('qdirect'):
            qls = self.q_loads(29)
            self.poll(qls, range(4))
            self.stamp(8)
            A('s_branch L_att')
            return
        self.lane(30)
        lq = self.nl('QW')
        A(f's_cmp_lg_u32 s{sWAVE}, 0')
        A(f's_cbranch_scc1 {lq}')
        A('v_lshlrev_b32 v29, 7, v30')
        A('v_lshlrev_b32 v28, 4, v30')
        A(f's_lshl_b32 s{sA}, s{sH}, 11')
        A(f's_lshl_b32 s{sBb}, s{sB}, 4')
        A(f's_add_u32 s{sA}, s{sA}, s{sBb}')
        A(f's_add_u32 s{sD}, s{sA}, {MB_Q + LSTRIDE}')
        A('s_mov_b64 exec, 0xffff')
        self._psl = self.o.get('qsl')
        self.poll2(lambda r: [f'buffer_load_dwordx4 v[{r[0]}:{r[3]}], v29, s[{S_WS}:{S_WS+3}], s{sD} offen sc1'], [16, 17, 18, 19], [20, 21, 22, 23],
                   lambda r: A(f'ds_write_b128 v28, v[{r[0]}:{r[3]}] offset:{L_QB}'))
        A('s_mov_b64 exec, -1')
        A('s_waitcnt lgkmcnt(0)')
        self.lab(lq)
        self.q_lane_chunk(30, 27, 26)
        A('v_lshl_add_u32 v30, v30, 4, v27')
        A(f'v_add_u32 v30, {L_QB}, v30')
        A('s_barrier')
        A('ds_read2_b32 v[0:1], v30 offset0:0 offset1:2')
        A('ds_read2_b32 v[2:3], v30 offset0:4 offset1:6')
        A('s_waitcnt vmcnt(0)')
        self.stamp(8)
        A('s_branch L_att')


if __name__ == '__main__':
    ap = argparse.ArgumentParser()
    ap.add_argument('-o', default='cdna_kernels/' + NAME + '.s')
    ap.add_argument('--ts', action='store_true')
    ap.add_argument('--slow', action='store_true')
    for k, d in (('win', 12), ('n1', 12), ('n2', 4), ('nq', 44), ('tswave', 0), ('cmode', None), ('forcepar', None), ('nprobe', 2), ('sync', 0), ('n1win', 0), ('nln', 0), ('stop', 0), ('noclear', 0), ('nowt', 0), ('notable', 0), ('nqs', 36), ('nprb', 8), ('pure', 0), ('prio', 0), ('wl', 0), ('clr4', 0), ('amode', 0), ('rd2', 0), ('wtail', 0), ('synclim', 0), ('cpol', 0), ('syncat', 0), ('ntail', 0), ('k128', 0), ('dbgflag', 0), ('rd2d', 0), ('rd1d', None), ('k0', 0), ('jitter', 0), ('p2', 0), ('qdirect', 0), ('psl', 0), ('qsl', 0), ('bq', 0), ('bo', 0), ('b2', 0)):
        ap.add_argument('--' + k, type=int, default=d)
    a = ap.parse_args()
    o = vars(a).copy()
    out = o.pop('o')
    open(out, 'w').write(G(**o).build())
```
